```python
import torch

def _softmax(x, axis=-1):
    return torch.softmax(x, dim=axis)

def _gelu(x):
    return torch.nn.functional.gelu(x, approximate='tanh')

def _silu(x):
    return torch.nn.functional.silu(x)

def _sigmoid(x):
    return torch.sigmoid(x)

def _layernorm(x, axis=-1, eps=1e-05):
    m = x.mean(dim=axis, keepdim=True)
    v = x.var(dim=axis, keepdim=True, unbiased=False)
    return (x - m) / torch.sqrt(v + eps)

def _scatter_add(tgt, idx, src, axis=0):
    return tgt.clone().index_add_(axis, idx, src)

def _segment_sum(src, seg, n):
    out = torch.zeros((n,) + src.shape[1:], dtype=src.dtype)
    return out.index_add_(0, seg, src)

def _pad(x, pw):
    flat = tuple((v for pair in reversed(pw) for v in pair))
    return torch.nn.functional.pad(x, flat)
kernel_name = 'standalone__tree_speculative_verify_tree_attention_over_candidate_token_tree__decode'

def setup_inputs():

    _w = lambda a: (lambda t: t.to(torch.bfloat16) if t.is_floating_point() else t)(torch.as_tensor(a))
    B, Hq, Hkv, T, C, D = (2, 32, 32, 1, 8192, 192)
    tree_mask = torch.zeros((B, T, T), dtype=float)
    for b in range(B):
        parent = torch.zeros(T, dtype=torch.int64)
        for i in range(1, T):
            parent[i] = int(torch.randint(0, i, (1,)).item())
        for i in range(T):
            j = i
            tree_mask[b, i, j] = 1.0
            while j > 0:
                j = parent[j]
                tree_mask[b, i, j] = 1.0
    return {'q': _w((lambda *s: torch.randn(*s, dtype=torch.bfloat16) * 0.8)(B, Hq, T, D)), 'k_cache': _w((lambda *s: torch.randn(*s, dtype=torch.bfloat16) * 0.8)(B, Hkv, C, D)), 'v_cache': _w((lambda *s: torch.randn(*s, dtype=torch.bfloat16) * 0.05)(B, Hkv, C, D)), 'k_tree': _w((lambda *s: torch.randn(*s, dtype=torch.bfloat16) * 0.8)(B, Hkv, T, D)), 'v_tree': _w((lambda *s: torch.randn(*s, dtype=torch.bfloat16) * 0.05)(B, Hkv, T, D)), 'tree_mask': _w(tree_mask)}

def reference(q, k_cache, v_cache, k_tree, v_tree, tree_mask):
    B, Hq, T, D = q.shape
    Hkv, C = (k_cache.shape[1], k_cache.shape[2])
    rep = Hq // Hkv
    kc = (lambda x, n, axis: torch.repeat_interleave(x, n, dim=axis))(k_cache, rep, axis=1)
    vc = (lambda x, n, axis: torch.repeat_interleave(x, n, dim=axis))(v_cache, rep, axis=1)
    kt = (lambda x, n, axis: torch.repeat_interleave(x, n, dim=axis))(k_tree, rep, axis=1)
    vt = (lambda x, n, axis: torch.repeat_interleave(x, n, dim=axis))(v_tree, rep, axis=1)
    k = torch.concatenate([kc, kt], axis=2)
    v = torch.concatenate([vc, vt], axis=2)
    scale = D ** (-0.5)
    scores = torch.einsum('bhqd,bhkd->bhqk', q, k) * scale
    ctx_mask = torch.ones((B, 1, T, C), dtype=scores.dtype)
    tm = tree_mask[:, None, :, :].clone()
    full_mask = torch.concatenate([ctx_mask, tm], axis=-1)
    scores = scores + (1.0 - full_mask) * -1000000000.0
    p = _softmax(scores, axis=-1)
    return torch.einsum('bhqk,bhkd->bhqd', p, v)
```

```python
import math, struct, sys, re, argparse

NAME = "standalone__tree_speculative_verify_tree_attention_over_candidate_token_tree__decode"
HEADER = """; Kernarg layout for this problem (72 bytes, ptrs only, base s[0:1]):
;   offset  16: d_in[2] v_cache  shape=(2, 32, 8192, 192) dtype=bfloat16 strides=(100663296, 3145728, 384, 2) contiguous=True
;   offset  32: d_in[4] v_tree  shape=(2, 32, 1, 192) dtype=bfloat16 strides=(12288, 384, 384, 2) contiguous=True
"""

def f2u(x):
    return struct.unpack("<I", struct.pack("<f", x))[0]

NH = 64; C = 8192; DH = 192; ROWB = 384; HEADB = C * ROWB; KVB = NH * HEADB
SCALE_LOG2E = (DH ** -0.5) * math.log2(math.e)
MASKRAW = -1.0e9 * math.sqrt(DH)


class Em:
    def __init__(self):
        self.lines = []
        self.pos = 0
        self.vw = {}
        self.sw = {}

    @staticmethod
    def regs(tok, pfx):
        tok = tok.strip().lstrip('-')
        m = re.fullmatch(pfx + r"(\d+)", tok)
        if m: return [int(m.group(1))]
        m = re.fullmatch(pfx + r"\[(\d+):(\d+)\]", tok)
        if m: return list(range(int(m.group(1)), int(m.group(2)) + 1))
        return []

    def raw(self, s):
        self.lines.append(s)

    def label(self, s):
        self.lines.append(s + ":")

    def nop(self, n):
        while n > 0:
            k = min(n, 16)
            self.lines.append(f"    s_nop {k-1}")
            self.pos += k
            n -= k

    def __call__(self, s):
        s = s.strip()
        op, _, rest = s.partition(" ")
        rest_nomod = rest
        toks = [t.strip() for t in re.split(r",", rest_nomod)]
        if toks:
            toks[-1] = toks[-1].split(" ")[0]
        need = 0
        def req(p, n):
            nonlocal need
            need = max(need, n - (self.pos - p - 1))
        isv = op.startswith("v_")
        ismem = op.startswith(("buffer_", "global_", "ds_"))
        if isv:
            dst = self.regs(toks[0], "v")
            srcs = []
            for t in toks[1:]:
                srcs += self.regs(t, "v")
            ssrc = []
            for t in toks[1:]:
                ssrc += self.regs(t, "s")
                if t == "vcc": ssrc += [106, 107]
            rw_dst = op.startswith(("v_dot2c", "v_fmac", "v_permlane")) or "dpp" in op
            if op.startswith("v_permlane"):
                dst = dst + self.regs(toks[1], "v")
            reads = list(srcs) + (dst if rw_dst else [])
            isdot = op.startswith("v_dot2")
            istrans = op.startswith(("v_exp", "v_rcp", "v_log", "v_rsq", "v_sqrt"))
            isdpp = "dpp" in op
            for r in set(reads + dst):
                if r not in self.vw: continue
                p, kind, pop = self.vw[r]
                if kind == "dot":
                    srcc = (r in dst and op.startswith("v_dot2c")) or (op == "v_dot2_f32_bf16" and r in self.regs(toks[3], "v"))
                    srcab = r in (self.regs(toks[1], "v") + (self.regs(toks[2], "v") if len(toks) > 2 else []))
                    if pop == op and srcc and not srcab:
                        pass
                    else:
                        req(p, 3)
                if r in reads:
                    if kind == "trans" and not istrans: req(p, 1)
                    if isdpp: req(p, 2)
                    if op.startswith("v_permlane"): req(p, 2)
                    if op.startswith(("v_readlane", "v_readfirstlane")): req(p, 1)
                if kind == "store" and r in dst: req(p, 2)
            for r in ssrc:
                if r in self.sw: req(self.sw[r], 4 if op.startswith(("v_readlane", "v_writelane")) else 2)
            if op.startswith("v_cndmask") and len(toks) == 4 and toks[3] == "vcc":
                for r in (106, 107):
                    if r in self.sw: req(self.sw[r], 2)
            if need > 0: self.nop(need)
            self.lines.append("    " + s)
            kind = "dot" if isdot else "trans" if istrans else "valu"
            for r in dst: self.vw[r] = (self.pos, kind, op)
            sd = self.regs(toks[0], "s")
            if toks[0] == "vcc": sd = [106, 107]
            for r in sd: self.sw[r] = self.pos
            self.pos += 1
            return
        if ismem:
            for t in toks:
                for r in self.regs(t, "s"):
                    if r in self.sw: req(self.sw[r], 5)
                for r in self.regs(t, "v"):
                    if r in self.vw and self.vw[r][1] == "dot": req(self.vw[r][0], 3)
                    if r in self.vw and self.vw[r][1] == "trans": req(self.vw[r][0], 1)
            if need > 0: self.nop(need)
            self.lines.append("    " + s)
            if "store" in op and ("x3" in op or "x4" in op):
                for t in toks:
                    rr = self.regs(t, "v")
                    if len(rr) >= 3:
                        for r in rr: self.vw[r] = (self.pos, "store", op)
            self.pos += 1
            return
        if op.startswith("s_") and op not in ("s_waitcnt", "s_barrier", "s_nop", "s_endpgm"):
            for t in toks:
                for r in self.regs(t, "s"):
                    if r in self.sw: req(self.sw[r], 2)
                if t == "vcc":
                    for r in (106, 107):
                        if r in self.sw: req(self.sw[r], 2)
            if op.startswith("s_cbranch_vcc"):
                for r in (106, 107):
                    if r in self.sw: req(self.sw[r], 5)
            if need > 0: self.nop(need)
        self.lines.append("    " + s)
        self.pos += 1


def gen(NSPLIT=4, W=8, R=2, D=3, pol="nt", order="hm", diag=False):
    NWG = NH * NSPLIT
    ROWS = C // NSPLIT
    STG_ROWS = W * R * 8
    NST = ROWS // STG_ROWS
    assert ROWS % STG_ROWS == 0
    STG_B = STG_ROWS * ROWB
    assert NST >= D
    LPS = 3 * R
    assert 2 * D * LPS + 10 <= 63 + 10
    pol = (" " + pol) if pol else ""
    e = Em()
    vTid, vOffA, vOffB, vT0, vT1, vM, vL, vMC, vAl = 0, 1, 2, 3, 4, 5, 6, 7, 8
    vLane = 9
    vS = 10
    nS = 3 * R
    vPh = vS + nS
    vPl = vPh + R
    vQ = (vPl + R + 3) // 4 * 4
    vAcc = vQ + 12
    vK = vAcc + 24
    vV = vK + D * R * 12
    vEnd = vV + D * R * 12
    assert vEnd <= 512
    def kreg(d, g, n): return vK + (d * R + g) * 12 + n * 4
    def vreg(d, g, n): return vV + (d * R + g) * 12 + n * 4
    sK, sV = 24, 28
    sHead, sSplit, sWave, sOffK, sCnt, sC, sTmp, sPar = 36, 37, 38, 39, 40, 41, 42, 44
    sWs, sOut = 48, 52
    sT0 = 56

    def loads(kind, d, soff):
        srd = sK if kind == "K" else sV
        for g in range(R):
            for n in range(3):
                r = kreg(d, g, n) if kind == "K" else vreg(d, g, n)
                off = (g % 2) * 3072 + n * 128
                voff = vOffA if g < 2 else vOffB
                e(f"buffer_load_dwordx4 v[{r}:{r+3}], v{voff}, s[{srd}:{srd+3}], s{soff} offen offset:{off}{pol}")

    e(f"s_cmp_ge_u32 s2, {NWG}")
    e(f"s_cbranch_scc1 L_end")
    e(f"s_load_dwordx16 s[4:19], s[0:1], 0")
    e(f"s_load_dwordx2 s[20:21], s[0:1], 64")
    if diag: e(f"s_memrealtime s[{sT0}:{sT0+1}]")
    e(f"v_lshrrev_b32 v{vT0}, 6, v0")
    e(f"v_and_b32 v{vLane}, 63, v0")
    e(f"v_readfirstlane_b32 s{sWave}, v{vT0}")
    e(f"v_lshrrev_b32 v{vT0}, 3, v{vLane}")
    e(f"v_and_b32 v{vT1}, 7, v{vLane}")
    e(f"v_mul_u32_u24 v{vOffA}, {ROWB}, v{vT0}")
    e(f"v_lshlrev_b32 v{vT1}, 4, v{vT1}")
    e(f"v_add_u32 v{vOffA}, v{vOffA}, v{vT1}")
    if order == "hm":
        e(f"s_lshr_b32 s{sHead}, s2, {int(math.log2(NSPLIT))}")
        e(f"s_and_b32 s{sSplit}, s2, {NSPLIT-1}")
    else:
        e(f"s_and_b32 s{sHead}, s2, {NH-1}")
        e(f"s_lshr_b32 s{sSplit}, s2, 6")
    e(f"s_mul_i32 s{sOffK}, s{sHead}, {HEADB}")
    e(f"s_mul_i32 s{sTmp}, s{sSplit}, {ROWS*ROWB}")
    e(f"s_add_u32 s{sOffK}, s{sOffK}, s{sTmp}")
    e(f"s_mul_i32 s{sTmp}, s{sWave}, {R*3072}")
    e(f"s_add_u32 s{sOffK}, s{sOffK}, s{sTmp}")
    e(f"s_mul_i32 s{sTmp}, s{sHead}, {ROWB}")
    e(f"v_add_u32 v{vT1}, s{sTmp}, v{vT1}")
    if R > 2:
        e(f"v_add_u32 v{vOffB}, 6144, v{vOffA}")
    e(f"s_mov_b32 s{sK+2}, {KVB}")
    e(f"s_mov_b32 s{sK+3}, 0x00020000")
    e(f"s_mov_b32 s{sV+2}, {KVB}")
    e(f"s_mov_b32 s{sV+3}, 0x00020000")
    e(f"s_mov_b32 s{sC}, 0x{f2u(SCALE_LOG2E):08x}")
    e(f"s_waitcnt lgkmcnt(0)")
    e(f"s_mov_b32 s{sK}, s6")
    e(f"s_mov_b32 s{sK+1}, s7")
    e(f"s_mov_b32 s{sV}, s8")
    e(f"s_mov_b32 s{sV+1}, s9")
    for n in range(3):
        e(f"global_load_dwordx4 v[{vQ+4*n}:{vQ+4*n+3}], v{vT1}, s[4:5] offset:{n*128}")
    e(f"s_or_b32 s{sTmp}, s{sSplit}, s{sWave}")
    e(f"s_cmp_lg_u32 s{sTmp}, 0")
    e(f"s_cbranch_scc1 L_notree0")
    for n in range(3):
        e(f"global_load_dwordx4 v[{vAcc+4*n}:{vAcc+4*n+3}], v{vT1}, s[10:11] offset:{n*128}")
    for n in range(3):
        e(f"global_load_dwordx4 v[{vAcc+12+4*n}:{vAcc+12+4*n+3}], v{vT1}, s[12:13] offset:{n*128}")
    e(f"s_lshr_b32 s{sTmp}, s{sHead}, 5")
    e(f"s_lshl_b32 s{sTmp}, s{sTmp}, 1")
    e(f"v_mov_b32 v{vMC}, s{sTmp}")
    e(f"global_load_ushort v{vAl}, v{vMC}, s[14:15]")
    e.label("L_notree0")
    for d in range(D):
        loads("K", d, sOffK)
        loads("V", d, sOffK)
        e(f"s_add_u32 s{sOffK}, s{sOffK}, {STG_B}")
    e(f"s_mov_b32 s{sWs}, s20")
    e(f"s_mov_b32 s{sWs+1}, s21")
    e(f"s_mov_b32 s{sWs+2}, {NWG*1024 + (NWG*64 if diag else 0)}")
    e(f"s_mov_b32 s{sWs+3}, 0x00020000")
    e(f"s_mov_b32 s{sOut}, s16")
    e(f"s_mov_b32 s{sOut+1}, s17")
    e(f"s_mov_b32 s{sOut+2}, {NH*ROWB}")
    e(f"s_mov_b32 s{sOut+3}, 0x00020000")
    e(f"s_mov_b32 s{sPar}, 0xaaaaaaaa")
    e(f"s_mov_b32 s{sPar+1}, 0xaaaaaaaa")
    e(f"s_or_b32 s{sTmp}, s{sSplit}, s{sWave}")
    e(f"s_cmp_lg_u32 s{sTmp}, 0")
    e(f"s_cbranch_scc1 L_notree1")
    e(f"s_waitcnt vmcnt({2*D*LPS})")
    for n in range(3):
        for j in range(4):
            src2 = "0" if j == 0 else f"v{vS+n}"
            e(f"v_dot2_f32_bf16 v{vS+n}, v{vAcc+4*n+j}, v{vQ+4*n+j}, {src2}")
    e(f"v_add_f32 v{vS}, v{vS}, v{vS+1}")
    e(f"v_add_f32 v{vS}, v{vS}, v{vS+2}")
    for dp in ("quad_perm:[1,0,3,2]", "quad_perm:[2,3,0,1]", "row_half_mirror"):
        e(f"v_add_f32_dpp v{vS}, v{vS}, v{vS} {dp} row_mask:0xf bank_mask:0xf")
    e(f"v_lshlrev_b32 v{vAl}, 16, v{vAl}")
    e(f"v_sub_f32 v{vAl}, 1.0, v{vAl}")
    e(f"v_mov_b32 v{vMC}, 0x{f2u(MASKRAW):08x}")
    e(f"v_fma_f32 v{vS}, v{vAl}, v{vMC}, v{vS}")
    e(f"v_cmp_gt_u32 vcc, 8, v{vLane}")
    e(f"v_mov_b32 v{vM}, 0x{f2u(-1e30):08x}")
    e(f"v_cndmask_b32 v{vM}, v{vM}, v{vS}, vcc")
    e(f"v_cndmask_b32 v{vL}, 0, 1.0, vcc")
    for k in range(12):
        src = vAcc + 12 + k
        e(f"v_cndmask_b32 v{vT0}, 0, v{src}, vcc")
        e(f"v_lshlrev_b32 v{vAcc+2*k}, 16, v{vT0}")
        e(f"v_and_b32 v{vAcc+2*k+1}, 0xffff0000, v{vT0}")
    e(f"s_branch L_init_done")
    e.label("L_notree1")
    e(f"v_mov_b32 v{vM}, 0x{f2u(-1e30):08x}")
    e(f"v_mov_b32 v{vL}, 0")
    for k in range(24):
        e(f"v_mov_b32 v{vAcc+k}, 0")
    e.label("L_init_done")
    e.nop(3)

    def stage(d, issue, n_after_k, n_after_v):
        e(f"s_waitcnt vmcnt({n_after_k})")
        for j in range(4):
            for g in range(R):
                for n in range(3):
                    a = vS + g * 3 + n
                    src2 = "0" if j == 0 else f"v{a}"
                    e(f"v_dot2_f32_bf16 v{a}, v{kreg(d,g,n)+j}, v{vQ+4*n+j}, {src2}")
        if issue: loads("K", d, sOffK)
        for g in range(R):
            e(f"v_add_f32 v{vS+3*g}, v{vS+3*g}, v{vS+3*g+1}")
        for g in range(R):
            e(f"v_add_f32 v{vS+3*g}, v{vS+3*g}, v{vS+3*g+2}")
        for dp in ("quad_perm:[1,0,3,2]", "quad_perm:[2,3,0,1]", "row_half_mirror"):
            for g in range(R):
                e(f"v_add_f32_dpp v{vS+3*g}, v{vS+3*g}, v{vS+3*g} {dp} row_mask:0xf bank_mask:0xf")
        e(f"v_mov_b32 v{vT0}, v{vM}")
        g = 0
        while g < R:
            if g + 1 < R:
                e(f"v_max3_f32 v{vM}, v{vM}, v{vS+3*g}, v{vS+3*g+3}"); g += 2
            else:
                e(f"v_max_f32 v{vM}, v{vM}, v{vS+3*g}"); g += 1
        e(f"v_mul_f32 v{vMC}, s{sC}, v{vM}")
        e(f"v_fma_f32 v{vAl}, v{vT0}, s{sC}, -v{vMC}")
        for g in range(R):
            e(f"v_fma_f32 v{vPh+g}, v{vS+3*g}, s{sC}, -v{vMC}")
        e(f"v_exp_f32 v{vAl}, v{vAl}")
        for g in range(R):
            e(f"v_exp_f32 v{vPh+g}, v{vPh+g}")
        e(f"v_mul_f32 v{vL}, v{vL}, v{vAl}")
        for g in range(R):
            e(f"v_cvt_pk_bf16_f32 v{vPh+g}, 0, v{vPh+g}")
        for k in range(24):
            e(f"v_mul_f32 v{vAcc+k}, v{vAcc+k}, v{vAl}")
        for g in range(R):
            e(f"v_lshrrev_b32 v{vPl+g}, 16, v{vPh+g}")
            e(f"v_add_f32 v{vL}, v{vL}, v{vPh+g}")
        e(f"s_waitcnt vmcnt({n_after_v})")
        for g in range(R):
            for n in range(3):
                for j in range(4):
                    e(f"v_dot2c_f32_bf16 v{vAcc+8*n+2*j}, v{vreg(d,g,n)+j}, v{vPl+g}")
                    e(f"v_dot2c_f32_bf16 v{vAcc+8*n+2*j+1}, v{vreg(d,g,n)+j}, v{vPh+g}")
        if issue:
            loads("V", d, sOffK)
            e(f"s_add_u32 s{sOffK}, s{sOffK}, {STG_B}")

    main = NST - D
    iters, rem = divmod(main, D)
    NIF = (2 * D - 1) * LPS
    if iters > 0:
        if iters > 1:
            e(f"s_mov_b32 s{sCnt}, {iters}")
            e.raw(".p2align 6")
            e.label("L_loop")
        for d in range(D):
            stage(d, True, NIF, NIF)
        if iters > 1:
            e(f"s_sub_u32 s{sCnt}, s{sCnt}, 1")
            e(f"s_cmp_lg_u32 s{sCnt}, 0")
            e(f"s_cbranch_scc1 L_loop")
    for d in range(rem):
        stage(d, True, NIF, NIF)
    for i in range(D):
        d = (rem + i) % D
        left = D - 1 - i
        stage(d, False, (2 * left + 1) * LPS, 2 * left * LPS)

    if diag: e(f"s_memrealtime s[{sT0+2}:{sT0+3}]")
    vMW = vS; vX = vS + 1
    e(f"v_mov_b32 v{vMW}, v{vM}")
    e(f"v_max_f32_dpp v{vMW}, v{vM}, v{vM} row_ror:8 row_mask:0xf bank_mask:0xf")
    e(f"v_mov_b32 v{vX}, v{vMW}")
    e(f"v_permlane16_swap_b32 v{vMW}, v{vX}")
    e(f"v_max_f32 v{vMW}, v{vMW}, v{vX}")
    e(f"v_mov_b32 v{vX}, v{vMW}")
    e(f"v_permlane32_swap_b32 v{vMW}, v{vX}")
    e(f"v_max_f32 v{vMW}, v{vMW}, v{vX}")
    e(f"v_sub_f32 v{vAl}, v{vM}, v{vMW}")
    e(f"v_mul_f32 v{vAl}, s{sC}, v{vAl}")
    e(f"v_exp_f32 v{vAl}, v{vAl}")
    e(f"v_mul_f32 v{vL}, v{vL}, v{vAl}")
    for k in range(24):
        e(f"v_mul_f32 v{vAcc+k}, v{vAcc+k}, v{vAl}")
    A = lambda n, ee: vAcc + 8 * n + ee
    e(f"v_add_f32_dpp v{vL}, v{vL}, v{vL} row_ror:8 row_mask:0xf bank_mask:0xf")
    for n in range(3):
        for ee in range(4):
            e(f"v_permlane32_swap_b32 v{A(n,ee)}, v{A(n,ee+4)}")
    e(f"v_mov_b32 v{vX}, v{vL}")
    for n in range(3):
        for ee in range(4):
            e(f"v_add_f32 v{A(n,ee)}, v{A(n,ee)}, v{A(n,ee+4)}")
    e(f"v_permlane16_swap_b32 v{vL}, v{vX}")
    for n in range(3):
        for ee in range(2):
            e(f"v_permlane16_swap_b32 v{A(n,ee)}, v{A(n,ee+2)}")
    e(f"v_add_f32 v{vL}, v{vL}, v{vX}")
    for n in range(3):
        for ee in range(2):
            e(f"v_add_f32 v{A(n,ee)}, v{A(n,ee)}, v{A(n,ee+2)}")
    e(f"v_mov_b32 v{vX}, v{vL}")
    vO = vK
    for n in range(3):
        e(f"v_add_f32_dpp v{vO+n}, v{A(n,0)}, v{A(n,0)} row_ror:8 row_mask:0xf bank_mask:0x3")
    e(f"v_permlane32_swap_b32 v{vL}, v{vX}")
    for n in range(3):
        e(f"v_add_f32_dpp v{vO+n}, v{A(n,1)}, v{A(n,1)} row_ror:8 row_mask:0xf bank_mask:0xc")
    e(f"v_add_f32 v{vL}, v{vL}, v{vX}")
    e(f"v_cndmask_b32 v{vO+3}, v{vL}, v{vMW}, s[{sPar}:{sPar+1}]")
    e(f"v_lshlrev_b32 v{vT0}, 4, v0")
    e(f"ds_write_b128 v{vT0}, v[{vO}:{vO+3}]")
    e(f"s_waitcnt lgkmcnt(0)")
    e(f"s_barrier")
    e(f"s_cmp_lg_u32 s{sWave}, 0")
    e(f"s_cbranch_scc1 L_end")

    def combine(n, base, out):
        e(f"v_mov_b32_dpp v{vMW}, v{base+3} quad_perm:[1,1,3,3] row_mask:0xf bank_mask:0xf")
        for i in range(1, n):
            e(f"v_max_f32_dpp v{vMW}, v{base+4*i+3}, v{vMW} quad_perm:[1,1,3,3] row_mask:0xf bank_mask:0xf")
        F = vAcc
        for i in range(n):
            e(f"v_sub_f32_dpp v{F+i}, v{base+4*i+3}, v{vMW} quad_perm:[1,1,3,3] row_mask:0xf bank_mask:0xf")
        for i in range(n):
            e(f"v_mul_f32 v{F+i}, s{sC}, v{F+i}")
        for i in range(n):
            e(f"v_exp_f32 v{F+i}, v{F+i}")
        for i in range(n):
            e(f"v_mov_b32_dpp v{base+4*i+3}, v{base+4*i+3} quad_perm:[0,0,2,2] row_mask:0xf bank_mask:0xf")
        for j in range(4):
            e(f"v_mul_f32 v{out+j}, v{F}, v{base+j}")
        for i in range(1, n):
            for j in range(4):
                e(f"v_fmac_f32 v{out+j}, v{F+i}, v{base+4*i+j}")

    vB = vK + 4
    need = vB + 4 * max(W, NSPLIT)
    vEnd = max(vEnd, need)
    assert max(W, NSPLIT) <= 24
    for w in range(W):
        e(f"ds_read_b128 v[{vB+4*w}:{vB+4*w+3}], v{vT0} offset:{w*1024}")
    e(f"s_waitcnt lgkmcnt(0)")
    combine(W, vB, vO)
    e(f"v_cndmask_b32 v{vO+3}, v{vO+3}, v{vMW}, s[{sPar}:{sPar+1}]")
    e(f"s_mul_i32 s{sTmp}, s{sHead}, {NSPLIT*1024}")
    e(f"s_lshl_b32 s{sCnt}, s{sSplit}, 10")
    e(f"s_add_u32 s{sCnt}, s{sCnt}, s{sTmp}")
    e(f"buffer_store_dwordx4 v[{vO}:{vO+3}], v{vT0}, s[{sWs}:{sWs+3}], s{sCnt} offen sc1")
    e(f"s_lshl_b32 s{sCnt}, s{sHead}, 2")
    e(f"v_mov_b32 v{vT1}, s{sCnt}")
    e(f"v_mov_b32 v{vX}, 1")
    e(f"s_mov_b64 exec, 1")
    e(f"s_waitcnt vmcnt(0)")
    e(f"global_atomic_add v{vX}, v{vT1}, v{vX}, s[18:19] sc0")
    e(f"s_waitcnt vmcnt(0)")
    e(f"s_mov_b64 exec, -1")
    e(f"v_readfirstlane_b32 s{sCnt}, v{vX}")
    e(f"s_cmp_lg_u32 s{sCnt}, {NSPLIT-1}")
    e(f"s_cbranch_scc1 L_fin")
    for i in range(NSPLIT):
        if i * 1024 < 4096:
            e(f"buffer_load_dwordx4 v[{vB+4*i}:{vB+4*i+3}], v{vT0}, s[{sWs}:{sWs+3}], s{sTmp} offen offset:{i*1024} sc1")
        else:
            if i % 4 == 0:
                e(f"s_add_u32 s{sTmp}, s{sTmp}, 4096")
            e(f"buffer_load_dwordx4 v[{vB+4*i}:{vB+4*i+3}], v{vT0}, s[{sWs}:{sWs+3}], s{sTmp} offen offset:{(i%4)*1024} sc1")
    e(f"v_and_b32 v{vT1}, 7, v{vLane}")
    e(f"v_lshlrev_b32 v{vT1}, 4, v{vT1}")
    e(f"v_lshrrev_b32 v{vX}, 3, v{vLane}")
    e(f"v_lshl_add_u32 v{vT1}, v{vX}, 1, v{vT1}")
    e(f"s_mul_i32 s{sTmp}, s{sHead}, {ROWB}")
    e(f"s_waitcnt vmcnt(0)")
    combine(NSPLIT, vB, vO)
    e(f"v_rcp_f32 v{vO+3}, v{vO+3}")
    for j in range(3):
        e(f"v_mul_f32 v{vO+j}, v{vO+j}, v{vO+3}")
    for j in range(3):
        e(f"v_cvt_pk_bf16_f32 v{vO+j}, v{vO+j}, v{vO+j}")
    for j in range(3):
        e(f"buffer_store_short v{vO+j}, v{vT1}, s[{sOut}:{sOut+3}], s{sTmp} offen offset:{j*128}")
    e.label("L_fin")
    if diag:
        e(f"s_waitcnt vmcnt(0)")
        e(f"s_memrealtime s[{sT0+4}:{sT0+5}]")
        e(f"s_getreg_b32 s{sT0+6}, hwreg(HW_REG_XCC_ID)")
        e(f"s_getreg_b32 s{sT0+7}, hwreg(HW_REG_HW_ID)")
        e(f"s_waitcnt lgkmcnt(0)")
        for j in range(8):
            e(f"v_mov_b32 v{vB+j}, s{sT0+j}")
        e(f"s_lshl_b32 s{sTmp}, s2, 6")
        e(f"s_add_u32 s{sTmp}, s{sTmp}, {NWG*1024}")
        e(f"v_mov_b32 v{vT1}, 0")
        e(f"s_mov_b64 exec, 1")
        e(f"buffer_store_dwordx4 v[{vB}:{vB+3}], v{vT1}, s[{sWs}:{sWs+3}], s{sTmp} offen")
        e(f"buffer_store_dwordx4 v[{vB+4}:{vB+7}], v{vT1}, s[{sWs}:{sWs+3}], s{sTmp} offen offset:16")
    e.label("L_end")
    e("s_endpgm")

    nv = (vEnd + 7) // 8 * 8
    acc_off = min(256, (vEnd + 3) // 4 * 4)
    assert vEnd <= 256
    out = HEADER
    out += f"; params: NSPLIT={NSPLIT} W={W} R={R} D={D} pol={pol.strip()} order={order}\n"
    out += f"; @launch grid=({NWG},1,1) block=({W*64},1,1) lds={W*1024}\n"
    out += f""".amdgcn_target "amdgcn-amd-amdhsa--gfx950"
.text
.globl {NAME}_kernel
.p2align 8
.type {NAME}_kernel,@function
{NAME}_kernel:
"""
    out += "\n".join(e.lines) + "\n"
    out += f""".section .rodata,"a"
.p2align 6
.amdhsa_kernel {NAME}_kernel
  .amdhsa_next_free_vgpr {vEnd}
  .amdhsa_next_free_sgpr 64
  .amdhsa_accum_offset {acc_off}
  .amdhsa_group_segment_fixed_size 0
  .amdhsa_kernarg_size 72
  .amdhsa_user_sgpr_count 2
  .amdhsa_user_sgpr_kernarg_segment_ptr 1
  .amdhsa_system_sgpr_workgroup_id_x 1
.end_amdhsa_kernel
"""
    return out


if __name__ == "__main__":
    ap = argparse.ArgumentParser()
    ap.add_argument("-o", default="cdna_kernels/" + NAME + ".s")
    ap.add_argument("--nsplit", type=int, default=4)
    ap.add_argument("--w", type=int, default=8)
    ap.add_argument("--r", type=int, default=2)
    ap.add_argument("--d", type=int, default=3)
    ap.add_argument("--pol", default="nt")
    ap.add_argument("--order", default="hm")
    ap.add_argument("--diag", action="store_true")
    a = ap.parse_args()
    open(a.o, "w").write(gen(a.nsplit, a.w, a.r, a.d, a.pol, a.order, a.diag))
```

```python
import math, struct, sys, re, argparse

NAME = "standalone__tree_speculative_verify_tree_attention_over_candidate_token_tree__decode"
HEADER = """; Kernarg layout for this problem (72 bytes, ptrs only, base s[0:1]):
;   offset   8: d_in[1] k_cache  shape=(2, 32, 8192, 192) dtype=bfloat16 strides=(100663296, 3145728, 384, 2) contiguous=True
;   offset  16: d_in[2] v_cache  shape=(2, 32, 8192, 192) dtype=bfloat16 strides=(100663296, 3145728, 384, 2) contiguous=True
;   offset  32: d_in[4] v_tree  shape=(2, 32, 1, 192) dtype=bfloat16 strides=(12288, 384, 384, 2) contiguous=True
"""

def f2u(x):
    return struct.unpack("<I", struct.pack("<f", x))[0]

NH = 64; C = 8192; DH = 192; ROWB = 384; HEADB = C * ROWB; KVB = NH * HEADB
SCALE_LOG2E = (DH ** -0.5) * math.log2(math.e)
MASKRAW = -1.0e9 * math.sqrt(DH)


class Em:
    def __init__(self):
        self.lines = []
        self.pos = 0
        self.vw = {}
        self.sw = {}

    @staticmethod
    def regs(tok, pfx):
        tok = tok.strip().lstrip('-')
        m = re.fullmatch(pfx + r"(\d+)", tok)
        if m: return [int(m.group(1))]
        m = re.fullmatch(pfx + r"\[(\d+):(\d+)\]", tok)
        if m: return list(range(int(m.group(1)), int(m.group(2)) + 1))
        return []

    def raw(self, s):
        self.lines.append(s)

    def label(self, s):
        self.lines.append(s + ":")

    def nop(self, n):
        while n > 0:
            k = min(n, 16)
            self.lines.append(f"    s_nop {k-1}")
            self.pos += k
            n -= k

    def __call__(self, s):
        s = s.strip()
        op, _, rest = s.partition(" ")
        rest_nomod = rest
        toks = [t.strip() for t in re.split(r",", rest_nomod)]
        if toks:
            toks[-1] = toks[-1].split(" ")[0]
        need = 0
        def req(p, n):
            nonlocal need
            need = max(need, n - (self.pos - p - 1))
        isv = op.startswith("v_")
        ismem = op.startswith(("buffer_", "global_", "ds_"))
        if isv:
            dst = self.regs(toks[0], "v")
            srcs = []
            for t in toks[1:]:
                srcs += self.regs(t, "v")
            ssrc = []
            for t in toks[1:]:
                ssrc += self.regs(t, "s")
                if t == "vcc": ssrc += [106, 107]
            rw_dst = op.startswith(("v_dot2c", "v_fmac", "v_permlane")) or "dpp" in op
            if op.startswith("v_permlane"):
                dst = dst + self.regs(toks[1], "v")
            reads = list(srcs) + (dst if rw_dst else [])
            isdot = op.startswith("v_dot2")
            istrans = op.startswith(("v_exp", "v_rcp", "v_log", "v_rsq", "v_sqrt"))
            isdpp = "dpp" in op
            for r in set(reads + dst):
                if r not in self.vw: continue
                p, kind, pop = self.vw[r]
                if kind == "dot":
                    srcc = (r in dst and op.startswith("v_dot2c")) or (op == "v_dot2_f32_bf16" and r in self.regs(toks[3], "v"))
                    srcab = r in (self.regs(toks[1], "v") + (self.regs(toks[2], "v") if len(toks) > 2 else []))
                    if pop == op and srcc and not srcab:
                        pass
                    else:
                        req(p, 3)
                if r in reads:
                    if kind == "trans" and not istrans: req(p, 1)
                    if isdpp: req(p, 2)
                    if op.startswith("v_permlane"): req(p, 2)
                    if op.startswith(("v_readlane", "v_readfirstlane")): req(p, 1)
                if kind == "store" and r in dst: req(p, 2)
            for r in ssrc:
                if r in self.sw: req(self.sw[r], 4 if op.startswith(("v_readlane", "v_writelane")) else 2)
            if op.startswith("v_cndmask") and len(toks) == 4 and toks[3] == "vcc":
                for r in (106, 107):
                    if r in self.sw: req(self.sw[r], 2)
            if need > 0: self.nop(need)
            self.lines.append("    " + s)
            kind = "dot" if isdot else "trans" if istrans else "valu"
            for r in dst: self.vw[r] = (self.pos, kind, op)
            sd = self.regs(toks[0], "s")
            if toks[0] == "vcc": sd = [106, 107]
            for r in sd: self.sw[r] = self.pos
            self.pos += 1
            return
        if ismem:
            for t in toks:
                for r in self.regs(t, "s"):
                    if r in self.sw: req(self.sw[r], 5)
                for r in self.regs(t, "v"):
                    if r in self.vw and self.vw[r][1] == "dot": req(self.vw[r][0], 3)
                    if r in self.vw and self.vw[r][1] == "trans": req(self.vw[r][0], 1)
            if need > 0: self.nop(need)
            self.lines.append("    " + s)
            if "store" in op and ("x3" in op or "x4" in op):
                for t in toks:
                    rr = self.regs(t, "v")
                    if len(rr) >= 3:
                        for r in rr: self.vw[r] = (self.pos, "store", op)
            self.pos += 1
            return
        if op.startswith("s_") and op not in ("s_waitcnt", "s_barrier", "s_nop", "s_endpgm"):
            for t in toks:
                for r in self.regs(t, "s"):
                    if r in self.sw: req(self.sw[r], 2)
                if t == "vcc":
                    for r in (106, 107):
                        if r in self.sw: req(self.sw[r], 2)
            if op.startswith("s_cbranch_vcc"):
                for r in (106, 107):
                    if r in self.sw: req(self.sw[r], 5)
            if need > 0: self.nop(need)
        self.lines.append("    " + s)
        self.pos += 1


def gen(NSPLIT=4, W=8, R=2, D=3, pol="nt", order="hm", diag=False, lds=0, cc=1):
    NWG = NH * NSPLIT
    ROWS = C // NSPLIT
    STG_ROWS = W * R * 8
    NST = ROWS // STG_ROWS
    assert ROWS % STG_ROWS == 0
    STG_B = STG_ROWS * ROWB
    assert NST >= D
    LPS = 3 * R
    assert 2 * D * LPS + 10 <= 63 + 10
    pol = (" " + pol) if pol else ""
    e = Em()
    vTid, vOffA, vOffB, vT0, vT1, vM, vL, vMC, vAl = 0, 1, 2, 3, 4, 5, 6, 7, 8
    vLane = 9
    vStamp = 10
    vS = 11
    nS = 3 * R
    vPh = vS + nS
    vPl = vPh + R
    vQ = (vPl + R + 3) // 4 * 4
    vAcc = vQ + 12
    vK = vAcc + 24
    vV = vK + D * R * 12
    vEnd = vV + D * R * 12
    assert vEnd <= 512
    def kreg(d, g, n): return vK + (d * R + g) * 12 + n * 4
    def vreg(d, g, n): return vV + (d * R + g) * 12 + n * 4
    sK, sV = 24, 28
    sHead, sSplit, sWave, sOffK, sCnt, sC, sTmp, sPar = 36, 37, 38, 39, 40, 41, 42, 44
    sWs, sOut = 48, 52
    sT0 = 56

    def advance():
        if order == "ch":
            e(f"s_add_u32 s43, s43, 1")
            e(f"s_and_b32 s{sTmp}, s43, {cc-1}")
            e(f"s_cselect_b32 s{sTmp}, {STG_B}, {STG_B + (NSPLIT-1)*cc*STG_B}") if False else None
            e(f"s_mov_b32 s46, {STG_B}")
            e(f"s_cselect_b32 s{sTmp}, s46, {STG_B + (NSPLIT-1)*cc*STG_B}")
            e(f"s_add_u32 s{sOffK}, s{sOffK}, s{sTmp}")
        else:
            e(f"s_add_u32 s{sOffK}, s{sOffK}, {STG_B}")

    def loads(kind, d, soff):
        srd = sK if kind == "K" else sV
        for g in range(R):
            for n in range(3):
                r = kreg(d, g, n) if kind == "K" else vreg(d, g, n)
                off = (g % 2) * 3072 + n * 128
                voff = vOffA if g < 2 else vOffB
                e(f"buffer_load_dwordx4 v[{r}:{r+3}], v{voff}, s[{srd}:{srd+3}], s{soff} offen offset:{off}{pol}")

    e(f"s_cmp_ge_u32 s2, {NWG}")
    e(f"s_cbranch_scc1 L_end")
    e(f"s_load_dwordx16 s[4:19], s[0:1], 0")
    e(f"s_load_dwordx2 s[20:21], s[0:1], 64")
    if diag: e(f"s_memrealtime s[{sT0}:{sT0+1}]")
    e(f"v_lshrrev_b32 v{vT0}, 6, v0")
    e(f"v_and_b32 v{vLane}, 63, v0")
    e(f"v_readfirstlane_b32 s{sWave}, v{vT0}")
    e(f"v_lshrrev_b32 v{vT0}, 3, v{vLane}")
    e(f"v_and_b32 v{vT1}, 7, v{vLane}")
    e(f"v_mul_u32_u24 v{vOffA}, {ROWB}, v{vT0}")
    e(f"v_lshlrev_b32 v{vT1}, 4, v{vT1}")
    e(f"v_add_u32 v{vOffA}, v{vOffA}, v{vT1}")
    if order != "sm":
        e(f"s_lshr_b32 s{sHead}, s2, {int(math.log2(NSPLIT))}")
        e(f"s_and_b32 s{sSplit}, s2, {NSPLIT-1}")
    else:
        e(f"s_and_b32 s{sHead}, s2, {NH-1}")
        e(f"s_lshr_b32 s{sSplit}, s2, 6")
    e(f"s_mul_i32 s{sOffK}, s{sHead}, {HEADB}")
    e(f"s_mul_i32 s{sTmp}, s{sSplit}, {ROWS*ROWB}")
    e(f"s_add_u32 s{sOffK}, s{sOffK}, s{sTmp}")
    if order == "gs":
        e(f"s_mul_i32 s{sOffK}, s2, {STG_B}")
        STG_B = STG_B * NWG
    if order == "il":
        e(f"s_mul_i32 s{sOffK}, s{sHead}, {HEADB}")
        e(f"s_mul_i32 s{sTmp}, s{sSplit}, {STG_B}")
        e(f"s_add_u32 s{sOffK}, s{sOffK}, s{sTmp}")
        STG_B = STG_B * NSPLIT
    if order == "ch":
        e(f"s_mul_i32 s{sOffK}, s{sHead}, {HEADB}")
        e(f"s_mul_i32 s{sTmp}, s{sSplit}, {STG_B*cc}")
        e(f"s_add_u32 s{sOffK}, s{sOffK}, s{sTmp}")
        e(f"s_mov_b32 s43, 0")
    if order == "wb":
        e(f"s_mul_i32 s{sTmp}, s{sWave}, {ROWS*ROWB//W}")
        STG_B = R * 3072
    else:
        e(f"s_mul_i32 s{sTmp}, s{sWave}, {R*3072}")
    e(f"s_add_u32 s{sOffK}, s{sOffK}, s{sTmp}")
    e(f"s_mul_i32 s{sTmp}, s{sHead}, {ROWB}")
    e(f"v_add_u32 v{vT1}, s{sTmp}, v{vT1}")
    if R > 2:
        e(f"v_add_u32 v{vOffB}, 6144, v{vOffA}")
    e(f"s_mov_b32 s{sK+2}, {KVB}")
    e(f"s_mov_b32 s{sK+3}, 0x00020000")
    e(f"s_mov_b32 s{sV+2}, {KVB}")
    e(f"s_mov_b32 s{sV+3}, 0x00020000")
    e(f"s_mov_b32 s{sC}, 0x{f2u(SCALE_LOG2E):08x}")
    e(f"s_waitcnt lgkmcnt(0)")
    if diag: e(f"s_memrealtime s[{sT0+2}:{sT0+3}]")
    e(f"s_mov_b32 s{sK}, s6")
    e(f"s_mov_b32 s{sK+1}, s7")
    e(f"s_mov_b32 s{sV}, s8")
    e(f"s_mov_b32 s{sV+1}, s9")
    for n in range(3):
        e(f"global_load_dwordx4 v[{vQ+4*n}:{vQ+4*n+3}], v{vT1}, s[4:5] offset:{n*128}")
    e(f"s_or_b32 s{sTmp}, s{sSplit}, s{sWave}")
    e(f"s_cmp_lg_u32 s{sTmp}, 0")
    e(f"s_cbranch_scc1 L_notree0")
    for n in range(3):
        e(f"global_load_dwordx4 v[{vAcc+4*n}:{vAcc+4*n+3}], v{vT1}, s[10:11] offset:{n*128}")
    for n in range(3):
        e(f"global_load_dwordx4 v[{vAcc+12+4*n}:{vAcc+12+4*n+3}], v{vT1}, s[12:13] offset:{n*128}")
    e(f"s_lshr_b32 s{sTmp}, s{sHead}, 5")
    e(f"s_lshl_b32 s{sTmp}, s{sTmp}, 1")
    e(f"v_mov_b32 v{vMC}, s{sTmp}")
    e(f"global_load_ushort v{vAl}, v{vMC}, s[14:15]")
    e.label("L_notree0")
    for d in range(D):
        loads("K", d, sOffK)
        loads("V", d, sOffK)
        advance()
    e(f"s_mov_b32 s{sWs}, s20")
    e(f"s_mov_b32 s{sWs+1}, s21")
    e(f"s_mov_b32 s{sWs+2}, {NWG*1024 + (NWG*512 + NWG*W*256 if diag else 0)}")
    e(f"s_mov_b32 s{sWs+3}, 0x00020000")
    e(f"s_mov_b32 s{sOut}, s16")
    e(f"s_mov_b32 s{sOut+1}, s17")
    e(f"s_mov_b32 s{sOut+2}, {NH*ROWB}")
    e(f"s_mov_b32 s{sOut+3}, 0x00020000")
    e(f"s_mov_b32 s{sPar}, 0xaaaaaaaa")
    e(f"s_mov_b32 s{sPar+1}, 0xaaaaaaaa")
    e(f"s_or_b32 s{sTmp}, s{sSplit}, s{sWave}")
    e(f"s_cmp_lg_u32 s{sTmp}, 0")
    e(f"s_cbranch_scc1 L_notree1")
    e(f"s_waitcnt vmcnt({2*D*LPS})")
    for n in range(3):
        for j in range(4):
            src2 = "0" if j == 0 else f"v{vS+n}"
            e(f"v_dot2_f32_bf16 v{vS+n}, v{vAcc+4*n+j}, v{vQ+4*n+j}, {src2}")
    e(f"v_add_f32 v{vS}, v{vS}, v{vS+1}")
    e(f"v_add_f32 v{vS}, v{vS}, v{vS+2}")
    for dp in ("quad_perm:[1,0,3,2]", "quad_perm:[2,3,0,1]", "row_half_mirror"):
        e(f"v_add_f32_dpp v{vS}, v{vS}, v{vS} {dp} row_mask:0xf bank_mask:0xf")
    e(f"v_lshlrev_b32 v{vAl}, 16, v{vAl}")
    e(f"v_sub_f32 v{vAl}, 1.0, v{vAl}")
    e(f"v_mov_b32 v{vMC}, 0x{f2u(MASKRAW):08x}")
    e(f"v_fma_f32 v{vS}, v{vAl}, v{vMC}, v{vS}")
    e(f"v_cmp_gt_u32 vcc, 8, v{vLane}")
    e(f"v_mov_b32 v{vM}, 0x{f2u(-1e30):08x}")
    e(f"v_cndmask_b32 v{vM}, v{vM}, v{vS}, vcc")
    e(f"v_cndmask_b32 v{vL}, 0, 1.0, vcc")
    for k in range(12):
        src = vAcc + 12 + k
        e(f"v_cndmask_b32 v{vT0}, 0, v{src}, vcc")
        e(f"v_lshlrev_b32 v{vAcc+2*k}, 16, v{vT0}")
        e(f"v_and_b32 v{vAcc+2*k+1}, 0xffff0000, v{vT0}")
    e(f"s_branch L_init_done")
    e.label("L_notree1")
    e(f"v_mov_b32 v{vM}, 0x{f2u(-1e30):08x}")
    e(f"v_mov_b32 v{vL}, 0")
    for k in range(24):
        e(f"v_mov_b32 v{vAcc+k}, 0")
    e.label("L_init_done")
    if diag:
        e(f"s_mov_b32 m0, 0")
        e(f"v_mov_b32 v{vStamp}, 0")
        e(f"s_memrealtime s[{sT0+4}:{sT0+5}]")
        e(f"s_waitcnt lgkmcnt(0)")
        e(f"v_writelane_b32 v{vStamp}, s{sT0+2}, 61")
        e(f"v_writelane_b32 v{vStamp}, s{sT0+4}, 60")
        e(f"s_waitcnt vmcnt({2*D*LPS-1})")
        e(f"s_memrealtime s[{sT0+4}:{sT0+5}]")
        e(f"s_waitcnt lgkmcnt(0)")
        e(f"v_writelane_b32 v{vStamp}, s{sT0+4}, 62")
    e.nop(3)

    def stage(d, issue, n_after_k, n_after_v):
        e(f"s_waitcnt vmcnt({n_after_k})")
        for j in range(4):
            for g in range(R):
                for n in range(3):
                    a = vS + g * 3 + n
                    src2 = "0" if j == 0 else f"v{a}"
                    e(f"v_dot2_f32_bf16 v{a}, v{kreg(d,g,n)+j}, v{vQ+4*n+j}, {src2}")
        if issue: loads("K", d, sOffK)
        for g in range(R):
            e(f"v_add_f32 v{vS+3*g}, v{vS+3*g}, v{vS+3*g+1}")
        for g in range(R):
            e(f"v_add_f32 v{vS+3*g}, v{vS+3*g}, v{vS+3*g+2}")
        for dp in ("quad_perm:[1,0,3,2]", "quad_perm:[2,3,0,1]", "row_half_mirror"):
            for g in range(R):
                e(f"v_add_f32_dpp v{vS+3*g}, v{vS+3*g}, v{vS+3*g} {dp} row_mask:0xf bank_mask:0xf")
        e(f"v_mov_b32 v{vT0}, v{vM}")
        g = 0
        while g < R:
            if g + 1 < R:
                e(f"v_max3_f32 v{vM}, v{vM}, v{vS+3*g}, v{vS+3*g+3}"); g += 2
            else:
                e(f"v_max_f32 v{vM}, v{vM}, v{vS+3*g}"); g += 1
        e(f"v_mul_f32 v{vMC}, s{sC}, v{vM}")
        e(f"v_fma_f32 v{vAl}, v{vT0}, s{sC}, -v{vMC}")
        for g in range(R):
            e(f"v_fma_f32 v{vPh+g}, v{vS+3*g}, s{sC}, -v{vMC}")
        e(f"v_exp_f32 v{vAl}, v{vAl}")
        for g in range(R):
            e(f"v_exp_f32 v{vPh+g}, v{vPh+g}")
        e(f"v_mul_f32 v{vL}, v{vL}, v{vAl}")
        for g in range(R):
            e(f"v_cvt_pk_bf16_f32 v{vPh+g}, 0, v{vPh+g}")
        for k in range(24):
            e(f"v_mul_f32 v{vAcc+k}, v{vAcc+k}, v{vAl}")
        for g in range(R):
            e(f"v_lshrrev_b32 v{vPl+g}, 16, v{vPh+g}")
            e(f"v_add_f32 v{vL}, v{vL}, v{vPh+g}")
        e(f"s_waitcnt vmcnt({n_after_v})")
        for g in range(R):
            for n in range(3):
                for j in range(4):
                    e(f"v_dot2c_f32_bf16 v{vAcc+8*n+2*j}, v{vreg(d,g,n)+j}, v{vPl+g}")
                    e(f"v_dot2c_f32_bf16 v{vAcc+8*n+2*j+1}, v{vreg(d,g,n)+j}, v{vPh+g}")
        if issue:
            loads("V", d, sOffK)
            advance()
        if diag:
            e(f"s_memrealtime s[{sT0+4}:{sT0+5}]")
            e(f"s_waitcnt lgkmcnt(0)")
            e(f"v_writelane_b32 v{vStamp}, s{sT0+4}, m0")
            e(f"s_add_u32 m0, m0, 1"); e(f"s_min_u32 m0, m0, 59")

    main = NST - D
    iters, rem = divmod(main, D)
    NIF = (2 * D - 1) * LPS
    if iters > 0:
        if iters > 1:
            e(f"s_mov_b32 s{sCnt}, {iters}")
            e.raw(".p2align 6")
            e.label("L_loop")
        for d in range(D):
            stage(d, True, NIF, NIF)
        if iters > 1:
            e(f"s_sub_u32 s{sCnt}, s{sCnt}, 1")
            e(f"s_cmp_lg_u32 s{sCnt}, 0")
            e(f"s_cbranch_scc1 L_loop")
    for d in range(rem):
        stage(d, True, NIF, NIF)
    for i in range(D):
        d = (rem + i) % D
        left = D - 1 - i
        stage(d, False, (2 * left + 1) * LPS, 2 * left * LPS)

    if diag:
        e(f"s_memrealtime s[{sT0+2}:{sT0+3}]")
        e(f"s_waitcnt lgkmcnt(0)")
        for j in range(4):
            e(f"v_mov_b32 v{vK+j}, s{sT0+j}")
        e(f"s_lshl_b32 s{sTmp}, s2, 9")
        e(f"s_add_u32 s{sTmp}, s{sTmp}, {NWG*1024}")
        e(f"s_lshl_b32 s{sCnt}, s{sWave}, 4")
        e(f"s_add_u32 s{sTmp}, s{sTmp}, s{sCnt}")
        e(f"v_mov_b32 v{vT1}, 0")
        e(f"s_mov_b64 exec, 1")
        e(f"buffer_store_dwordx4 v[{vK}:{vK+3}], v{vT1}, s[{sWs}:{sWs+3}], s{sTmp} offen")
        e(f"s_mov_b64 exec, -1")
        e(f"s_mul_i32 s{sTmp}, s2, {W*256}")
        e(f"s_add_u32 s{sTmp}, s{sTmp}, {NWG*1024+NWG*512}")
        e(f"v_lshlrev_b32 v{vT1}, 2, v0")
        e(f"buffer_store_dword v{vStamp}, v{vT1}, s[{sWs}:{sWs+3}], s{sTmp} offen")
        e.nop(4)
    vMW = vS; vX = vS + 1
    e(f"v_mov_b32 v{vMW}, v{vM}")
    e(f"v_max_f32_dpp v{vMW}, v{vM}, v{vM} row_ror:8 row_mask:0xf bank_mask:0xf")
    e(f"v_mov_b32 v{vX}, v{vMW}")
    e(f"v_permlane16_swap_b32 v{vMW}, v{vX}")
    e(f"v_max_f32 v{vMW}, v{vMW}, v{vX}")
    e(f"v_mov_b32 v{vX}, v{vMW}")
    e(f"v_permlane32_swap_b32 v{vMW}, v{vX}")
    e(f"v_max_f32 v{vMW}, v{vMW}, v{vX}")
    e(f"v_sub_f32 v{vAl}, v{vM}, v{vMW}")
    e(f"v_mul_f32 v{vAl}, s{sC}, v{vAl}")
    e(f"v_exp_f32 v{vAl}, v{vAl}")
    e(f"v_mul_f32 v{vL}, v{vL}, v{vAl}")
    for k in range(24):
        e(f"v_mul_f32 v{vAcc+k}, v{vAcc+k}, v{vAl}")
    A = lambda n, ee: vAcc + 8 * n + ee
    e(f"v_add_f32_dpp v{vL}, v{vL}, v{vL} row_ror:8 row_mask:0xf bank_mask:0xf")
    for n in range(3):
        for ee in range(4):
            e(f"v_permlane32_swap_b32 v{A(n,ee)}, v{A(n,ee+4)}")
    e(f"v_mov_b32 v{vX}, v{vL}")
    for n in range(3):
        for ee in range(4):
            e(f"v_add_f32 v{A(n,ee)}, v{A(n,ee)}, v{A(n,ee+4)}")
    e(f"v_permlane16_swap_b32 v{vL}, v{vX}")
    for n in range(3):
        for ee in range(2):
            e(f"v_permlane16_swap_b32 v{A(n,ee)}, v{A(n,ee+2)}")
    e(f"v_add_f32 v{vL}, v{vL}, v{vX}")
    for n in range(3):
        for ee in range(2):
            e(f"v_add_f32 v{A(n,ee)}, v{A(n,ee)}, v{A(n,ee+2)}")
    e(f"v_mov_b32 v{vX}, v{vL}")
    vO = vK
    for n in range(3):
        e(f"v_add_f32_dpp v{vO+n}, v{A(n,0)}, v{A(n,0)} row_ror:8 row_mask:0xf bank_mask:0x3")
    e(f"v_permlane32_swap_b32 v{vL}, v{vX}")
    for n in range(3):
        e(f"v_add_f32_dpp v{vO+n}, v{A(n,1)}, v{A(n,1)} row_ror:8 row_mask:0xf bank_mask:0xc")
    e(f"v_add_f32 v{vL}, v{vL}, v{vX}")
    e(f"v_cndmask_b32 v{vO+3}, v{vL}, v{vMW}, s[{sPar}:{sPar+1}]")
    e(f"v_lshlrev_b32 v{vT0}, 4, v0")
    e(f"ds_write_b128 v{vT0}, v[{vO}:{vO+3}]")
    e(f"s_waitcnt lgkmcnt(0)")
    e(f"s_barrier")
    e(f"s_cmp_lg_u32 s{sWave}, 0")
    e(f"s_cbranch_scc1 L_end")
    if diag: e(f"s_memrealtime s[{sT0}:{sT0+1}]")

    def combine(n, base, out):
        e(f"v_mov_b32_dpp v{vMW}, v{base+3} quad_perm:[1,1,3,3] row_mask:0xf bank_mask:0xf")
        for i in range(1, n):
            e(f"v_max_f32_dpp v{vMW}, v{base+4*i+3}, v{vMW} quad_perm:[1,1,3,3] row_mask:0xf bank_mask:0xf")
        F = vAcc
        for i in range(n):
            e(f"v_sub_f32_dpp v{F+i}, v{base+4*i+3}, v{vMW} quad_perm:[1,1,3,3] row_mask:0xf bank_mask:0xf")
        for i in range(n):
            e(f"v_mul_f32 v{F+i}, s{sC}, v{F+i}")
        for i in range(n):
            e(f"v_exp_f32 v{F+i}, v{F+i}")
        for i in range(n):
            e(f"v_mov_b32_dpp v{base+4*i+3}, v{base+4*i+3} quad_perm:[0,0,2,2] row_mask:0xf bank_mask:0xf")
        for j in range(4):
            e(f"v_mul_f32 v{out+j}, v{F}, v{base+j}")
        for i in range(1, n):
            for j in range(4):
                e(f"v_fmac_f32 v{out+j}, v{F+i}, v{base+4*i+j}")

    vB = vK + 4
    need = vB + 4 * max(W, NSPLIT)
    vEnd = max(vEnd, need)
    assert max(W, NSPLIT) <= 24
    for w in range(W):
        e(f"ds_read_b128 v[{vB+4*w}:{vB+4*w+3}], v{vT0} offset:{w*1024}")
    e(f"s_waitcnt lgkmcnt(0)")
    combine(W, vB, vO)
    e(f"v_cndmask_b32 v{vO+3}, v{vO+3}, v{vMW}, s[{sPar}:{sPar+1}]")
    e(f"s_mul_i32 s{sTmp}, s{sHead}, {NSPLIT*1024}")
    e(f"s_lshl_b32 s{sCnt}, s{sSplit}, 10")
    e(f"s_add_u32 s{sCnt}, s{sCnt}, s{sTmp}")
    e(f"buffer_store_dwordx4 v[{vO}:{vO+3}], v{vT0}, s[{sWs}:{sWs+3}], s{sCnt} offen sc1")
    e(f"s_lshl_b32 s{sCnt}, s{sHead}, 2")
    e(f"v_mov_b32 v{vT1}, s{sCnt}")
    e(f"v_mov_b32 v{vX}, 1")
    e(f"s_mov_b64 exec, 1")
    e(f"s_waitcnt vmcnt(0)")
    if diag: e(f"s_memrealtime s[{sT0+2}:{sT0+3}]")
    e(f"global_atomic_add v{vX}, v{vT1}, v{vX}, s[18:19] sc0")
    e(f"s_waitcnt vmcnt(0)")
    e(f"s_mov_b64 exec, -1")
    e(f"v_readfirstlane_b32 s{sCnt}, v{vX}")
    e(f"s_cmp_lg_u32 s{sCnt}, {NSPLIT-1}")
    e(f"s_cbranch_scc1 L_fin")
    for i in range(NSPLIT):
        if i * 1024 < 4096:
            e(f"buffer_load_dwordx4 v[{vB+4*i}:{vB+4*i+3}], v{vT0}, s[{sWs}:{sWs+3}], s{sTmp} offen offset:{i*1024} sc1")
        else:
            if i % 4 == 0:
                e(f"s_add_u32 s{sTmp}, s{sTmp}, 4096")
            e(f"buffer_load_dwordx4 v[{vB+4*i}:{vB+4*i+3}], v{vT0}, s[{sWs}:{sWs+3}], s{sTmp} offen offset:{(i%4)*1024} sc1")
    e(f"v_and_b32 v{vT1}, 7, v{vLane}")
    e(f"v_lshlrev_b32 v{vT1}, 4, v{vT1}")
    e(f"v_lshrrev_b32 v{vX}, 3, v{vLane}")
    e(f"v_lshl_add_u32 v{vT1}, v{vX}, 1, v{vT1}")
    e(f"s_mul_i32 s{sTmp}, s{sHead}, {ROWB}")
    e(f"s_waitcnt vmcnt(0)")
    combine(NSPLIT, vB, vO)
    e(f"v_rcp_f32 v{vO+3}, v{vO+3}")
    for j in range(3):
        e(f"v_mul_f32 v{vO+j}, v{vO+j}, v{vO+3}")
    for j in range(3):
        e(f"v_cvt_pk_bf16_f32 v{vO+j}, v{vO+j}, v{vO+j}")
    for j in range(3):
        e(f"buffer_store_short v{vO+j}, v{vT1}, s[{sOut}:{sOut+3}], s{sTmp} offen offset:{j*128}")
    e.label("L_fin")
    if diag:
        e(f"s_waitcnt vmcnt(0)")
        e(f"s_memrealtime s[{sT0+4}:{sT0+5}]")
        e(f"s_getreg_b32 s{sT0+6}, hwreg(HW_REG_XCC_ID)")
        e(f"s_getreg_b32 s{sT0+7}, hwreg(HW_REG_HW_ID)")
        e(f"s_waitcnt lgkmcnt(0)")
        for j in range(8):
            e(f"v_mov_b32 v{vB+j}, s{sT0+j}")
        e(f"s_lshl_b32 s{sTmp}, s2, 9")
        e(f"s_add_u32 s{sTmp}, s{sTmp}, {NWG*1024+256}")
        e(f"v_mov_b32 v{vT1}, 0")
        e(f"s_mov_b64 exec, 1")
        e(f"buffer_store_dwordx4 v[{vB}:{vB+3}], v{vT1}, s[{sWs}:{sWs+3}], s{sTmp} offen")
        e(f"buffer_store_dwordx4 v[{vB+4}:{vB+7}], v{vT1}, s[{sWs}:{sWs+3}], s{sTmp} offen offset:16")
    e.label("L_end")
    e("s_endpgm")

    nv = (vEnd + 7) // 8 * 8
    acc_off = min(256, (vEnd + 3) // 4 * 4)
    assert vEnd <= 256
    out = HEADER
    out += f"; params: NSPLIT={NSPLIT} W={W} R={R} D={D} pol={pol.strip()} order={order} {'diag' if diag else ''}\n"
    out += f"; @launch grid=({NWG},1,1) block=({W*64},1,1) lds={max(lds, W*1024)}\n"
    out += f""".amdgcn_target "amdgcn-amd-amdhsa--gfx950"
.text
.globl {NAME}_kernel
.p2align 8
.type {NAME}_kernel,@function
{NAME}_kernel:
"""
    out += "\n".join(e.lines) + "\n"
    out += f""".section .rodata,"a"
.p2align 6
.amdhsa_kernel {NAME}_kernel
  .amdhsa_next_free_vgpr {vEnd}
  .amdhsa_next_free_sgpr 64
  .amdhsa_accum_offset {acc_off}
  .amdhsa_group_segment_fixed_size 0
  .amdhsa_kernarg_size 72
  .amdhsa_user_sgpr_count 2
  .amdhsa_user_sgpr_kernarg_segment_ptr 1
  .amdhsa_system_sgpr_workgroup_id_x 1
.end_amdhsa_kernel
"""
    return out


if __name__ == "__main__":
    ap = argparse.ArgumentParser()
    ap.add_argument("-o", default="cdna_kernels/" + NAME + ".s")
    ap.add_argument("--nsplit", type=int, default=4)
    ap.add_argument("--w", type=int, default=8)
    ap.add_argument("--r", type=int, default=2)
    ap.add_argument("--d", type=int, default=3)
    ap.add_argument("--pol", default="nt")
    ap.add_argument("--order", default="hm")
    ap.add_argument("--diag", action="store_true")
    ap.add_argument("--lds", type=int, default=0)
    ap.add_argument("--cc", type=int, default=1)
    a = ap.parse_args()
    open(a.o, "w").write(gen(a.nsplit, a.w, a.r, a.d, a.pol, a.order, a.diag, a.lds, a.cc))
```

```python
import math, argparse
from gen import Em, f2u, NAME, HEADER, NH, C, DH, ROWB, HEADB, KVB, SCALE_LOG2E, MASKRAW


def gen(NSPLIT=8, W=2, R=1, N=6, S=48, lay="blk", pol="nt", lds=0, diag=False, chk=8, grp=1):
    NWG = NH * NSPLIT
    NWV = NSPLIT * W
    UB = R * 3072
    NU = C // (8 * R)
    LS = 6 * R
    dyn = S * NWV < NU
    assert S * NWV <= NU
    U = N * LS // math.gcd(N, LS) // LS
    PRE = (N + LS - 1) // LS
    assert S >= PRE + 1 and N <= 60
    pol = (" " + pol) if pol else ""
    CTR_OFF = NWG * 1024
    DIAG_OFF = CTR_OFF + NH * 128
    WS_BYTES = DIAG_OFF + (NWG * 512 + NWG * W * 256 if diag else 0)
    e = Em()
    vOffA, vOffB, vT0, vT1, vM, vL, vMC, vAl, vLane, vStamp = 1, 2, 3, 4, 5, 6, 7, 8, 9, 10
    vS = 11
    vPh = vS + 3 * R
    vPl = vPh + R
    vQ = (vPl + R + 3) // 4 * 4
    vAcc = vQ + 12
    vRing = vAcc + 24
    vEnd = vRing + 4 * N
    slot = lambda i: vRing + 4 * (i % N)
    sK, sV = 24, 28
    sHead, sSplit, sWave, sOff, sCnt, sC, sTmp, sU = 36, 37, 38, 39, 40, 41, 42, 43
    sPar, sMask = 44, 46
    sWs, sOut = 48, 52
    sT0 = 56
    sHeadOff, sTick, sValid, sCtr, sDbg, sInc, sStat, sRdy = 64, 65, 66, 67, 68, 69, 70, 71
    STEP = W if lay == "blk" else NWV
    lab = [0]

    def load(i):
        j = i % LS
        kind, jj = ("K", j) if j < 3 * R else ("V", j - 3 * R)
        g, n = divmod(jj, 3)
        srd = sK if kind == "K" else sV
        r = slot(i)
        off = (g % 2) * 3072 + n * 128
        voff = vOffA if g < 2 else vOffB
        e(f"buffer_load_dwordx4 v[{r}:{r+3}], v{voff}, s[{srd}:{srd+3}], s{sOff} offen offset:{off}{pol}")

    def next_stage():
        k = lab[0]; lab[0] += 1
        e(f"s_cmp_eq_u32 s{sStat}, 0")
        e(f"s_cbranch_scc1 L_dyn{k}")
        e(f"s_sub_u32 s{sStat}, s{sStat}, 1")
        e(f"s_mul_i32 s{sOff}, s{sTick}, {UB}")
        e(f"s_add_u32 s{sOff}, s{sOff}, s{sHeadOff}")
        e(f"s_add_u32 s{sTick}, s{sTick}, {STEP}")
        if dyn:
            e(f"s_cmp_gt_u32 s{sStat}, {chk}")
            e(f"s_cbranch_scc1 L_go{k}")
            e(f"s_cmp_eq_u32 s{sStat}, {chk}")
            e(f"s_cbranch_scc0 L_nochk{k}")
            e(f"s_waitcnt lgkmcnt(0)")
            e(f"s_mov_b32 s{sRdy}, 0")
            e(f"s_atomic_add s{sRdy}, s[18:19], s{sDbg} glc")
            e.label(f"L_nochk{k}")
            e(f"s_cmp_eq_u32 s{sStat}, 0")
            e(f"s_cbranch_scc0 L_go{k}")
            e.label(f"L_poll{k}")
            e(f"s_waitcnt lgkmcnt(0)")
            e(f"s_lshr_b32 s{sRdy}, s{sRdy}, 16")
            e(f"s_cbranch_scc1 L_grab{k}")
            e(f"s_atomic_add s{sRdy}, s[18:19], s{sDbg} glc")
            e(f"s_branch L_poll{k}")
        else:
            e(f"s_cmp_eq_u32 s{sStat}, 0")
            e(f"s_cselect_b32 s{sTick}, {NU}, s{sTick}")
            e(f"s_branch L_go{k}")
        e.label(f"L_dyn{k}")
        if dyn: e(f"s_waitcnt lgkmcnt(0)")
        e(f"s_mul_i32 s{sOff}, s{sTick}, {UB}")
        e(f"s_add_u32 s{sOff}, s{sOff}, s{sHeadOff}")
        e(f"s_cmp_lt_u32 s{sTick}, {NU}")
        e(f"s_cselect_b32 s{sOff}, s{sOff}, {KVB}")
        e(f"s_cselect_b64 s[{sMask}:{sMask+1}], -1, 1")
        e(f"s_cselect_b32 s{sInc}, 0, 1")
        e(f"s_sub_u32 s{sValid}, s{sValid}, s{sInc}")
        if dyn:
            e(f"s_cmp_lg_u32 s{sInc}, 0")
            e(f"s_cbranch_scc1 L_go{k}")
            e.label(f"L_grab{k}")
            e(f"s_mov_b32 s{sTick}, 1")
            e(f"s_atomic_add s{sTick}, s[20:21], s{sCtr} glc")
        e.label(f"L_go{k}")

    e(f"s_cmp_ge_u32 s2, {NWG}")
    e(f"s_cbranch_scc1 L_end")
    e(f"s_load_dwordx16 s[4:19], s[0:1], 0")
    e(f"s_load_dwordx2 s[20:21], s[0:1], 64")
    if diag: e(f"s_memrealtime s[{sT0}:{sT0+1}]")
    e(f"v_lshrrev_b32 v{vT0}, 6, v0")
    e(f"v_and_b32 v{vLane}, 63, v0")
    e(f"v_readfirstlane_b32 s{sWave}, v{vT0}")
    e(f"v_lshrrev_b32 v{vT0}, 3, v{vLane}")
    e(f"v_and_b32 v{vT1}, 7, v{vLane}")
    e(f"v_mul_u32_u24 v{vOffA}, {ROWB}, v{vT0}")
    e(f"v_lshlrev_b32 v{vT1}, 4, v{vT1}")
    e(f"v_add_u32 v{vOffA}, v{vOffA}, v{vT1}")
    e(f"s_lshr_b32 s{sHead}, s2, {int(math.log2(NSPLIT))}")
    e(f"s_and_b32 s{sSplit}, s2, {NSPLIT-1}")
    e(f"s_mul_i32 s{sHeadOff}, s{sHead}, {HEADB}")
    e(f"s_mul_i32 s{sTick}, s{sSplit}, {W*S if lay == 'blk' else W}")
    e(f"s_add_u32 s{sTick}, s{sTick}, s{sWave}")
    e(f"s_mul_i32 s{sOff}, s{sTick}, {UB}")
    e(f"s_add_u32 s{sOff}, s{sOff}, s{sHeadOff}")
    e(f"s_mul_i32 s{sTmp}, s{sHead}, {ROWB}")
    e(f"v_add_u32 v{vT1}, s{sTmp}, v{vT1}")
    if R > 2:
        e(f"v_add_u32 v{vOffB}, 6144, v{vOffA}")
    e(f"s_mov_b32 s{sK+2}, {KVB}")
    e(f"s_mov_b32 s{sK+3}, 0x00020000")
    e(f"s_mov_b32 s{sV+2}, {KVB}")
    e(f"s_mov_b32 s{sV+3}, 0x00020000")
    e(f"s_mov_b32 s{sC}, 0x{f2u(SCALE_LOG2E):08x}")
    e(f"s_lshl_b32 s{sDbg}, s{sHead}, 2")
    e(f"s_waitcnt lgkmcnt(0)")
    if diag: e(f"s_memrealtime s[{sT0+2}:{sT0+3}]")
    e(f"s_mov_b32 s{sK}, s6")
    e(f"s_mov_b32 s{sK+1}, s7")
    e(f"s_mov_b32 s{sV}, s8")
    e(f"s_mov_b32 s{sV+1}, s9")
    for n in range(3):
        e(f"global_load_dwordx4 v[{vQ+4*n}:{vQ+4*n+3}], v{vT1}, s[4:5] offset:{n*128}")
    e(f"s_or_b32 s{sTmp}, s{sSplit}, s{sWave}")
    e(f"s_cmp_lg_u32 s{sTmp}, 0")
    e(f"s_cbranch_scc1 L_notree0")
    for n in range(3):
        e(f"global_load_dwordx4 v[{vAcc+4*n}:{vAcc+4*n+3}], v{vT1}, s[10:11] offset:{n*128}")
    for n in range(3):
        e(f"global_load_dwordx4 v[{vAcc+12+4*n}:{vAcc+12+4*n+3}], v{vT1}, s[12:13] offset:{n*128}")
    e(f"s_lshr_b32 s{sTmp}, s{sHead}, 5")
    e(f"s_lshl_b32 s{sTmp}, s{sTmp}, 1")
    e(f"v_mov_b32 v{vMC}, s{sTmp}")
    e(f"global_load_ushort v{vAl}, v{vMC}, s[14:15]")
    e.label("L_notree0")
    if dyn:
        e(f"s_cmp_lg_u32 s{sWave}, 0")
        e(f"s_cbranch_scc1 L_noticket")
        e(f"s_movk_i32 s{sRdy}, 0x100")
        e(f"s_atomic_add s{sRdy}, s[18:19], s{sDbg} glc")
        e.label("L_noticket")
    for i in range(N):
        if i and i % LS == 0:
            e(f"s_add_u32 s{sOff}, s{sOff}, {STEP*UB}")
        load(i)
    e(f"s_add_u32 s{sTick}, s{sTick}, {PRE*STEP}")
    e(f"s_mov_b32 s{sStat}, {S-PRE}")
    e(f"s_mov_b32 s{sValid}, {PRE}")
    e(f"s_mov_b64 s[{sMask}:{sMask+1}], -1")
    e(f"s_lshl_b32 s{sCtr}, s{sHead}, 7")
    e(f"s_add_u32 s{sCtr}, s{sCtr}, {CTR_OFF}")
    e(f"s_mov_b32 s{sWs}, s20")
    e(f"s_mov_b32 s{sWs+1}, s21")
    e(f"s_mov_b32 s{sWs+2}, {WS_BYTES}")
    e(f"s_mov_b32 s{sWs+3}, 0x00020000")
    e(f"s_mov_b32 s{sOut}, s16")
    e(f"s_mov_b32 s{sOut+1}, s17")
    e(f"s_mov_b32 s{sOut+2}, {NH*ROWB}")
    e(f"s_mov_b32 s{sOut+3}, 0x00020000")
    e(f"s_mov_b32 s{sPar}, 0xaaaaaaaa")
    e(f"s_mov_b32 s{sPar+1}, 0xaaaaaaaa")
    if dyn:
        assert S - PRE > chk
        e(f"s_cmp_lg_u32 s{sWave}, 0")
        e(f"s_cbranch_scc1 L_noinit")
        e(f"s_waitcnt lgkmcnt(0)")
        e(f"s_and_b32 s{sRdy}, s{sRdy}, 0xff00")
        e(f"s_cbranch_scc1 L_noinit")
        e(f"s_mov_b32 s{sRdy}, {S*NWV}")
        e(f"s_atomic_swap s{sRdy}, s[20:21], s{sCtr} glc")
        e(f"s_waitcnt lgkmcnt(0)")
        e(f"s_mov_b32 s{sRdy}, 0x10000")
        e(f"s_atomic_add s{sRdy}, s[18:19], s{sDbg} glc")
        e.label("L_noinit")
    e(f"s_or_b32 s{sTmp}, s{sSplit}, s{sWave}")
    e(f"s_cmp_lg_u32 s{sTmp}, 0")
    e(f"s_cbranch_scc1 L_notree1")
    e(f"s_waitcnt vmcnt({N})")
    for n in range(3):
        for j in range(4):
            src2 = "0" if j == 0 else f"v{vS+n}"
            e(f"v_dot2_f32_bf16 v{vS+n}, v{vAcc+4*n+j}, v{vQ+4*n+j}, {src2}")
    e(f"v_add_f32 v{vS}, v{vS}, v{vS+1}")
    e(f"v_add_f32 v{vS}, v{vS}, v{vS+2}")
    for dp in ("quad_perm:[1,0,3,2]", "quad_perm:[2,3,0,1]", "row_half_mirror"):
        e(f"v_add_f32_dpp v{vS}, v{vS}, v{vS} {dp} row_mask:0xf bank_mask:0xf")
    e(f"v_lshlrev_b32 v{vAl}, 16, v{vAl}")
    e(f"v_sub_f32 v{vAl}, 1.0, v{vAl}")
    e(f"v_mov_b32 v{vMC}, 0x{f2u(MASKRAW):08x}")
    e(f"v_fma_f32 v{vS}, v{vAl}, v{vMC}, v{vS}")
    e(f"v_cmp_gt_u32 vcc, 8, v{vLane}")
    e(f"v_mov_b32 v{vM}, 0x{f2u(-1e30):08x}")
    e(f"v_cndmask_b32 v{vM}, v{vM}, v{vS}, vcc")
    e(f"v_cndmask_b32 v{vL}, 0, 1.0, vcc")
    for k in range(12):
        e(f"v_cndmask_b32 v{vT0}, 0, v{vAcc+12+k}, vcc")
        e(f"v_lshlrev_b32 v{vAcc+2*k}, 16, v{vT0}")
        e(f"v_and_b32 v{vAcc+2*k+1}, 0xffff0000, v{vT0}")
    e(f"s_branch L_init_done")
    e.label("L_notree1")
    e(f"v_mov_b32 v{vM}, 0x{f2u(-1e30):08x}")
    e(f"v_mov_b32 v{vL}, 0")
    for k in range(24):
        e(f"v_mov_b32 v{vAcc+k}, 0")
    e.label("L_init_done")
    if diag:
        e(f"v_mov_b32 v{vStamp}, 0")
        e(f"s_memrealtime s[{sT0+4}:{sT0+5}]")
        e(f"s_waitcnt lgkmcnt(0)")
        e(f"v_writelane_b32 v{vStamp}, s{sT0+2}, 61")
        e(f"v_writelane_b32 v{vStamp}, s{sT0+4}, 60")
        e(f"s_waitcnt vmcnt({N-1})")
        e(f"s_memrealtime s[{sT0+4}:{sT0+5}]")
        e(f"s_waitcnt lgkmcnt(0)")
        e(f"v_writelane_b32 v{vStamp}, s{sT0+4}, 62")
        e(f"s_mov_b32 s{sT0+6}, 0")
    e.nop(3)

    def reissue(idx):
        masked = False
        for i in idx:
            if (i + N) % LS == 0:
                if masked: e(f"s_mov_b64 exec, -1"); masked = False
                next_stage()
            if not masked: e(f"s_mov_b64 exec, s[{sMask}:{sMask+1}]"); masked = True
            load(i + N)
        e(f"s_mov_b64 exec, -1")

    def stage(t):
        base = t * LS
        for c0 in range(0, 3 * R, grp):
            idx = list(range(c0, min(c0 + grp, 3 * R)))
            e(f"s_waitcnt vmcnt({N - len(idx)})")
            for j in range(4):
                for jj in idx:
                    g, n = divmod(jj, 3)
                    if grp >= 3:
                        a = vS + jj; first = j == 0
                    else:
                        a = vS + g * 3 + (j % 2); first = (n == 0 and j < 2)
                    src2 = "0" if first else f"v{a}"
                    e(f"v_dot2_f32_bf16 v{a}, v{slot(base+jj)+j}, v{vQ+4*n+j}, {src2}")
            reissue([base + jj for jj in idx])
        for g in range(R):
            e(f"v_add_f32 v{vS+3*g}, v{vS+3*g}, v{vS+3*g+1}")
        if grp >= 3:
            for g in range(R):
                e(f"v_add_f32 v{vS+3*g}, v{vS+3*g}, v{vS+3*g+2}")
        for dp in ("quad_perm:[1,0,3,2]", "quad_perm:[2,3,0,1]", "row_half_mirror"):
            for g in range(R):
                e(f"v_add_f32_dpp v{vS+3*g}, v{vS+3*g}, v{vS+3*g} {dp} row_mask:0xf bank_mask:0xf")
        e(f"v_mov_b32 v{vT0}, v{vM}")
        g = 0
        while g < R:
            if g + 1 < R:
                e(f"v_max3_f32 v{vM}, v{vM}, v{vS+3*g}, v{vS+3*g+3}"); g += 2
            else:
                e(f"v_max_f32 v{vM}, v{vM}, v{vS+3*g}"); g += 1
        e(f"v_mul_f32 v{vMC}, s{sC}, v{vM}")
        e(f"v_fma_f32 v{vAl}, v{vT0}, s{sC}, -v{vMC}")
        for g in range(R):
            e(f"v_fma_f32 v{vPh+g}, v{vS+3*g}, s{sC}, -v{vMC}")
        e(f"v_exp_f32 v{vAl}, v{vAl}")
        for g in range(R):
            e(f"v_exp_f32 v{vPh+g}, v{vPh+g}")
        e(f"v_mul_f32 v{vL}, v{vL}, v{vAl}")
        for g in range(R):
            e(f"v_cvt_pk_bf16_f32 v{vPh+g}, 0, v{vPh+g}")
        for k in range(24):
            e(f"v_mul_f32 v{vAcc+k}, v{vAcc+k}, v{vAl}")
        for g in range(R):
            e(f"v_lshrrev_b32 v{vPl+g}, 16, v{vPh+g}")
            e(f"v_add_f32 v{vL}, v{vL}, v{vPh+g}")
        for c0 in range(0, 3 * R, grp):
            idx = list(range(c0, min(c0 + grp, 3 * R)))
            e(f"s_waitcnt vmcnt({N - len(idx)})")
            for jj in idx:
                g, n = divmod(jj, 3)
                r = slot(base + 3 * R + jj)
                for j in range(4):
                    e(f"v_dot2c_f32_bf16 v{vAcc+8*n+2*j}, v{r+j}, v{vPl+g}")
                    e(f"v_dot2c_f32_bf16 v{vAcc+8*n+2*j+1}, v{r+j}, v{vPh+g}")
            reissue([base + 3 * R + jj for jj in idx])
        if diag:
            e(f"s_add_u32 s{sT0+6}, s{sT0+6}, 1")
        e(f"s_cmp_eq_u32 s{sValid}, 0")
        e(f"s_cbranch_scc1 L_done")

    e.raw(".p2align 6")
    e.label("L_loop")
    for t in range(U):
        stage(t)
    e(f"s_branch L_loop")
    e.label("L_done")
    e(f"s_waitcnt vmcnt(0)")
    e.nop(3)

    vK = vRing
    if diag:
        e(f"v_writelane_b32 v{vStamp}, s{sT0+6}, 59")
        e(f"s_memrealtime s[{sT0+2}:{sT0+3}]")
        e(f"s_waitcnt lgkmcnt(0)")
        for j in range(4):
            e(f"v_mov_b32 v{vK+j}, s{sT0+j}")
        e(f"s_lshl_b32 s{sTmp}, s2, 9")
        e(f"s_add_u32 s{sTmp}, s{sTmp}, {DIAG_OFF}")
        e(f"s_lshl_b32 s{sCnt}, s{sWave}, 4")
        e(f"s_add_u32 s{sTmp}, s{sTmp}, s{sCnt}")
        e(f"v_mov_b32 v{vT1}, 0")
        e(f"s_mov_b64 exec, 1")
        e(f"buffer_store_dwordx4 v[{vK}:{vK+3}], v{vT1}, s[{sWs}:{sWs+3}], s{sTmp} offen")
        e(f"s_mov_b64 exec, -1")
        e(f"s_mul_i32 s{sTmp}, s2, {W*256}")
        e(f"s_add_u32 s{sTmp}, s{sTmp}, {DIAG_OFF+NWG*512}")
        e(f"v_lshlrev_b32 v{vT1}, 2, v0")
        e(f"buffer_store_dword v{vStamp}, v{vT1}, s[{sWs}:{sWs+3}], s{sTmp} offen")
        e.nop(4)
    vMW = vS; vX = vS + 1
    e(f"v_mov_b32 v{vMW}, v{vM}")
    e(f"v_max_f32_dpp v{vMW}, v{vM}, v{vM} row_ror:8 row_mask:0xf bank_mask:0xf")
    e(f"v_mov_b32 v{vX}, v{vMW}")
    e(f"v_permlane16_swap_b32 v{vMW}, v{vX}")
    e(f"v_max_f32 v{vMW}, v{vMW}, v{vX}")
    e(f"v_mov_b32 v{vX}, v{vMW}")
    e(f"v_permlane32_swap_b32 v{vMW}, v{vX}")
    e(f"v_max_f32 v{vMW}, v{vMW}, v{vX}")
    e(f"v_sub_f32 v{vAl}, v{vM}, v{vMW}")
    e(f"v_mul_f32 v{vAl}, s{sC}, v{vAl}")
    e(f"v_exp_f32 v{vAl}, v{vAl}")
    e(f"v_mul_f32 v{vL}, v{vL}, v{vAl}")
    for k in range(24):
        e(f"v_mul_f32 v{vAcc+k}, v{vAcc+k}, v{vAl}")
    A = lambda n, ee: vAcc + 8 * n + ee
    e(f"v_add_f32_dpp v{vL}, v{vL}, v{vL} row_ror:8 row_mask:0xf bank_mask:0xf")
    for n in range(3):
        for ee in range(4):
            e(f"v_permlane32_swap_b32 v{A(n,ee)}, v{A(n,ee+4)}")
    e(f"v_mov_b32 v{vX}, v{vL}")
    for n in range(3):
        for ee in range(4):
            e(f"v_add_f32 v{A(n,ee)}, v{A(n,ee)}, v{A(n,ee+4)}")
    e(f"v_permlane16_swap_b32 v{vL}, v{vX}")
    for n in range(3):
        for ee in range(2):
            e(f"v_permlane16_swap_b32 v{A(n,ee)}, v{A(n,ee+2)}")
    e(f"v_add_f32 v{vL}, v{vL}, v{vX}")
    for n in range(3):
        for ee in range(2):
            e(f"v_add_f32 v{A(n,ee)}, v{A(n,ee)}, v{A(n,ee+2)}")
    e(f"v_mov_b32 v{vX}, v{vL}")
    vO = vK
    for n in range(3):
        e(f"v_add_f32_dpp v{vO+n}, v{A(n,0)}, v{A(n,0)} row_ror:8 row_mask:0xf bank_mask:0x3")
    e(f"v_permlane32_swap_b32 v{vL}, v{vX}")
    for n in range(3):
        e(f"v_add_f32_dpp v{vO+n}, v{A(n,1)}, v{A(n,1)} row_ror:8 row_mask:0xf bank_mask:0xc")
    e(f"v_add_f32 v{vL}, v{vL}, v{vX}")
    e(f"v_cndmask_b32 v{vO+3}, v{vL}, v{vMW}, s[{sPar}:{sPar+1}]")
    e(f"v_lshlrev_b32 v{vT0}, 4, v0")
    if W > 1:
        e(f"ds_write_b128 v{vT0}, v[{vO}:{vO+3}]")
        e(f"s_waitcnt lgkmcnt(0)")
        e(f"s_barrier")
        e(f"s_cmp_lg_u32 s{sWave}, 0")
        e(f"s_cbranch_scc1 L_end")
    if diag: e(f"s_memrealtime s[{sT0}:{sT0+1}]")

    def combine(n, base, out):
        F = vAcc
        X = lambda i: base + 4 * i + 3
        e(f"v_max_f32 v{vMW}, v{X(0)}, v{X(1)}")
        i = 2
        while i < n:
            if i + 1 < n:
                e(f"v_max3_f32 v{vMW}, v{vMW}, v{X(i)}, v{X(i+1)}"); i += 2
            else:
                e(f"v_max_f32 v{vMW}, v{vMW}, v{X(i)}"); i += 1
        for i in range(n):
            e(f"v_sub_f32 v{F+i}, v{X(i)}, v{vMW}")
        for i in range(n):
            e(f"v_mul_f32 v{F+i}, s{sC}, v{F+i}")
        for i in range(n):
            e(f"v_exp_f32 v{F+i}, v{F+i}")
        for i in range(n):
            e(f"v_mov_b32_dpp v{F+i}, v{F+i} quad_perm:[1,1,3,3] row_mask:0xf bank_mask:0xf")
        for j in range(4):
            e(f"v_mul_f32 v{out+j}, v{F}, v{base+j}")
        for i in range(1, n):
            for j in range(4):
                e(f"v_fmac_f32 v{out+j}, v{F+i}, v{base+4*i+j}")

    vB = vK + 4
    vEnd = max(vEnd, vB + 4 * max(W, NSPLIT), vB + 8)
    assert max(W, NSPLIT) <= 24
    if W > 1:
        for w in range(W):
            e(f"ds_read_b128 v[{vB+4*w}:{vB+4*w+3}], v{vT0} offset:{w*1024}")
        e(f"s_waitcnt lgkmcnt(0)")
        combine(W, vB, vO)
        e(f"v_cndmask_b32 v{vO+3}, v{vO+3}, v{vMW}, s[{sPar}:{sPar+1}]")
    e(f"s_mul_i32 s{sTmp}, s{sHead}, {NSPLIT*1024}")
    e(f"s_lshl_b32 s{sCnt}, s{sSplit}, 10")
    e(f"s_add_u32 s{sCnt}, s{sCnt}, s{sTmp}")
    e(f"buffer_store_dwordx4 v[{vO}:{vO+3}], v{vT0}, s[{sWs}:{sWs+3}], s{sCnt} offen sc1")
    e(f"s_mov_b32 s{sTick}, 1")
    e(f"s_waitcnt vmcnt(0) lgkmcnt(0)")
    if diag: e(f"s_memrealtime s[{sT0+2}:{sT0+3}]")
    e(f"s_atomic_add s{sTick}, s[18:19], s{sDbg} glc")
    e(f"s_waitcnt lgkmcnt(0)")
    e(f"s_and_b32 s{sTick}, s{sTick}, 0xff")
    e(f"s_cmp_lg_u32 s{sTick}, {NSPLIT-1}")
    e(f"s_cbranch_scc1 L_fin")
    for i in range(NSPLIT):
        if i and i % 4 == 0:
            e(f"s_add_u32 s{sTmp}, s{sTmp}, 4096")
        e(f"buffer_load_dwordx4 v[{vB+4*i}:{vB+4*i+3}], v{vT0}, s[{sWs}:{sWs+3}], s{sTmp} offen offset:{(i%4)*1024} sc1")
    e(f"v_and_b32 v{vT1}, 7, v{vLane}")
    e(f"v_lshlrev_b32 v{vT1}, 4, v{vT1}")
    e(f"v_lshrrev_b32 v{vX}, 3, v{vLane}")
    e(f"v_lshl_add_u32 v{vT1}, v{vX}, 1, v{vT1}")
    e(f"s_mul_i32 s{sTmp}, s{sHead}, {ROWB}")
    e(f"s_waitcnt vmcnt(0)")
    combine(NSPLIT, vB, vO)
    e(f"v_rcp_f32 v{vO+3}, v{vO+3}")
    e(f"v_mov_b32_dpp v{vO+3}, v{vO+3} quad_perm:[0,0,2,2] row_mask:0xf bank_mask:0xf")
    for j in range(3):
        e(f"v_mul_f32 v{vO+j}, v{vO+j}, v{vO+3}")
    for j in range(3):
        e(f"v_cvt_pk_bf16_f32 v{vO+j}, v{vO+j}, v{vO+j}")
    for j in range(3):
        e(f"buffer_store_short v{vO+j}, v{vT1}, s[{sOut}:{sOut+3}], s{sTmp} offen offset:{j*128}")
    e.label("L_fin")
    if diag:
        e(f"s_waitcnt vmcnt(0)")
        e(f"s_memrealtime s[{sT0+4}:{sT0+5}]")
        e(f"s_getreg_b32 s{sT0+6}, hwreg(HW_REG_XCC_ID)")
        e(f"s_getreg_b32 s{sT0+7}, hwreg(HW_REG_HW_ID)")
        e(f"s_waitcnt lgkmcnt(0)")
        for j in range(8):
            e(f"v_mov_b32 v{vB+j}, s{sT0+j}")
        e(f"s_lshl_b32 s{sTmp}, s2, 9")
        e(f"s_add_u32 s{sTmp}, s{sTmp}, {DIAG_OFF+256}")
        e(f"v_mov_b32 v{vT1}, 0")
        e(f"s_mov_b64 exec, 1")
        e(f"buffer_store_dwordx4 v[{vB}:{vB+3}], v{vT1}, s[{sWs}:{sWs+3}], s{sTmp} offen")
        e(f"buffer_store_dwordx4 v[{vB+4}:{vB+7}], v{vT1}, s[{sWs}:{sWs+3}], s{sTmp} offen offset:16")
    e.label("L_end")
    e("s_endpgm")

    acc_off = (vEnd + 3) // 4 * 4
    assert vEnd <= 256
    out = HEADER
    out += f"; params: v3 NSPLIT={NSPLIT} W={W} R={R} N={N} S={S} lay={lay} grp={grp} pol={pol.strip()} {'diag' if diag else ''} off={DIAG_OFF}\n"
    out += f"; @launch grid=({NWG},1,1) block=({W*64},1,1) lds={max(lds, W*1024)}\n"
    out += f""".amdgcn_target "amdgcn-amd-amdhsa--gfx950"
.text
.globl {NAME}_kernel
.p2align 8
.type {NAME}_kernel,@function
{NAME}_kernel:
"""
    out += "\n".join(e.lines) + "\n"
    out += f""".section .rodata,"a"
.p2align 6
.amdhsa_kernel {NAME}_kernel
  .amdhsa_next_free_vgpr {vEnd}
  .amdhsa_next_free_sgpr 72
  .amdhsa_accum_offset {acc_off}
  .amdhsa_group_segment_fixed_size 0
  .amdhsa_kernarg_size 72
  .amdhsa_user_sgpr_count 2
  .amdhsa_user_sgpr_kernarg_segment_ptr 1
  .amdhsa_system_sgpr_workgroup_id_x 1
.end_amdhsa_kernel
"""
    return out


if __name__ == "__main__":
    ap = argparse.ArgumentParser()
    ap.add_argument("-o", default="cdna_kernels/" + NAME + ".s")
    ap.add_argument("--nsplit", type=int, default=8)
    ap.add_argument("--w", type=int, default=2)
    ap.add_argument("--r", type=int, default=1)
    ap.add_argument("--n", type=int, default=6)
    ap.add_argument("--s", type=int, default=48)
    ap.add_argument("--lay", default="blk")
    ap.add_argument("--lds", type=int, default=0)
    ap.add_argument("--chk", type=int, default=8)
    ap.add_argument("--grp", type=int, default=1)
    ap.add_argument("--pol", default="nt")
    ap.add_argument("--diag", action="store_true")
    a = ap.parse_args()
    open(a.o, "w").write(gen(a.nsplit, a.w, a.r, a.n, a.s, a.lay, a.pol, a.lds, a.diag, a.chk, a.grp))
```

```python
import math, argparse
from gen import Em, f2u, NAME, HEADER, NH, C, DH, ROWB, HEADB, KVB, SCALE_LOG2E, MASKRAW


def gen(NSPLIT=8, W=2, R=1, N=6, S=48, lay="blk", pol="nt", lds=0, diag=False, chk=8, grp=1, HPW=2, P=2, flat=0, rot=0):
    NVG = NH * NSPLIT
    NWG = NVG // HPW
    WT = W * HPW
    NWV = NSPLIT * W
    UB = R * 3072
    NU = C // (8 * R)
    LS = 6 * R
    dyn = S * NWV < NU
    assert S * NWV <= NU
    U = N * LS // math.gcd(N, LS) // LS
    PRE = (N + LS - 1) // LS
    assert S >= PRE + 1 and N <= 60
    pol = (" " + pol) if pol else ""
    CTR_OFF = NVG * 1024
    DIAG_OFF = CTR_OFF + NH * 256
    WS_BYTES = DIAG_OFF + (NVG * 512 + NVG * W * 256 if diag else 0)
    e = Em()
    vOffA, vOffB, vT0, vT1, vM, vL, vMC, vAl, vLane, vStamp = 1, 2, 3, 4, 5, 6, 7, 8, 9, 10
    vS = 11
    vPh = vS + 3 * R
    vPl = vPh + R
    vQ = (vPl + R + 3) // 4 * 4
    vAcc = vQ + 12
    vRing = vAcc + 24
    vEnd = vRing + 4 * N
    slot = lambda i: vRing + 4 * (i % N)
    sK, sV = 24, 28
    sHead, sSplit, sWave, sOff, sCnt, sC, sTmp, sU = 36, 37, 38, 39, 40, 41, 42, 43
    sPar, sMask = 44, 46
    sWs, sOut = 48, 52
    sT0 = 56
    sHeadOff, sTick, sValid, sCtr, sDbg, sInc, sStat, sRdy = 64, 65, 66, 67, 68, 69, 70, 71
    sTk2, sVG, sArr, sRot = 72, 73, 74, 75
    STEP = W if lay == "blk" else NWV
    lab = [0]

    def load(i):
        j = i % LS
        kind, jj = ("K", j) if j < 3 * R else ("V", j - 3 * R)
        g, n = divmod(jj, 3)
        srd = sK if kind == "K" else sV
        r = slot(i)
        off = (g % 2) * 3072 + n * (1024 if flat else 128)
        voff = vOffA if g < 2 else vOffB
        e(f"buffer_load_dwordx4 v[{r}:{r+3}], v{voff}, s[{srd}:{srd+3}], s{sOff} offen offset:{off}{pol}")

    def umul(src):
        if rot:
            e(f"s_add_u32 s{sOff}, s{src}, s{sRot}")
            e(f"s_and_b32 s{sOff}, s{sOff}, {NU-1}")
            e(f"s_mul_i32 s{sOff}, s{sOff}, {UB}")
        else:
            e(f"s_mul_i32 s{sOff}, s{src}, {UB}")

    def next_stage():
        k = lab[0]; lab[0] += 1
        e(f"s_cmp_eq_u32 s{sStat}, 0")
        e(f"s_cbranch_scc1 L_dyn{k}")
        e(f"s_sub_u32 s{sStat}, s{sStat}, 1")
        umul(sTick)
        e(f"s_add_u32 s{sOff}, s{sOff}, s{sHeadOff}")
        e(f"s_add_u32 s{sTick}, s{sTick}, {STEP}")
        if dyn:
            e(f"s_cmp_gt_u32 s{sStat}, {chk}")
            e(f"s_cbranch_scc1 L_go{k}")
            e(f"s_cmp_eq_u32 s{sStat}, {chk}")
            e(f"s_cbranch_scc0 L_nochk{k}")
            e(f"s_waitcnt lgkmcnt(0)")
            e(f"s_load_dword s{sRdy}, s[18:19], s{sDbg}")
            e.label(f"L_nochk{k}")
            e(f"s_cmp_eq_u32 s{sStat}, 0")
            e(f"s_cbranch_scc0 L_go{k}")
            e.label(f"L_poll{k}")
            e(f"s_waitcnt lgkmcnt(0)")
            e(f"s_lshr_b32 s{sRdy}, s{sRdy}, 16")
            e(f"s_cbranch_scc1 L_first{k}")
            e(f"s_sleep 8")
            e(f"s_atomic_add s{sRdy}, s[18:19], s{sDbg} glc")
            e(f"s_branch L_poll{k}")
            e.label(f"L_first{k}")
            e(f"s_mov_b32 s{sTick}, 1")
            e(f"s_atomic_add s{sTick}, s[20:21], s{sCtr} glc")
            if P == 2:
                e(f"s_mov_b32 s{sTk2}, 1")
                e(f"s_atomic_add s{sTk2}, s[20:21], s{sCtr} glc")
            e(f"s_branch L_go{k}")
        else:
            e(f"s_cmp_eq_u32 s{sStat}, 0")
            e(f"s_cselect_b32 s{sTick}, {NU}, s{sTick}")
            e(f"s_mov_b32 s{sTk2}, {NU}")
            e(f"s_branch L_go{k}")
        e.label(f"L_dyn{k}")
        if dyn:
            e(f"s_waitcnt lgkmcnt({P-1})")
            for ti, (T, nxt) in enumerate(((sTick, f"L_useB{k}"), (sTk2, None))[:P]):
                if P == 2 and ti == 0:
                    e(f"s_cmp_lg_u32 s{T}, 1")
                    e(f"s_cbranch_scc0 {nxt}")
                if ti == 1: e.label(f"L_useB{k}")
                e(f"s_cmp_lt_u32 s{T}, {NU}")
                e(f"s_cbranch_scc0 L_endg{k}")
                umul(T)
                e(f"s_mov_b32 s{T}, 1")
                e(f"s_atomic_add s{T}, s[20:21], s{sCtr} glc")
                e(f"s_add_u32 s{sOff}, s{sOff}, s{sHeadOff}")
                e(f"s_branch L_go{k}")
            e.label(f"L_endg{k}")
            e(f"s_waitcnt lgkmcnt(0)")
        if P == 2:
            e(f"s_min_u32 s{sU}, s{sTick}, s{sTk2}")
            e(f"s_max_u32 s{sTick}, s{sTick}, s{sTk2}")
            e(f"s_mov_b32 s{sTk2}, s{sTick}")
        else:
            e(f"s_mov_b32 s{sU}, s{sTick}")
        umul(sU)
        e(f"s_add_u32 s{sOff}, s{sOff}, s{sHeadOff}")
        e(f"s_cmp_lt_u32 s{sU}, {NU}")
        e(f"s_cselect_b32 s{sOff}, s{sOff}, {KVB}")
        e(f"s_cselect_b64 s[{sMask}:{sMask+1}], -1, 1")
        e(f"s_cselect_b32 s{sInc}, 0, 1")
        e(f"s_sub_u32 s{sValid}, s{sValid}, s{sInc}")
        e.label(f"L_go{k}")

    e(f"s_cmp_ge_u32 s2, {NWG}")
    e(f"s_cbranch_scc1 L_end")
    e(f"s_load_dwordx16 s[4:19], s[0:1], 0")
    e(f"s_load_dwordx2 s[20:21], s[0:1], 64")
    if diag: e(f"s_memrealtime s[{sT0}:{sT0+1}]")
    e(f"v_lshrrev_b32 v{vT0}, 6, v0")
    e(f"v_and_b32 v{vLane}, 63, v0")
    e(f"v_readfirstlane_b32 s{sWave}, v{vT0}")
    e(f"v_lshrrev_b32 v{vT0}, 3, v{vLane}")
    e(f"v_and_b32 v{vT1}, 7, v{vLane}")
    e(f"v_mul_u32_u24 v{vOffA}, {ROWB}, v{vT0}")
    e(f"v_lshlrev_b32 v{vT1}, 4, v{vT1}")
    e(f"v_add_u32 v{vOffA}, v{vOffA}, v{vT1}")
    if flat: e(f"v_lshlrev_b32 v{vOffA}, 4, v{vLane}")
    e(f"s_lshr_b32 s{sHead}, s2, {int(math.log2(NSPLIT))}")
    e(f"s_and_b32 s{sSplit}, s2, {NSPLIT-1}")
    if HPW > 1:
        e(f"s_lshl_b32 s{sHead}, s{sHead}, {int(math.log2(HPW))}")
        e(f"s_lshr_b32 s{sTmp}, s{sWave}, {int(math.log2(W))}")
        e(f"s_add_u32 s{sHead}, s{sHead}, s{sTmp}")
        e(f"s_and_b32 s{sWave}, s{sWave}, {W-1}")
    e(f"s_lshl_b32 s{sVG}, s{sHead}, {int(math.log2(NSPLIT))}")
    e(f"s_add_u32 s{sVG}, s{sVG}, s{sSplit}")
    e(f"s_mul_i32 s{sHeadOff}, s{sHead}, {HEADB}")
    if rot: e(f"s_mul_i32 s{sRot}, s{sHead}, {rot}")
    e(f"s_mul_i32 s{sTick}, s{sSplit}, {W*S if lay == 'blk' else W}")
    e(f"s_add_u32 s{sTick}, s{sTick}, s{sWave}")
    umul(sTick)
    e(f"s_add_u32 s{sOff}, s{sOff}, s{sHeadOff}")
    e(f"s_mul_i32 s{sTmp}, s{sHead}, {ROWB}")
    e(f"v_add_u32 v{vT1}, s{sTmp}, v{vT1}")
    if R > 2:
        e(f"v_add_u32 v{vOffB}, 6144, v{vOffA}")
    e(f"s_mov_b32 s{sK+2}, {KVB}")
    e(f"s_mov_b32 s{sK+3}, 0x00020000")
    e(f"s_mov_b32 s{sV+2}, {KVB}")
    e(f"s_mov_b32 s{sV+3}, 0x00020000")
    e(f"s_mov_b32 s{sC}, 0x{f2u(SCALE_LOG2E):08x}")
    e(f"s_lshl_b32 s{sDbg}, s{sHead}, 2")
    e(f"s_waitcnt lgkmcnt(0)")
    if diag: e(f"s_memrealtime s[{sT0+2}:{sT0+3}]")
    e(f"s_mov_b32 s{sK}, s6")
    e(f"s_mov_b32 s{sK+1}, s7")
    e(f"s_mov_b32 s{sV}, s8")
    e(f"s_mov_b32 s{sV+1}, s9")
    for n in range(3):
        e(f"global_load_dwordx4 v[{vQ+4*n}:{vQ+4*n+3}], v{vT1}, s[4:5] offset:{n*128}")
    e(f"s_or_b32 s{sTmp}, s{sSplit}, s{sWave}")
    e(f"s_cmp_lg_u32 s{sTmp}, 0")
    e(f"s_cbranch_scc1 L_notree0")
    for n in range(3):
        e(f"global_load_dwordx4 v[{vAcc+4*n}:{vAcc+4*n+3}], v{vT1}, s[10:11] offset:{n*128}")
    for n in range(3):
        e(f"global_load_dwordx4 v[{vAcc+12+4*n}:{vAcc+12+4*n+3}], v{vT1}, s[12:13] offset:{n*128}")
    e(f"s_lshr_b32 s{sTmp}, s{sHead}, 5")
    e(f"s_lshl_b32 s{sTmp}, s{sTmp}, 1")
    e(f"v_mov_b32 v{vMC}, s{sTmp}")
    e(f"global_load_ushort v{vAl}, v{vMC}, s[14:15]")
    e.label("L_notree0")
    for i in range(N):
        if i and i % LS == 0:
            e(f"s_add_u32 s{sTick}, s{sTick}, {STEP}")
            umul(sTick)
            e(f"s_add_u32 s{sOff}, s{sOff}, s{sHeadOff}")
        load(i)
    e(f"s_add_u32 s{sTick}, s{sTick}, {STEP}")
    e(f"s_mov_b32 s{sStat}, {S-PRE}")
    e(f"s_mov_b32 s{sValid}, {PRE}")
    e(f"s_mov_b64 s[{sMask}:{sMask+1}], -1")
    e(f"s_lshl_b32 s{sCtr}, s{sHead}, 8")
    e(f"s_add_u32 s{sCtr}, s{sCtr}, {CTR_OFF}")
    e(f"s_add_u32 s{sArr}, s{sCtr}, 128")
    e(f"s_mov_b32 s{sWs}, s20")
    e(f"s_mov_b32 s{sWs+1}, s21")
    e(f"s_mov_b32 s{sWs+2}, {WS_BYTES}")
    e(f"s_mov_b32 s{sWs+3}, 0x00020000")
    e(f"s_mov_b32 s{sOut}, s16")
    e(f"s_mov_b32 s{sOut+1}, s17")
    e(f"s_mov_b32 s{sOut+2}, {NH*ROWB}")
    e(f"s_mov_b32 s{sOut+3}, 0x00020000")
    e(f"s_mov_b32 s{sPar}, 0xaaaaaaaa")
    e(f"s_mov_b32 s{sPar+1}, 0xaaaaaaaa")
    if dyn:
        assert S - PRE > chk
        e(f"s_or_b32 s{sTmp}, s{sSplit}, s{sWave}")
        e(f"s_cbranch_scc1 L_noinit")
        e(f"s_mov_b32 s{sRdy}, {S*NWV}")
        e(f"s_atomic_swap s{sRdy}, s[20:21], s{sCtr} glc")
        e(f"s_mov_b32 s{sTk2}, 0")
        e(f"s_atomic_swap s{sTk2}, s[20:21], s{sArr} glc")
        e(f"s_waitcnt lgkmcnt(0)")
        e(f"s_mov_b32 s{sRdy}, 0x10000")
        e(f"s_atomic_add s{sRdy}, s[18:19], s{sDbg} glc")
        e.label("L_noinit")
    e(f"s_or_b32 s{sTmp}, s{sSplit}, s{sWave}")
    e(f"s_cmp_lg_u32 s{sTmp}, 0")
    e(f"s_cbranch_scc1 L_notree1")
    e(f"s_waitcnt vmcnt({N})")
    for n in range(3):
        for j in range(4):
            src2 = "0" if j == 0 else f"v{vS+n}"
            e(f"v_dot2_f32_bf16 v{vS+n}, v{vAcc+4*n+j}, v{vQ+4*n+j}, {src2}")
    e(f"v_add_f32 v{vS}, v{vS}, v{vS+1}")
    e(f"v_add_f32 v{vS}, v{vS}, v{vS+2}")
    for dp in ("quad_perm:[1,0,3,2]", "quad_perm:[2,3,0,1]", "row_half_mirror"):
        e(f"v_add_f32_dpp v{vS}, v{vS}, v{vS} {dp} row_mask:0xf bank_mask:0xf")
    e(f"v_lshlrev_b32 v{vAl}, 16, v{vAl}")
    e(f"v_sub_f32 v{vAl}, 1.0, v{vAl}")
    e(f"v_mov_b32 v{vMC}, 0x{f2u(MASKRAW):08x}")
    e(f"v_fma_f32 v{vS}, v{vAl}, v{vMC}, v{vS}")
    e(f"v_cmp_gt_u32 vcc, 8, v{vLane}")
    e(f"v_mov_b32 v{vM}, 0x{f2u(-1e30):08x}")
    e(f"v_cndmask_b32 v{vM}, v{vM}, v{vS}, vcc")
    e(f"v_cndmask_b32 v{vL}, 0, 1.0, vcc")
    for k in range(12):
        e(f"v_cndmask_b32 v{vT0}, 0, v{vAcc+12+k}, vcc")
        e(f"v_lshlrev_b32 v{vAcc+2*k}, 16, v{vT0}")
        e(f"v_and_b32 v{vAcc+2*k+1}, 0xffff0000, v{vT0}")
    e(f"s_branch L_init_done")
    e.label("L_notree1")
    e(f"v_mov_b32 v{vM}, 0x{f2u(-1e30):08x}")
    e(f"v_mov_b32 v{vL}, 0")
    for k in range(24):
        e(f"v_mov_b32 v{vAcc+k}, 0")
    e.label("L_init_done")
    if diag:
        e(f"v_mov_b32 v{vStamp}, 0")
        e(f"s_memrealtime s[{sT0+4}:{sT0+5}]")
        e(f"s_waitcnt lgkmcnt(0)")
        e(f"v_writelane_b32 v{vStamp}, s{sT0+2}, 61")
        e(f"v_writelane_b32 v{vStamp}, s{sT0+4}, 60")
        e(f"s_waitcnt vmcnt({N-1})")
        e(f"s_memrealtime s[{sT0+4}:{sT0+5}]")
        e(f"s_waitcnt lgkmcnt(0)")
        e(f"v_writelane_b32 v{vStamp}, s{sT0+4}, 62")
        e(f"s_mov_b32 s{sT0+6}, 0")
    e.nop(3)

    def reissue(idx):
        masked = False
        for i in idx:
            if (i + N) % LS == 0:
                if masked: e(f"s_mov_b64 exec, -1"); masked = False
                next_stage()
            if not masked: e(f"s_mov_b64 exec, s[{sMask}:{sMask+1}]"); masked = True
            load(i + N)
        e(f"s_mov_b64 exec, -1")

    def stage(t):
        base = t * LS
        for c0 in range(0, 3 * R, grp):
            idx = list(range(c0, min(c0 + grp, 3 * R)))
            e(f"s_waitcnt vmcnt({N - len(idx)})")
            for j in range(4):
                for jj in idx:
                    g, n = divmod(jj, 3)
                    if grp >= 3:
                        a = vS + jj; first = j == 0
                    else:
                        a = vS + g * 3 + (j % 2); first = (n == 0 and j < 2)
                    src2 = "0" if first else f"v{a}"
                    e(f"v_dot2_f32_bf16 v{a}, v{slot(base+jj)+j}, v{vQ+4*n+j}, {src2}")
            reissue([base + jj for jj in idx])
        for g in range(R):
            e(f"v_add_f32 v{vS+3*g}, v{vS+3*g}, v{vS+3*g+1}")
        if grp >= 3:
            for g in range(R):
                e(f"v_add_f32 v{vS+3*g}, v{vS+3*g}, v{vS+3*g+2}")
        for dp in ("quad_perm:[1,0,3,2]", "quad_perm:[2,3,0,1]", "row_half_mirror"):
            for g in range(R):
                e(f"v_add_f32_dpp v{vS+3*g}, v{vS+3*g}, v{vS+3*g} {dp} row_mask:0xf bank_mask:0xf")
        e(f"v_mov_b32 v{vT0}, v{vM}")
        g = 0
        while g < R:
            if g + 1 < R:
                e(f"v_max3_f32 v{vM}, v{vM}, v{vS+3*g}, v{vS+3*g+3}"); g += 2
            else:
                e(f"v_max_f32 v{vM}, v{vM}, v{vS+3*g}"); g += 1
        e(f"v_mul_f32 v{vMC}, s{sC}, v{vM}")
        e(f"v_fma_f32 v{vAl}, v{vT0}, s{sC}, -v{vMC}")
        for g in range(R):
            e(f"v_fma_f32 v{vPh+g}, v{vS+3*g}, s{sC}, -v{vMC}")
        e(f"v_exp_f32 v{vAl}, v{vAl}")
        for g in range(R):
            e(f"v_exp_f32 v{vPh+g}, v{vPh+g}")
        e(f"v_mul_f32 v{vL}, v{vL}, v{vAl}")
        for g in range(R):
            e(f"v_cvt_pk_bf16_f32 v{vPh+g}, 0, v{vPh+g}")
        for k in range(24):
            e(f"v_mul_f32 v{vAcc+k}, v{vAcc+k}, v{vAl}")
        for g in range(R):
            e(f"v_lshrrev_b32 v{vPl+g}, 16, v{vPh+g}")
            e(f"v_add_f32 v{vL}, v{vL}, v{vPh+g}")
        for c0 in range(0, 3 * R, grp):
            idx = list(range(c0, min(c0 + grp, 3 * R)))
            e(f"s_waitcnt vmcnt({N - len(idx)})")
            for jj in idx:
                g, n = divmod(jj, 3)
                r = slot(base + 3 * R + jj)
                for j in range(4):
                    e(f"v_dot2c_f32_bf16 v{vAcc+8*n+2*j}, v{r+j}, v{vPl+g}")
                    e(f"v_dot2c_f32_bf16 v{vAcc+8*n+2*j+1}, v{r+j}, v{vPh+g}")
            reissue([base + 3 * R + jj for jj in idx])
        if diag:
            e(f"s_add_u32 s{sT0+6}, s{sT0+6}, 1")
        e(f"s_cmp_eq_u32 s{sValid}, 0")
        e(f"s_cbranch_scc1 L_done")

    e.raw(".p2align 6")
    e.label("L_loop")
    for t in range(U):
        stage(t)
    e(f"s_branch L_loop")
    e.label("L_done")
    e(f"s_waitcnt vmcnt(0)")
    e.nop(3)

    vK = vRing
    if diag:
        e(f"v_writelane_b32 v{vStamp}, s{sT0+6}, 59")
        e(f"s_memrealtime s[{sT0+2}:{sT0+3}]")
        e(f"s_waitcnt lgkmcnt(0)")
        for j in range(4):
            e(f"v_mov_b32 v{vK+j}, s{sT0+j}")
        e(f"s_lshl_b32 s{sTmp}, s{sVG}, 9")
        e(f"s_add_u32 s{sTmp}, s{sTmp}, {DIAG_OFF}")
        e(f"s_lshl_b32 s{sCnt}, s{sWave}, 4")
        e(f"s_add_u32 s{sTmp}, s{sTmp}, s{sCnt}")
        e(f"v_mov_b32 v{vT1}, 0")
        e(f"s_mov_b64 exec, 1")
        e(f"buffer_store_dwordx4 v[{vK}:{vK+3}], v{vT1}, s[{sWs}:{sWs+3}], s{sTmp} offen")
        e(f"s_mov_b64 exec, -1")
        e(f"s_mul_i32 s{sTmp}, s{sVG}, {W*256}")
        e(f"s_add_u32 s{sTmp}, s{sTmp}, {DIAG_OFF+NVG*512}")
        e(f"s_lshl_b32 s{sCnt}, s{sWave}, 8")
        e(f"s_add_u32 s{sTmp}, s{sTmp}, s{sCnt}")
        e(f"v_lshlrev_b32 v{vT1}, 2, v{vLane}")
        e(f"buffer_store_dword v{vStamp}, v{vT1}, s[{sWs}:{sWs+3}], s{sTmp} offen")
        e.nop(4)
    vMW = vS; vX = vS + 1
    e(f"v_mov_b32 v{vMW}, v{vM}")
    e(f"v_max_f32_dpp v{vMW}, v{vM}, v{vM} row_ror:8 row_mask:0xf bank_mask:0xf")
    e(f"v_mov_b32 v{vX}, v{vMW}")
    e(f"v_permlane16_swap_b32 v{vMW}, v{vX}")
    e(f"v_max_f32 v{vMW}, v{vMW}, v{vX}")
    e(f"v_mov_b32 v{vX}, v{vMW}")
    e(f"v_permlane32_swap_b32 v{vMW}, v{vX}")
    e(f"v_max_f32 v{vMW}, v{vMW}, v{vX}")
    e(f"v_sub_f32 v{vAl}, v{vM}, v{vMW}")
    e(f"v_mul_f32 v{vAl}, s{sC}, v{vAl}")
    e(f"v_exp_f32 v{vAl}, v{vAl}")
    e(f"v_mul_f32 v{vL}, v{vL}, v{vAl}")
    for k in range(24):
        e(f"v_mul_f32 v{vAcc+k}, v{vAcc+k}, v{vAl}")
    A = lambda n, ee: vAcc + 8 * n + ee
    e(f"v_add_f32_dpp v{vL}, v{vL}, v{vL} row_ror:8 row_mask:0xf bank_mask:0xf")
    for n in range(3):
        for ee in range(4):
            e(f"v_permlane32_swap_b32 v{A(n,ee)}, v{A(n,ee+4)}")
    e(f"v_mov_b32 v{vX}, v{vL}")
    for n in range(3):
        for ee in range(4):
            e(f"v_add_f32 v{A(n,ee)}, v{A(n,ee)}, v{A(n,ee+4)}")
    e(f"v_permlane16_swap_b32 v{vL}, v{vX}")
    for n in range(3):
        for ee in range(2):
            e(f"v_permlane16_swap_b32 v{A(n,ee)}, v{A(n,ee+2)}")
    e(f"v_add_f32 v{vL}, v{vL}, v{vX}")
    for n in range(3):
        for ee in range(2):
            e(f"v_add_f32 v{A(n,ee)}, v{A(n,ee)}, v{A(n,ee+2)}")
    e(f"v_mov_b32 v{vX}, v{vL}")
    vO = vK
    for n in range(3):
        e(f"v_add_f32_dpp v{vO+n}, v{A(n,0)}, v{A(n,0)} row_ror:8 row_mask:0xf bank_mask:0x3")
    e(f"v_permlane32_swap_b32 v{vL}, v{vX}")
    for n in range(3):
        e(f"v_add_f32_dpp v{vO+n}, v{A(n,1)}, v{A(n,1)} row_ror:8 row_mask:0xf bank_mask:0xc")
    e(f"v_add_f32 v{vL}, v{vL}, v{vX}")
    e(f"v_cndmask_b32 v{vO+3}, v{vL}, v{vMW}, s[{sPar}:{sPar+1}]")
    e(f"v_lshlrev_b32 v{vT0}, 4, v0")
    if W > 1:
        e(f"ds_write_b128 v{vT0}, v[{vO}:{vO+3}]")
        e(f"s_waitcnt lgkmcnt(0)")
        e(f"s_barrier")
        e(f"s_cmp_lg_u32 s{sWave}, 0")
        e(f"s_cbranch_scc1 L_end")
    if diag: e(f"s_memrealtime s[{sT0}:{sT0+1}]")

    def combine(n, base, out):
        F = vAcc
        X = lambda i: base + 4 * i + 3
        e(f"v_max_f32 v{vMW}, v{X(0)}, v{X(1)}")
        i = 2
        while i < n:
            if i + 1 < n:
                e(f"v_max3_f32 v{vMW}, v{vMW}, v{X(i)}, v{X(i+1)}"); i += 2
            else:
                e(f"v_max_f32 v{vMW}, v{vMW}, v{X(i)}"); i += 1
        for i in range(n):
            e(f"v_sub_f32 v{F+i}, v{X(i)}, v{vMW}")
        for i in range(n):
            e(f"v_mul_f32 v{F+i}, s{sC}, v{F+i}")
        for i in range(n):
            e(f"v_exp_f32 v{F+i}, v{F+i}")
        for i in range(n):
            e(f"v_mov_b32_dpp v{F+i}, v{F+i} quad_perm:[1,1,3,3] row_mask:0xf bank_mask:0xf")
        for j in range(4):
            e(f"v_mul_f32 v{out+j}, v{F}, v{base+j}")
        for i in range(1, n):
            for j in range(4):
                e(f"v_fmac_f32 v{out+j}, v{F+i}, v{base+4*i+j}")

    vB = vK + 4
    vEnd = max(vEnd, vB + 4 * max(W, NSPLIT), vB + 8)
    assert max(W, NSPLIT) <= 24
    if W > 1:
        for w in range(W):
            e(f"ds_read_b128 v[{vB+4*w}:{vB+4*w+3}], v{vT0} offset:{w*1024}")
        e(f"s_waitcnt lgkmcnt(0)")
        combine(W, vB, vO)
        e(f"v_cndmask_b32 v{vO+3}, v{vO+3}, v{vMW}, s[{sPar}:{sPar+1}]")
    e(f"v_lshlrev_b32 v{vT0}, 4, v{vLane}")
    e(f"s_mul_i32 s{sTmp}, s{sHead}, {NSPLIT*1024}")
    e(f"s_lshl_b32 s{sCnt}, s{sSplit}, 10")
    e(f"s_add_u32 s{sCnt}, s{sCnt}, s{sTmp}")
    e(f"buffer_store_dwordx4 v[{vO}:{vO+3}], v{vT0}, s[{sWs}:{sWs+3}], s{sCnt} offen sc1")
    e(f"s_mov_b32 s{sTick}, 1")
    e(f"s_waitcnt vmcnt(0) lgkmcnt(0)")
    if diag: e(f"s_memrealtime s[{sT0+2}:{sT0+3}]")
    if dyn:
        e(f"s_atomic_add s{sTick}, s[20:21], s{sArr} glc")
    else:
        e(f"s_atomic_add s{sTick}, s[18:19], s{sDbg} glc")
    e(f"s_waitcnt lgkmcnt(0)")
    e(f"s_cmp_lg_u32 s{sTick}, {NSPLIT-1}")
    e(f"s_cbranch_scc1 L_fin")
    for i in range(NSPLIT):
        if i and i % 4 == 0:
            e(f"s_add_u32 s{sTmp}, s{sTmp}, 4096")
        e(f"buffer_load_dwordx4 v[{vB+4*i}:{vB+4*i+3}], v{vT0}, s[{sWs}:{sWs+3}], s{sTmp} offen offset:{(i%4)*1024} sc1")
    e(f"v_and_b32 v{vT1}, 7, v{vLane}")
    e(f"v_lshlrev_b32 v{vT1}, 4, v{vT1}")
    e(f"v_lshrrev_b32 v{vX}, 3, v{vLane}")
    e(f"v_lshl_add_u32 v{vT1}, v{vX}, 1, v{vT1}")
    e(f"s_mul_i32 s{sTmp}, s{sHead}, {ROWB}")
    e(f"s_waitcnt vmcnt(0)")
    combine(NSPLIT, vB, vO)
    e(f"v_rcp_f32 v{vO+3}, v{vO+3}")
    e(f"v_mov_b32_dpp v{vO+3}, v{vO+3} quad_perm:[0,0,2,2] row_mask:0xf bank_mask:0xf")
    for j in range(3):
        e(f"v_mul_f32 v{vO+j}, v{vO+j}, v{vO+3}")
    for j in range(3):
        e(f"v_cvt_pk_bf16_f32 v{vO+j}, v{vO+j}, v{vO+j}")
    for j in range(3):
        e(f"buffer_store_short v{vO+j}, v{vT1}, s[{sOut}:{sOut+3}], s{sTmp} offen offset:{j*128}")
    e.label("L_fin")
    if diag:
        e(f"s_waitcnt vmcnt(0)")
        e(f"s_memrealtime s[{sT0+4}:{sT0+5}]")
        e(f"s_getreg_b32 s{sT0+6}, hwreg(HW_REG_XCC_ID)")
        e(f"s_getreg_b32 s{sT0+7}, hwreg(HW_REG_HW_ID)")
        e(f"s_waitcnt lgkmcnt(0)")
        for j in range(8):
            e(f"v_mov_b32 v{vB+j}, s{sT0+j}")
        e(f"s_lshl_b32 s{sTmp}, s{sVG}, 9")
        e(f"s_add_u32 s{sTmp}, s{sTmp}, {DIAG_OFF+256}")
        e(f"v_mov_b32 v{vT1}, 0")
        e(f"s_mov_b64 exec, 1")
        e(f"buffer_store_dwordx4 v[{vB}:{vB+3}], v{vT1}, s[{sWs}:{sWs+3}], s{sTmp} offen")
        e(f"buffer_store_dwordx4 v[{vB+4}:{vB+7}], v{vT1}, s[{sWs}:{sWs+3}], s{sTmp} offen offset:16")
    e.label("L_end")
    e("s_endpgm")

    acc_off = (vEnd + 3) // 4 * 4
    assert vEnd <= 256
    out = HEADER
    out += f"; params: v4 HPW={HPW} P={P} NSPLIT={NSPLIT} W={W} R={R} N={N} S={S} lay={lay} rot={rot} grp={grp} pol={pol.strip()} {'diag' if diag else ''} off={DIAG_OFF}\n"
    out += f"; @launch grid=({NWG},1,1) block=({WT*64},1,1) lds={max(lds, WT*1024)}\n"
    out += f""".amdgcn_target "amdgcn-amd-amdhsa--gfx950"
.text
.globl {NAME}_kernel
.p2align 8
.type {NAME}_kernel,@function
{NAME}_kernel:
"""
    out += "\n".join(e.lines) + "\n"
    out += f""".section .rodata,"a"
.p2align 6
.amdhsa_kernel {NAME}_kernel
  .amdhsa_next_free_vgpr {vEnd}
  .amdhsa_next_free_sgpr 76
  .amdhsa_accum_offset {acc_off}
  .amdhsa_group_segment_fixed_size 0
  .amdhsa_kernarg_size 72
  .amdhsa_user_sgpr_count 2
  .amdhsa_user_sgpr_kernarg_segment_ptr 1
  .amdhsa_system_sgpr_workgroup_id_x 1
.end_amdhsa_kernel
"""
    return out


if __name__ == "__main__":
    ap = argparse.ArgumentParser()
    ap.add_argument("-o", default="cdna_kernels/" + NAME + ".s")
    ap.add_argument("--nsplit", type=int, default=8)
    ap.add_argument("--w", type=int, default=2)
    ap.add_argument("--r", type=int, default=1)
    ap.add_argument("--n", type=int, default=6)
    ap.add_argument("--s", type=int, default=48)
    ap.add_argument("--lay", default="blk")
    ap.add_argument("--lds", type=int, default=0)
    ap.add_argument("--chk", type=int, default=8)
    ap.add_argument("--grp", type=int, default=1)
    ap.add_argument("--pol", default="nt")
    ap.add_argument("--hpw", type=int, default=2)
    ap.add_argument("--p", type=int, default=2)
    ap.add_argument("--flat", type=int, default=0)
    ap.add_argument("--rot", type=int, default=0)
    ap.add_argument("--diag", action="store_true")
    a = ap.parse_args()
    open(a.o, "w").write(gen(a.nsplit, a.w, a.r, a.n, a.s, a.lay, a.pol, a.lds, a.diag, a.chk, a.grp, a.hpw, a.p, a.flat, a.rot))
```

```python
import math, struct, sys, re, argparse

NAME = "standalone__tree_speculative_verify_tree_attention_over_candidate_token_tree__decode"
HEADER = """; Kernarg layout for this problem (72 bytes, ptrs only, base s[0:1]):
;   offset   8: d_in[1] k_cache  shape=(2, 32, 8192, 192) dtype=bfloat16 strides=(100663296, 3145728, 384, 2) contiguous=True
;   offset  16: d_in[2] v_cache  shape=(2, 32, 8192, 192) dtype=bfloat16 strides=(100663296, 3145728, 384, 2) contiguous=True
;   offset  32: d_in[4] v_tree  shape=(2, 32, 1, 192) dtype=bfloat16 strides=(12288, 384, 384, 2) contiguous=True
"""

def f2u(x):
    return struct.unpack("<I", struct.pack("<f", x))[0]

NH = 64; C = 8192; DH = 192; ROWB = 384; HEADB = C * ROWB; KVB = NH * HEADB
SCALE_LOG2E = (DH ** -0.5) * math.log2(math.e)
MASKRAW = -1.0e9 * math.sqrt(DH)


class Em:
    def __init__(self):
        self.lines = []
        self.pos = 0
        self.vw = {}
        self.sw = {}

    @staticmethod
    def regs(tok, pfx):
        tok = tok.strip().lstrip('-')
        m = re.fullmatch(pfx + r"(\d+)", tok)
        if m: return [int(m.group(1))]
        m = re.fullmatch(pfx + r"\[(\d+):(\d+)\]", tok)
        if m: return list(range(int(m.group(1)), int(m.group(2)) + 1))
        return []

    def raw(self, s):
        self.lines.append(s)

    def label(self, s):
        self.lines.append(s + ":")

    def nop(self, n):
        while n > 0:
            k = min(n, 16)
            self.lines.append(f"    s_nop {k-1}")
            self.pos += k
            n -= k

    def __call__(self, s):
        s = s.strip()
        op, _, rest = s.partition(" ")
        rest_nomod = rest
        toks = [t.strip() for t in re.split(r",", rest_nomod)]
        if toks:
            toks[-1] = toks[-1].split(" ")[0]
        need = 0
        def req(p, n):
            nonlocal need
            need = max(need, n - (self.pos - p - 1))
        isv = op.startswith("v_")
        ismem = op.startswith(("buffer_", "global_", "ds_"))
        if isv:
            dst = self.regs(toks[0], "v")
            srcs = []
            for t in toks[1:]:
                srcs += self.regs(t, "v")
            ssrc = []
            for t in toks[1:]:
                ssrc += self.regs(t, "s")
                if t == "vcc": ssrc += [106, 107]
            rw_dst = op.startswith(("v_dot2c", "v_fmac", "v_permlane")) or "dpp" in op
            if op.startswith("v_permlane"):
                dst = dst + self.regs(toks[1], "v")
            reads = list(srcs) + (dst if rw_dst else [])
            isdot = op.startswith("v_dot2")
            istrans = op.startswith(("v_exp", "v_rcp", "v_log", "v_rsq", "v_sqrt"))
            isdpp = "dpp" in op
            for r in set(reads + dst):
                if r not in self.vw: continue
                p, kind, pop = self.vw[r]
                if kind == "dot":
                    srcc = (r in dst and op.startswith("v_dot2c")) or (op == "v_dot2_f32_bf16" and r in self.regs(toks[3], "v"))
                    srcab = r in (self.regs(toks[1], "v") + (self.regs(toks[2], "v") if len(toks) > 2 else []))
                    if pop == op and srcc and not srcab:
                        pass
                    else:
                        req(p, 3)
                if r in reads:
                    if kind == "trans" and not istrans: req(p, 1)
                    if isdpp: req(p, 2)
                    if op.startswith("v_permlane"): req(p, 2)
                    if op.startswith(("v_readlane", "v_readfirstlane")): req(p, 1)
                if kind == "store" and r in dst: req(p, 2)
            for r in ssrc:
                if r in self.sw: req(self.sw[r], 4 if op.startswith(("v_readlane", "v_writelane")) else 2)
            if op.startswith("v_cndmask") and len(toks) == 4 and toks[3] == "vcc":
                for r in (106, 107):
                    if r in self.sw: req(self.sw[r], 2)
            if need > 0: self.nop(need)
            self.lines.append("    " + s)
            kind = "dot" if isdot else "trans" if istrans else "valu"
            for r in dst: self.vw[r] = (self.pos, kind, op)
            sd = self.regs(toks[0], "s")
            if toks[0] == "vcc": sd = [106, 107]
            for r in sd: self.sw[r] = self.pos
            self.pos += 1
            return
        if ismem:
            for t in toks:
                for r in self.regs(t, "s"):
                    if r in self.sw: req(self.sw[r], 5)
                for r in self.regs(t, "v"):
                    if r in self.vw and self.vw[r][1] == "dot": req(self.vw[r][0], 3)
                    if r in self.vw and self.vw[r][1] == "trans": req(self.vw[r][0], 1)
            if need > 0: self.nop(need)
            self.lines.append("    " + s)
            if "store" in op and ("x3" in op or "x4" in op):
                for t in toks:
                    rr = self.regs(t, "v")
                    if len(rr) >= 3:
                        for r in rr: self.vw[r] = (self.pos, "store", op)
            self.pos += 1
            return
        if op.startswith("s_") and op not in ("s_waitcnt", "s_barrier", "s_nop", "s_endpgm"):
            for t in toks:
                for r in self.regs(t, "s"):
                    if r in self.sw: req(self.sw[r], 2)
                if t == "vcc":
                    for r in (106, 107):
                        if r in self.sw: req(self.sw[r], 2)
            if op.startswith("s_cbranch_vcc"):
                for r in (106, 107):
                    if r in self.sw: req(self.sw[r], 5)
            if need > 0: self.nop(need)
        self.lines.append("    " + s)
        self.pos += 1


def gen(NSPLIT=4, W=8, R=2, D=3, pol="nt", order="hm", diag=False, lds=0, cc=1):
    NWG = NH * NSPLIT
    ROWS = C // NSPLIT
    STG_ROWS = W * R * 8
    NST = ROWS // STG_ROWS
    assert ROWS % STG_ROWS == 0
    STG_B = STG_ROWS * ROWB
    assert NST >= D
    LPS = 3 * R
    assert 2 * D * LPS + 10 <= 63 + 10
    pol = (" " + pol) if pol else ""
    e = Em()
    vTid, vOffA, vOffB, vT0, vT1, vM, vL, vMC, vAl = 0, 1, 2, 3, 4, 5, 6, 7, 8
    vLane = 9
    vStamp = 10
    vS = 11
    nS = 3 * R
    vPh = vS + nS
    vPl = vPh + R
    vQ = (vPl + R + 3) // 4 * 4
    vAcc = vQ + 12
    vK = vAcc + 24
    vV = vK + D * R * 12
    vEnd = vV + D * R * 12
    assert vEnd <= 512
    def kreg(d, g, n): return vK + (d * R + g) * 12 + n * 4
    def vreg(d, g, n): return vV + (d * R + g) * 12 + n * 4
    sK, sV = 24, 28
    sHead, sSplit, sWave, sOffK, sCnt, sC, sTmp, sPar = 36, 37, 38, 39, 40, 41, 42, 44
    sWs, sOut = 48, 52
    sT0 = 56

    def advance():
        if order == "ch":
            e(f"s_add_u32 s43, s43, 1")
            e(f"s_and_b32 s{sTmp}, s43, {cc-1}")
            e(f"s_cselect_b32 s{sTmp}, {STG_B}, {STG_B + (NSPLIT-1)*cc*STG_B}") if False else None
            e(f"s_mov_b32 s46, {STG_B}")
            e(f"s_cselect_b32 s{sTmp}, s46, {STG_B + (NSPLIT-1)*cc*STG_B}")
            e(f"s_add_u32 s{sOffK}, s{sOffK}, s{sTmp}")
        else:
            e(f"s_add_u32 s{sOffK}, s{sOffK}, {STG_B}")

    def loads(kind, d, soff):
        srd = sK if kind == "K" else sV
        for g in range(R):
            for n in range(3):
                r = kreg(d, g, n) if kind == "K" else vreg(d, g, n)
                off = (g % 2) * 3072 + n * 128
                voff = vOffA if g < 2 else vOffB
                e(f"buffer_load_dwordx4 v[{r}:{r+3}], v{voff}, s[{srd}:{srd+3}], s{soff} offen offset:{off}{pol}")

    e(f"s_cmp_ge_u32 s2, {NWG}")
    e(f"s_cbranch_scc1 L_end")
    e(f"s_load_dwordx16 s[4:19], s[0:1], 0")
    e(f"s_load_dwordx2 s[20:21], s[0:1], 64")
    if diag: e(f"s_memrealtime s[{sT0}:{sT0+1}]")
    e(f"v_lshrrev_b32 v{vT0}, 6, v0")
    e(f"v_and_b32 v{vLane}, 63, v0")
    e(f"v_readfirstlane_b32 s{sWave}, v{vT0}")
    e(f"v_lshrrev_b32 v{vT0}, 3, v{vLane}")
    e(f"v_and_b32 v{vT1}, 7, v{vLane}")
    e(f"v_mul_u32_u24 v{vOffA}, {ROWB}, v{vT0}")
    e(f"v_lshlrev_b32 v{vT1}, 4, v{vT1}")
    e(f"v_add_u32 v{vOffA}, v{vOffA}, v{vT1}")
    if order != "sm":
        e(f"s_lshr_b32 s{sHead}, s2, {int(math.log2(NSPLIT))}")
        e(f"s_and_b32 s{sSplit}, s2, {NSPLIT-1}")
    else:
        e(f"s_and_b32 s{sHead}, s2, {NH-1}")
        e(f"s_lshr_b32 s{sSplit}, s2, 6")
    e(f"s_mul_i32 s{sOffK}, s{sHead}, {HEADB}")
    e(f"s_mul_i32 s{sTmp}, s{sSplit}, {ROWS*ROWB}")
    e(f"s_add_u32 s{sOffK}, s{sOffK}, s{sTmp}")
    if order == "gs":
        e(f"s_mul_i32 s{sOffK}, s2, {STG_B}")
        STG_B = STG_B * NWG
    if order == "tm":
        e(f"s_lshr_b32 s{sTmp}, s2, {int(math.log2(cc))}")
        e(f"s_mul_i32 s{sOffK}, s{sTmp}, {KVB * cc // NWG}")
        e(f"s_and_b32 s{sTmp}, s2, {cc-1}")
        e(f"s_mul_i32 s{sTmp}, s{sTmp}, {STG_B}")
        e(f"s_add_u32 s{sOffK}, s{sOffK}, s{sTmp}")
        STG_B = STG_B * cc
    if order == "il":
        e(f"s_mul_i32 s{sOffK}, s{sHead}, {HEADB}")
        e(f"s_mul_i32 s{sTmp}, s{sSplit}, {STG_B}")
        e(f"s_add_u32 s{sOffK}, s{sOffK}, s{sTmp}")
        STG_B = STG_B * NSPLIT
    if order == "ch":
        e(f"s_mul_i32 s{sOffK}, s{sHead}, {HEADB}")
        e(f"s_mul_i32 s{sTmp}, s{sSplit}, {STG_B*cc}")
        e(f"s_add_u32 s{sOffK}, s{sOffK}, s{sTmp}")
        e(f"s_mov_b32 s43, 0")
    if order == "wb":
        e(f"s_mul_i32 s{sTmp}, s{sWave}, {ROWS*ROWB//W}")
        STG_B = R * 3072
    else:
        e(f"s_mul_i32 s{sTmp}, s{sWave}, {R*3072}")
    e(f"s_add_u32 s{sOffK}, s{sOffK}, s{sTmp}")
    e(f"s_mul_i32 s{sTmp}, s{sHead}, {ROWB}")
    e(f"v_add_u32 v{vT1}, s{sTmp}, v{vT1}")
    if R > 2:
        e(f"v_add_u32 v{vOffB}, 6144, v{vOffA}")
    e(f"s_mov_b32 s{sK+2}, {KVB}")
    e(f"s_mov_b32 s{sK+3}, 0x00020000")
    e(f"s_mov_b32 s{sV+2}, {KVB}")
    e(f"s_mov_b32 s{sV+3}, 0x00020000")
    e(f"s_mov_b32 s{sC}, 0x{f2u(SCALE_LOG2E):08x}")
    e(f"s_waitcnt lgkmcnt(0)")
    if diag: e(f"s_memrealtime s[{sT0+2}:{sT0+3}]")
    e(f"s_mov_b32 s{sK}, s6")
    e(f"s_mov_b32 s{sK+1}, s7")
    e(f"s_mov_b32 s{sV}, s8")
    e(f"s_mov_b32 s{sV+1}, s9")
    for n in range(3):
        e(f"global_load_dwordx4 v[{vQ+4*n}:{vQ+4*n+3}], v{vT1}, s[4:5] offset:{n*128}")
    e(f"s_or_b32 s{sTmp}, s{sSplit}, s{sWave}")
    e(f"s_cmp_lg_u32 s{sTmp}, 0")
    e(f"s_cbranch_scc1 L_notree0")
    for n in range(3):
        e(f"global_load_dwordx4 v[{vAcc+4*n}:{vAcc+4*n+3}], v{vT1}, s[10:11] offset:{n*128}")
    for n in range(3):
        e(f"global_load_dwordx4 v[{vAcc+12+4*n}:{vAcc+12+4*n+3}], v{vT1}, s[12:13] offset:{n*128}")
    e(f"s_lshr_b32 s{sTmp}, s{sHead}, 5")
    e(f"s_lshl_b32 s{sTmp}, s{sTmp}, 1")
    e(f"v_mov_b32 v{vMC}, s{sTmp}")
    e(f"global_load_ushort v{vAl}, v{vMC}, s[14:15]")
    e.label("L_notree0")
    for d in range(D):
        loads("K", d, sOffK)
        loads("V", d, sOffK)
        advance()
    e(f"s_mov_b32 s{sWs}, s20")
    e(f"s_mov_b32 s{sWs+1}, s21")
    e(f"s_mov_b32 s{sWs+2}, {NWG*1024 + (NWG*512 + NWG*W*256 if diag else 0)}")
    e(f"s_mov_b32 s{sWs+3}, 0x00020000")
    e(f"s_mov_b32 s{sOut}, s16")
    e(f"s_mov_b32 s{sOut+1}, s17")
    e(f"s_mov_b32 s{sOut+2}, {NH*ROWB}")
    e(f"s_mov_b32 s{sOut+3}, 0x00020000")
    e(f"s_mov_b32 s{sPar}, 0xaaaaaaaa")
    e(f"s_mov_b32 s{sPar+1}, 0xaaaaaaaa")
    e(f"s_or_b32 s{sTmp}, s{sSplit}, s{sWave}")
    e(f"s_cmp_lg_u32 s{sTmp}, 0")
    e(f"s_cbranch_scc1 L_notree1")
    e(f"s_waitcnt vmcnt({2*D*LPS})")
    for n in range(3):
        for j in range(4):
            src2 = "0" if j == 0 else f"v{vS+n}"
            e(f"v_dot2_f32_bf16 v{vS+n}, v{vAcc+4*n+j}, v{vQ+4*n+j}, {src2}")
    e(f"v_add_f32 v{vS}, v{vS}, v{vS+1}")
    e(f"v_add_f32 v{vS}, v{vS}, v{vS+2}")
    for dp in ("quad_perm:[1,0,3,2]", "quad_perm:[2,3,0,1]", "row_half_mirror"):
        e(f"v_add_f32_dpp v{vS}, v{vS}, v{vS} {dp} row_mask:0xf bank_mask:0xf")
    e(f"v_lshlrev_b32 v{vAl}, 16, v{vAl}")
    e(f"v_sub_f32 v{vAl}, 1.0, v{vAl}")
    e(f"v_mov_b32 v{vMC}, 0x{f2u(MASKRAW):08x}")
    e(f"v_fma_f32 v{vS}, v{vAl}, v{vMC}, v{vS}")
    e(f"v_cmp_gt_u32 vcc, 8, v{vLane}")
    e(f"v_mov_b32 v{vM}, 0x{f2u(-1e30):08x}")
    e(f"v_cndmask_b32 v{vM}, v{vM}, v{vS}, vcc")
    e(f"v_cndmask_b32 v{vL}, 0, 1.0, vcc")
    for k in range(12):
        src = vAcc + 12 + k
        e(f"v_cndmask_b32 v{vT0}, 0, v{src}, vcc")
        e(f"v_lshlrev_b32 v{vAcc+2*k}, 16, v{vT0}")
        e(f"v_and_b32 v{vAcc+2*k+1}, 0xffff0000, v{vT0}")
    e(f"s_branch L_init_done")
    e.label("L_notree1")
    e(f"v_mov_b32 v{vM}, 0x{f2u(-1e30):08x}")
    e(f"v_mov_b32 v{vL}, 0")
    for k in range(24):
        e(f"v_mov_b32 v{vAcc+k}, 0")
    e.label("L_init_done")
    if diag:
        e(f"s_mov_b32 m0, 0")
        e(f"v_mov_b32 v{vStamp}, 0")
        e(f"s_memrealtime s[{sT0+4}:{sT0+5}]")
        e(f"s_waitcnt lgkmcnt(0)")
        e(f"v_writelane_b32 v{vStamp}, s{sT0+2}, 61")
        e(f"v_writelane_b32 v{vStamp}, s{sT0+4}, 60")
        e(f"s_waitcnt vmcnt({2*D*LPS-1})")
        e(f"s_memrealtime s[{sT0+4}:{sT0+5}]")
        e(f"s_waitcnt lgkmcnt(0)")
        e(f"v_writelane_b32 v{vStamp}, s{sT0+4}, 62")
    e.nop(3)

    def stage(d, issue, n_after_k, n_after_v):
        e(f"s_waitcnt vmcnt({n_after_k})")
        for j in range(4):
            for g in range(R):
                for n in range(3):
                    a = vS + g * 3 + n
                    src2 = "0" if j == 0 else f"v{a}"
                    e(f"v_dot2_f32_bf16 v{a}, v{kreg(d,g,n)+j}, v{vQ+4*n+j}, {src2}")
        if issue: loads("K", d, sOffK)
        for g in range(R):
            e(f"v_add_f32 v{vS+3*g}, v{vS+3*g}, v{vS+3*g+1}")
        for g in range(R):
            e(f"v_add_f32 v{vS+3*g}, v{vS+3*g}, v{vS+3*g+2}")
        for dp in ("quad_perm:[1,0,3,2]", "quad_perm:[2,3,0,1]", "row_half_mirror"):
            for g in range(R):
                e(f"v_add_f32_dpp v{vS+3*g}, v{vS+3*g}, v{vS+3*g} {dp} row_mask:0xf bank_mask:0xf")
        e(f"v_mov_b32 v{vT0}, v{vM}")
        g = 0
        while g < R:
            if g + 1 < R:
                e(f"v_max3_f32 v{vM}, v{vM}, v{vS+3*g}, v{vS+3*g+3}"); g += 2
            else:
                e(f"v_max_f32 v{vM}, v{vM}, v{vS+3*g}"); g += 1
        e(f"v_mul_f32 v{vMC}, s{sC}, v{vM}")
        e(f"v_fma_f32 v{vAl}, v{vT0}, s{sC}, -v{vMC}")
        for g in range(R):
            e(f"v_fma_f32 v{vPh+g}, v{vS+3*g}, s{sC}, -v{vMC}")
        e(f"v_exp_f32 v{vAl}, v{vAl}")
        for g in range(R):
            e(f"v_exp_f32 v{vPh+g}, v{vPh+g}")
        e(f"v_mul_f32 v{vL}, v{vL}, v{vAl}")
        for g in range(R):
            e(f"v_cvt_pk_bf16_f32 v{vPh+g}, 0, v{vPh+g}")
        for k in range(24):
            e(f"v_mul_f32 v{vAcc+k}, v{vAcc+k}, v{vAl}")
        for g in range(R):
            e(f"v_lshrrev_b32 v{vPl+g}, 16, v{vPh+g}")
            e(f"v_add_f32 v{vL}, v{vL}, v{vPh+g}")
        e(f"s_waitcnt vmcnt({n_after_v})")
        for g in range(R):
            for n in range(3):
                for j in range(4):
                    e(f"v_dot2c_f32_bf16 v{vAcc+8*n+2*j}, v{vreg(d,g,n)+j}, v{vPl+g}")
                    e(f"v_dot2c_f32_bf16 v{vAcc+8*n+2*j+1}, v{vreg(d,g,n)+j}, v{vPh+g}")
        if issue:
            loads("V", d, sOffK)
            advance()
        if diag:
            e(f"s_memrealtime s[{sT0+4}:{sT0+5}]")
            e(f"s_waitcnt lgkmcnt(0)")
            e(f"v_writelane_b32 v{vStamp}, s{sT0+4}, m0")
            e(f"s_add_u32 m0, m0, 1"); e(f"s_min_u32 m0, m0, 59")

    main = NST - D
    iters, rem = divmod(main, D)
    NIF = (2 * D - 1) * LPS
    if iters > 0:
        if iters > 1:
            e(f"s_mov_b32 s{sCnt}, {iters}")
            e.raw(".p2align 6")
            e.label("L_loop")
        for d in range(D):
            stage(d, True, NIF, NIF)
        if iters > 1:
            e(f"s_sub_u32 s{sCnt}, s{sCnt}, 1")
            e(f"s_cmp_lg_u32 s{sCnt}, 0")
            e(f"s_cbranch_scc1 L_loop")
    for d in range(rem):
        stage(d, True, NIF, NIF)
    for i in range(D):
        d = (rem + i) % D
        left = D - 1 - i
        stage(d, False, (2 * left + 1) * LPS, 2 * left * LPS)

    if diag:
        e(f"s_memrealtime s[{sT0+2}:{sT0+3}]")
        e(f"s_waitcnt lgkmcnt(0)")
        for j in range(4):
            e(f"v_mov_b32 v{vK+j}, s{sT0+j}")
        e(f"s_lshl_b32 s{sTmp}, s2, 9")
        e(f"s_add_u32 s{sTmp}, s{sTmp}, {NWG*1024}")
        e(f"s_lshl_b32 s{sCnt}, s{sWave}, 4")
        e(f"s_add_u32 s{sTmp}, s{sTmp}, s{sCnt}")
        e(f"v_mov_b32 v{vT1}, 0")
        e(f"s_mov_b64 exec, 1")
        e(f"buffer_store_dwordx4 v[{vK}:{vK+3}], v{vT1}, s[{sWs}:{sWs+3}], s{sTmp} offen")
        e(f"s_mov_b64 exec, -1")
        e(f"s_mul_i32 s{sTmp}, s2, {W*256}")
        e(f"s_add_u32 s{sTmp}, s{sTmp}, {NWG*1024+NWG*512}")
        e(f"v_lshlrev_b32 v{vT1}, 2, v0")
        e(f"buffer_store_dword v{vStamp}, v{vT1}, s[{sWs}:{sWs+3}], s{sTmp} offen")
        e.nop(4)
    vMW = vS; vX = vS + 1
    e(f"v_mov_b32 v{vMW}, v{vM}")
    e(f"v_max_f32_dpp v{vMW}, v{vM}, v{vM} row_ror:8 row_mask:0xf bank_mask:0xf")
    e(f"v_mov_b32 v{vX}, v{vMW}")
    e(f"v_permlane16_swap_b32 v{vMW}, v{vX}")
    e(f"v_max_f32 v{vMW}, v{vMW}, v{vX}")
    e(f"v_mov_b32 v{vX}, v{vMW}")
    e(f"v_permlane32_swap_b32 v{vMW}, v{vX}")
    e(f"v_max_f32 v{vMW}, v{vMW}, v{vX}")
    e(f"v_sub_f32 v{vAl}, v{vM}, v{vMW}")
    e(f"v_mul_f32 v{vAl}, s{sC}, v{vAl}")
    e(f"v_exp_f32 v{vAl}, v{vAl}")
    e(f"v_mul_f32 v{vL}, v{vL}, v{vAl}")
    for k in range(24):
        e(f"v_mul_f32 v{vAcc+k}, v{vAcc+k}, v{vAl}")
    A = lambda n, ee: vAcc + 8 * n + ee
    e(f"v_add_f32_dpp v{vL}, v{vL}, v{vL} row_ror:8 row_mask:0xf bank_mask:0xf")
    for n in range(3):
        for ee in range(4):
            e(f"v_permlane32_swap_b32 v{A(n,ee)}, v{A(n,ee+4)}")
    e(f"v_mov_b32 v{vX}, v{vL}")
    for n in range(3):
        for ee in range(4):
            e(f"v_add_f32 v{A(n,ee)}, v{A(n,ee)}, v{A(n,ee+4)}")
    e(f"v_permlane16_swap_b32 v{vL}, v{vX}")
    for n in range(3):
        for ee in range(2):
            e(f"v_permlane16_swap_b32 v{A(n,ee)}, v{A(n,ee+2)}")
    e(f"v_add_f32 v{vL}, v{vL}, v{vX}")
    for n in range(3):
        for ee in range(2):
            e(f"v_add_f32 v{A(n,ee)}, v{A(n,ee)}, v{A(n,ee+2)}")
    e(f"v_mov_b32 v{vX}, v{vL}")
    vO = vK
    for n in range(3):
        e(f"v_add_f32_dpp v{vO+n}, v{A(n,0)}, v{A(n,0)} row_ror:8 row_mask:0xf bank_mask:0x3")
    e(f"v_permlane32_swap_b32 v{vL}, v{vX}")
    for n in range(3):
        e(f"v_add_f32_dpp v{vO+n}, v{A(n,1)}, v{A(n,1)} row_ror:8 row_mask:0xf bank_mask:0xc")
    e(f"v_add_f32 v{vL}, v{vL}, v{vX}")
    e(f"v_cndmask_b32 v{vO+3}, v{vL}, v{vMW}, s[{sPar}:{sPar+1}]")
    e(f"v_lshlrev_b32 v{vT0}, 4, v0")
    e(f"ds_write_b128 v{vT0}, v[{vO}:{vO+3}]")
    e(f"s_waitcnt lgkmcnt(0)")
    e(f"s_barrier")
    e(f"s_cmp_lg_u32 s{sWave}, 0")
    e(f"s_cbranch_scc1 L_end")
    if diag: e(f"s_memrealtime s[{sT0}:{sT0+1}]")

    def combine(n, base, out):
        e(f"v_mov_b32_dpp v{vMW}, v{base+3} quad_perm:[1,1,3,3] row_mask:0xf bank_mask:0xf")
        for i in range(1, n):
            e(f"v_max_f32_dpp v{vMW}, v{base+4*i+3}, v{vMW} quad_perm:[1,1,3,3] row_mask:0xf bank_mask:0xf")
        F = vAcc
        for i in range(n):
            e(f"v_sub_f32_dpp v{F+i}, v{base+4*i+3}, v{vMW} quad_perm:[1,1,3,3] row_mask:0xf bank_mask:0xf")
        for i in range(n):
            e(f"v_mul_f32 v{F+i}, s{sC}, v{F+i}")
        for i in range(n):
            e(f"v_exp_f32 v{F+i}, v{F+i}")
        for i in range(n):
            e(f"v_mov_b32_dpp v{base+4*i+3}, v{base+4*i+3} quad_perm:[0,0,2,2] row_mask:0xf bank_mask:0xf")
        for j in range(4):
            e(f"v_mul_f32 v{out+j}, v{F}, v{base+j}")
        for i in range(1, n):
            for j in range(4):
                e(f"v_fmac_f32 v{out+j}, v{F+i}, v{base+4*i+j}")

    vB = vK + 4
    need = vB + 4 * max(W, NSPLIT)
    vEnd = max(vEnd, need)
    assert max(W, NSPLIT) <= 24
    for w in range(W):
        e(f"ds_read_b128 v[{vB+4*w}:{vB+4*w+3}], v{vT0} offset:{w*1024}")
    e(f"s_waitcnt lgkmcnt(0)")
    combine(W, vB, vO)
    e(f"v_cndmask_b32 v{vO+3}, v{vO+3}, v{vMW}, s[{sPar}:{sPar+1}]")
    e(f"s_mul_i32 s{sTmp}, s{sHead}, {NSPLIT*1024}")
    e(f"s_lshl_b32 s{sCnt}, s{sSplit}, 10")
    e(f"s_add_u32 s{sCnt}, s{sCnt}, s{sTmp}")
    e(f"buffer_store_dwordx4 v[{vO}:{vO+3}], v{vT0}, s[{sWs}:{sWs+3}], s{sCnt} offen sc1")
    e(f"s_lshl_b32 s{sCnt}, s{sHead}, 2")
    e(f"v_mov_b32 v{vT1}, s{sCnt}")
    e(f"v_mov_b32 v{vX}, 1")
    e(f"s_mov_b64 exec, 1")
    e(f"s_waitcnt vmcnt(0)")
    if diag: e(f"s_memrealtime s[{sT0+2}:{sT0+3}]")
    e(f"global_atomic_add v{vX}, v{vT1}, v{vX}, s[18:19] sc0")
    e(f"s_waitcnt vmcnt(0)")
    e(f"s_mov_b64 exec, -1")
    e(f"v_readfirstlane_b32 s{sCnt}, v{vX}")
    e(f"s_cmp_lg_u32 s{sCnt}, {NSPLIT-1}")
    e(f"s_cbranch_scc1 L_fin")
    for i in range(NSPLIT):
        if i * 1024 < 4096:
            e(f"buffer_load_dwordx4 v[{vB+4*i}:{vB+4*i+3}], v{vT0}, s[{sWs}:{sWs+3}], s{sTmp} offen offset:{i*1024} sc1")
        else:
            if i % 4 == 0:
                e(f"s_add_u32 s{sTmp}, s{sTmp}, 4096")
            e(f"buffer_load_dwordx4 v[{vB+4*i}:{vB+4*i+3}], v{vT0}, s[{sWs}:{sWs+3}], s{sTmp} offen offset:{(i%4)*1024} sc1")
    e(f"v_and_b32 v{vT1}, 7, v{vLane}")
    e(f"v_lshlrev_b32 v{vT1}, 4, v{vT1}")
    e(f"v_lshrrev_b32 v{vX}, 3, v{vLane}")
    e(f"v_lshl_add_u32 v{vT1}, v{vX}, 1, v{vT1}")
    e(f"s_mul_i32 s{sTmp}, s{sHead}, {ROWB}")
    e(f"s_waitcnt vmcnt(0)")
    combine(NSPLIT, vB, vO)
    e(f"v_rcp_f32 v{vO+3}, v{vO+3}")
    for j in range(3):
        e(f"v_mul_f32 v{vO+j}, v{vO+j}, v{vO+3}")
    for j in range(3):
        e(f"v_cvt_pk_bf16_f32 v{vO+j}, v{vO+j}, v{vO+j}")
    for j in range(3):
        e(f"buffer_store_short v{vO+j}, v{vT1}, s[{sOut}:{sOut+3}], s{sTmp} offen offset:{j*128}")
    e.label("L_fin")
    if diag:
        e(f"s_waitcnt vmcnt(0)")
        e(f"s_memrealtime s[{sT0+4}:{sT0+5}]")
        e(f"s_getreg_b32 s{sT0+6}, hwreg(HW_REG_XCC_ID)")
        e(f"s_getreg_b32 s{sT0+7}, hwreg(HW_REG_HW_ID)")
        e(f"s_waitcnt lgkmcnt(0)")
        for j in range(8):
            e(f"v_mov_b32 v{vB+j}, s{sT0+j}")
        e(f"s_lshl_b32 s{sTmp}, s2, 9")
        e(f"s_add_u32 s{sTmp}, s{sTmp}, {NWG*1024+256}")
        e(f"v_mov_b32 v{vT1}, 0")
        e(f"s_mov_b64 exec, 1")
        e(f"buffer_store_dwordx4 v[{vB}:{vB+3}], v{vT1}, s[{sWs}:{sWs+3}], s{sTmp} offen")
        e(f"buffer_store_dwordx4 v[{vB+4}:{vB+7}], v{vT1}, s[{sWs}:{sWs+3}], s{sTmp} offen offset:16")
    e.label("L_end")
    e("s_endpgm")

    nv = (vEnd + 7) // 8 * 8
    acc_off = min(256, (vEnd + 3) // 4 * 4)
    assert vEnd <= 256
    out = HEADER
    out += f"; params: NSPLIT={NSPLIT} W={W} R={R} D={D} pol={pol.strip()} order={order} {'diag' if diag else ''}\n"
    out += f"; @launch grid=({NWG},1,1) block=({W*64},1,1) lds={max(lds, W*1024)}\n"
    out += f""".amdgcn_target "amdgcn-amd-amdhsa--gfx950"
.text
.globl {NAME}_kernel
.p2align 8
.type {NAME}_kernel,@function
{NAME}_kernel:
"""
    out += "\n".join(e.lines) + "\n"
    out += f""".section .rodata,"a"
.p2align 6
.amdhsa_kernel {NAME}_kernel
  .amdhsa_next_free_vgpr {vEnd}
  .amdhsa_next_free_sgpr 64
  .amdhsa_accum_offset {acc_off}
  .amdhsa_group_segment_fixed_size 0
  .amdhsa_kernarg_size 72
  .amdhsa_user_sgpr_count 2
  .amdhsa_user_sgpr_kernarg_segment_ptr 1
  .amdhsa_system_sgpr_workgroup_id_x 1
.end_amdhsa_kernel
"""
    return out


if __name__ == "__main__":
    ap = argparse.ArgumentParser()
    ap.add_argument("-o", default="cdna_kernels/" + NAME + ".s")
    ap.add_argument("--nsplit", type=int, default=4)
    ap.add_argument("--w", type=int, default=8)
    ap.add_argument("--r", type=int, default=2)
    ap.add_argument("--d", type=int, default=3)
    ap.add_argument("--pol", default="nt")
    ap.add_argument("--order", default="hm")
    ap.add_argument("--diag", action="store_true")
    ap.add_argument("--lds", type=int, default=0)
    ap.add_argument("--cc", type=int, default=1)
    a = ap.parse_args()
    open(a.o, "w").write(gen(a.nsplit, a.w, a.r, a.d, a.pol, a.order, a.diag, a.lds, a.cc))
```

```python
import math, argparse
from gen import Em, f2u, NAME, HEADER, NH, C, DH, ROWB, HEADB, KVB, SCALE_LOG2E, MASKRAW


def gen(T=16, N1=6, N2=12, E=12, grp=3, pol="nt", diag=False, x="", late=0):
    W, NWG = 4, 256
    NT = NWG // T
    NR = T // 4
    NWV = T * W
    SPR = 1024 // NWV
    TOT = NR * SPR
    STEP = NWV * 3072
    JUMP = STEP + (NT - 1) * HEADB
    assert N1 % grp == 0 and N2 % grp == 0 and N2 >= N1 and NR <= W
    U = N1 * 3 // math.gcd(N1, 3) // 3
    assert E * 3 >= N1 and E < SPR, (U, E)
    pol = (" " + pol) if pol else ""
    DIAG_OFF = NH * T * 1024
    WS_BYTES = DIAG_OFF + (NWG * 512 + NWG * W * 256 if diag else 0)
    LDS_SC = 0
    LDS_REC = W * TOT * 256
    LDS_FLAG = LDS_REC + NR * W * 1024
    LDS_BYTES = max(LDS_FLAG + 64, 84 * 1024)
    e = Em()
    vOff, vT0, vT1, vM, vL, vSc, vAl, vLane, vStamp, vPh, vPl = 1, 2, 3, 4, 5, 6, 7, 8, 9, 10, 11
    vS = 12
    vX = 15
    vTree = 16
    vMsave = 20
    vLa16, vOutOff, vRec = 21, 22, 23
    vO = 24
    vAcc = 28
    vQ = 52
    vR = vQ
    vRing = vQ + max(12 * NR, 4 * (T - 1))
    vEnd = vRing + 4 * max(N2, 4)
    sKV = 24
    sTeam, sMem, sWave, sOff, sIss, sCnt, sC, sTmp = 36, 37, 38, 39, 40, 41, 42, 43
    sPar = 44
    sRound, sMC = 46, 47
    sWs, sOut = 48, 52
    sT0 = 56
    sHead, sSlot, sLim, sArr, sStep, sJump, sOff0, sMr = 64, 65, 66, 67, 68, 69, 70, 71
    sMx = 72
    sRem = 76
    sEnd = sRem + T - 1

    def advance(sw=True):
        e(f"s_add_u32 s{sIss}, s{sIss}, 1")
        e(f"s_and_b32 s{sTmp}, s{sIss}, {SPR-1}")
        e(f"s_cselect_b32 s{sTmp}, s{sStep}, s{sJump}")
        e(f"s_add_u32 s{sOff}, s{sOff}, s{sTmp}")
        if sw:
            e(f"s_cmp_eq_u32 s{sIss}, {TOT}")
            e(f"s_cselect_b32 s{sKV}, s8, s{sKV}")
            e(f"s_cselect_b32 s{sKV+1}, s9, s{sKV+1}")
            e(f"s_cselect_b32 s{sOff}, s{sOff0}, s{sOff}")

    def load(i, slot, mode):
        n = i % 3
        r = vRing + 4 * slot(i)
        e(f"buffer_load_dwordx4 v[{r}:{r+3}], v{vOff}, s[{sKV}:{sKV+3}], s{sOff} offen offset:{n*128}{pol}")
        if n == 2:
            if mode == 'k': advance(True)
            elif mode == 'v': advance(False)
            elif mode == 'e': e(f"s_add_u32 s{sOff}, s{sOff}, s{sStep}")

    e(f"s_cmp_ge_u32 s2, {NWG}")
    e(f"s_cbranch_scc1 L_end")
    e(f"s_load_dwordx16 s[4:19], s[0:1], 0")
    e(f"s_load_dwordx2 s[20:21], s[0:1], 64")
    if diag: e(f"s_memrealtime s[{sT0}:{sT0+1}]")
    e(f"v_lshrrev_b32 v{vT0}, 6, v0")
    e(f"v_and_b32 v{vLane}, 63, v0")
    e(f"v_readfirstlane_b32 s{sWave}, v{vT0}")
    e(f"v_lshrrev_b32 v{vT0}, 3, v{vLane}")
    e(f"v_and_b32 v{vT1}, 7, v{vLane}")
    e(f"v_mul_u32_u24 v{vOff}, {ROWB}, v{vT0}")
    e(f"v_lshlrev_b32 v{vT1}, 4, v{vT1}")
    e(f"v_add_u32 v{vOff}, v{vOff}, v{vT1}")
    e(f"v_lshl_add_u32 v{vOutOff}, v{vT0}, 1, v{vT1}")
    e(f"s_lshr_b32 s{sTeam}, s2, {int(math.log2(T))}")
    e(f"s_and_b32 s{sMem}, s2, {T-1}")
    e(f"s_mul_i32 s{sOff}, s{sTeam}, {HEADB}")
    e(f"s_mul_i32 s{sTmp}, s{sMem}, {W*3072}")
    e(f"s_add_u32 s{sOff}, s{sOff}, s{sTmp}")
    e(f"s_mul_i32 s{sTmp}, s{sWave}, 3072")
    e(f"s_add_u32 s{sOff}, s{sOff}, s{sTmp}")
    e(f"s_mov_b32 s{sOff0}, s{sOff}")
    e(f"s_mul_i32 s{sTmp}, s{sTeam}, {ROWB}")
    e(f"v_add_u32 v{vT1}, s{sTmp}, v{vT1}")
    e(f"s_mov_b32 s{sKV+2}, {KVB}")
    e(f"s_mov_b32 s{sKV+3}, 0x00020000")
    e(f"s_mov_b32 s{sStep}, {STEP}")
    e(f"s_mov_b32 s{sJump}, {JUMP}")
    e(f"s_mov_b32 s{sIss}, 0")
    e(f"s_mov_b32 s{sC}, 0x{f2u(SCALE_LOG2E):08x}")
    e(f"s_waitcnt lgkmcnt(0)")
    if diag: e(f"s_memrealtime s[{sT0+2}:{sT0+3}]")
    e(f"s_mov_b32 s{sKV}, s6")
    e(f"s_mov_b32 s{sKV+1}, s7")
    for n in range(3):
        e(f"global_load_dwordx4 v[{vQ+4*n}:{vQ+4*n+3}], v{vT1}, s[4:5] offset:{n*128}")
    for i in range(N1):
        load(i, lambda i: i % N1, 'v')
    for r in range(1, NR):
        e(f"v_add_u32 v{vT0}, {r*NT*ROWB}, v{vT1}")
        for n in range(3):
            e(f"global_load_dwordx4 v[{vQ+12*r+4*n}:{vQ+12*r+4*n+3}], v{vT0}, s[4:5] offset:{n*128}")
    e(f"s_mov_b32 s{sWs}, s20")
    e(f"s_mov_b32 s{sWs+1}, s21")
    e(f"s_mov_b32 s{sWs+2}, {WS_BYTES}")
    e(f"s_mov_b32 s{sWs+3}, 0x00020000")
    e(f"s_mov_b32 s{sOut}, s16")
    e(f"s_mov_b32 s{sOut+1}, s17")
    e(f"s_mov_b32 s{sOut+2}, {NH*ROWB}")
    e(f"s_mov_b32 s{sOut+3}, 0x00020000")
    e(f"s_mov_b32 s{sPar}, 0xaaaaaaaa")
    e(f"s_mov_b32 s{sPar+1}, 0xaaaaaaaa")
    e(f"s_and_b32 s{sTmp}, s{sWave}, {NR-1}")
    e(f"s_mul_i32 s{sHead}, s{sTmp}, {NT}")
    e(f"s_add_u32 s{sHead}, s{sHead}, s{sTeam}")
    e(f"s_mul_i32 s{sSlot}, s{sHead}, {T*1024}")
    for k in range(1, T):
        e(f"s_add_u32 s{sTmp}, s{sMem}, {k}")
        e(f"s_and_b32 s{sTmp}, s{sTmp}, {T-1}")
        e(f"s_lshl_b32 s{sTmp}, s{sTmp}, 10")
        e(f"s_add_u32 s{sRem+k-1}, s{sTmp}, s{sSlot}")
    e(f"s_lshl_b32 s{sTmp}, s{sMem}, 10")
    e(f"s_add_u32 s{sSlot}, s{sSlot}, s{sTmp}")
    e(f"s_mul_i32 s{sArr}, s{sTeam}, {256 // NT}")
    e(f"s_mul_i32 s{sLim}, s{sHead}, {ROWB}")
    e(f"v_lshlrev_b32 v{vLa16}, 4, v{vLane}")
    e(f"s_mul_i32 s{sTmp}, s{sWave}, {TOT*256}")
    e(f"v_lshlrev_b32 v{vSc}, 2, v{vLane}")
    e(f"v_add_u32 v{vSc}, s{sTmp}, v{vSc}")
    e(f"v_lshlrev_b32 v{vRec}, 4, v0")
    e(f"v_add_u32 v{vRec}, {LDS_REC}, v{vRec}")
    e(f"v_mov_b32 v{vM}, 0x{f2u(-1e30):08x}")
    e(f"v_mov_b32 v{vTree}, 0")
    e(f"v_mov_b32 v{vTree+1}, 0")
    e(f"v_mov_b32 v{vTree+2}, 0")
    e(f"v_cndmask_b32 v{vTree+3}, v{vTree}, v{vM}, s[{sPar}:{sPar+1}]")
    e(f"s_cmp_lg_u32 s{sMem}, 0")
    e(f"s_cbranch_scc1 L_notree")
    e(f"v_and_b32 v{vT0}, 0x70, v{vOutOff}")
    e(f"v_add_u32 v{vT0}, s{sLim}, v{vT0}")
    for n in range(3):
        e(f"global_load_dwordx4 v[{vAcc+4*n}:{vAcc+4*n+3}], v{vT0}, s[10:11] offset:{n*128}")
    for n in range(3):
        e(f"global_load_dwordx4 v[{vAcc+12+4*n}:{vAcc+12+4*n+3}], v{vT0}, s[4:5] offset:{n*128}")
    e(f"v_add_u32 v{vT0}, s{sLim}, v{vOutOff}")
    for n in range(3):
        e(f"global_load_ushort v{vTree+n}, v{vT0}, s[12:13] offset:{n*128}")
    e(f"s_lshr_b32 s{sTmp}, s{sHead}, 5")
    e(f"s_lshl_b32 s{sTmp}, s{sTmp}, 1")
    e(f"v_mov_b32 v{vX}, s{sTmp}")
    e(f"global_load_ushort v{vAl}, v{vX}, s[14:15]")
    e(f"s_waitcnt vmcnt(0)")
    for j in range(4):
        for n in range(3):
            src2 = "0" if j == 0 else f"v{vS+n}"
            e(f"v_dot2_f32_bf16 v{vS+n}, v{vAcc+4*n+j}, v{vAcc+12+4*n+j}, {src2}")
    for n in range(3):
        e(f"v_lshlrev_b32 v{vTree+n}, 16, v{vTree+n}")
    e(f"v_add_f32 v{vS}, v{vS}, v{vS+1}")
    e(f"v_add_f32 v{vS}, v{vS}, v{vS+2}")
    for dp in ("quad_perm:[1,0,3,2]", "quad_perm:[2,3,0,1]", "row_half_mirror"):
        e(f"v_add_f32_dpp v{vS}, v{vS}, v{vS} {dp} row_mask:0xf bank_mask:0xf")
    e(f"v_lshlrev_b32 v{vAl}, 16, v{vAl}")
    e(f"v_sub_f32 v{vAl}, 1.0, v{vAl}")
    e(f"v_mov_b32 v{vX}, 0x{f2u(MASKRAW):08x}")
    e(f"v_fma_f32 v{vS}, v{vAl}, v{vX}, v{vS}")
    e(f"v_cndmask_b32 v{vTree+3}, 1.0, v{vS}, s[{sPar}:{sPar+1}]")
    e.label("L_notree")
    if diag:
        e(f"v_mov_b32 v{vStamp}, 0")
        e(f"s_memrealtime s[{sT0+4}:{sT0+5}]")
        e(f"s_waitcnt lgkmcnt(0)")
        e(f"v_writelane_b32 v{vStamp}, s{sT0+2}, 61")
        e(f"v_writelane_b32 v{vStamp}, s{sT0+4}, 60")
        e(f"v_writelane_b32 v{vStamp}, s{sT0+4}, 62")

    def consume(b, slot, st, mode, fn, tail=None, lt=0):
        for c0 in range(0, 3, grp):
            i0 = b + c0
            e(f"s_waitcnt vmcnt({st['issued'] - (i0 + grp)})")
            fn({c0 + k: vRing + 4 * slot(i0 + k) for k in range(grp)})
            last = c0 + grp >= 3
            if last and lt and tail: tail()
            for k in range(grp):
                if st['lim'] is None or st['issued'] < st['lim']:
                    load(st['issued'], slot, mode); st['issued'] += 1
            if last and not lt and tail: tail()

    def phase(name, total, ph, unit, handlers, exit_label):
        slot = lambda i: (ph + i) % N1
        e(f"s_mov_b32 s{sCnt}, 0")
        e.nop(3)
        e.raw(".p2align 6")
        e.label(f"L_{name}loop")
        st = {'issued': N1, 'lim': None}
        for u in range(U):
            unit(u, slot, st)
            e(f"s_add_u32 s{sCnt}, s{sCnt}, 1")
            for bnd in sorted(handlers):
                if (bnd - 1) % U == u:
                    e(f"s_cmp_eq_u32 s{sCnt}, {bnd}")
                    e(f"s_cbranch_scc1 L_{name}h{bnd}")
                    e.label(f"L_{name}r{bnd}")
            if (total - 1) % U == u:
                e(f"s_cmp_eq_u32 s{sCnt}, {total}")
                e(f"s_cbranch_scc1 {exit_label}")
        e(f"v_add_u32 v{vSc}, {U*256}, v{vSc}")
        e(f"s_branch L_{name}loop")
        for bnd in sorted(handlers):
            e.label(f"L_{name}h{bnd}")
            e.nop(3)
            handlers[bnd]()
            e.nop(2)
            e(f"s_branch L_{name}r{bnd}")
        return (ph + 3 * total) % N1

    def kdots(regs):
        for j in range(4):
            for n, r in regs.items():
                if grp == 3:
                    a, first = vS + n, j == 0
                else:
                    a, first = vS + (j % 2), (n == 0 and j < 2)
                e(f"v_dot2_f32_bf16 v{a}, v{r+j}, v{vQ+4*n+j}, {'0' if first else 'v%d' % a}")

    def vdots(regs):
        for n, r in regs.items():
            for j in range(4):
                e(f"v_dot2c_f32_bf16 v{vAcc+8*n+2*j}, v{r+j}, v{vPl}")
                e(f"v_dot2c_f32_bf16 v{vAcc+8*n+2*j+1}, v{r+j}, v{vPh}")

    def kunit(u, slot, st):
        def tail():
            e(f"v_add_f32 v{vS}, v{vS}, v{vS+1}")
            if grp == 3: e(f"v_add_f32 v{vS}, v{vS}, v{vS+2}")
            for dp in ("quad_perm:[1,0,3,2]", "quad_perm:[2,3,0,1]", "row_half_mirror"):
                e(f"v_add_f32_dpp v{vS}, v{vS}, v{vS} {dp} row_mask:0xf bank_mask:0xf")
            e(f"ds_write_b32 v{vSc}, v{vS} offset:{u*256}")
            e(f"v_max_f32 v{vM}, v{vM}, v{vS}")
        consume(3 * u, slot, st, 'k', kdots, tail, late & 1)

    def kend(r):
        def f():
            e(f"v_max_f32_dpp v{vM}, v{vM}, v{vM} row_ror:8 row_mask:0xf bank_mask:0xf")
            mv = [f"v_mov_b32 v{vQ+k}, v{vQ+12*(r+1)+k}" for k in range(12)] if r + 1 < NR else []
            e(f"v_mov_b32 v{vX}, v{vM}")
            for m in mv[:4]: e(m)
            e(f"v_permlane16_swap_b32 v{vM}, v{vX}")
            e(f"v_max_f32 v{vM}, v{vM}, v{vX}")
            e(f"v_mov_b32 v{vX}, v{vM}")
            for m in mv[4:8]: e(m)
            e(f"v_permlane32_swap_b32 v{vM}, v{vX}")
            e(f"v_max_f32 v{vM}, v{vM}, v{vX}")
            for m in mv[8:]: e(m)
            e(f"v_readfirstlane_b32 s{sMx+r}, v{vM}")
            e(f"v_mov_b32 v{vM}, 0x{f2u(-1e30):08x}")
        return f

    e(f"v_mov_b32 v{vMsave}, v{vSc}")
    ph = phase("k", TOT, 0, kunit, {SPR * (r + 1): kend(r) for r in range(NR - 1)}, "L_kdone")
    e.label("L_kdone")
    e.nop(3)
    kend(NR - 1)()

    def pcalc(u):
        e(f"ds_read_b32 v{vPh}, v{vSc} offset:{u*256}")
        e(f"s_waitcnt lgkmcnt(0)")
        e(f"v_fma_f32 v{vPh}, v{vPh}, s{sC}, -v{vAl}")
        e(f"v_exp_f32 v{vPh}, v{vPh}")
        e(f"v_cvt_pk_bf16_f32 v{vPh}, 0, v{vPh}")
        e(f"v_lshrrev_b32 v{vPl}, 16, v{vPh}")
        e(f"v_add_f32 v{vL}, v{vL}, v{vPh}")

    def wave_reduce():
        A = lambda n, ee: vAcc + 8 * n + ee
        e(f"v_add_f32_dpp v{vL}, v{vL}, v{vL} row_ror:8 row_mask:0xf bank_mask:0xf")
        for n in range(3):
            for ee in range(4):
                e(f"v_permlane32_swap_b32 v{A(n,ee)}, v{A(n,ee+4)}")
        e(f"v_mov_b32 v{vX}, v{vL}")
        for n in range(3):
            for ee in range(4):
                e(f"v_add_f32 v{A(n,ee)}, v{A(n,ee)}, v{A(n,ee+4)}")
        e(f"v_permlane16_swap_b32 v{vL}, v{vX}")
        for n in range(3):
            for ee in range(2):
                e(f"v_permlane16_swap_b32 v{A(n,ee)}, v{A(n,ee+2)}")
        e(f"v_add_f32 v{vL}, v{vL}, v{vX}")
        for n in range(3):
            for ee in range(2):
                e(f"v_add_f32 v{A(n,ee)}, v{A(n,ee)}, v{A(n,ee+2)}")
        e(f"v_mov_b32 v{vX}, v{vL}")
        for n in range(3):
            e(f"v_add_f32_dpp v{vO+n}, v{A(n,0)}, v{A(n,0)} row_ror:8 row_mask:0xf bank_mask:0x3")
        e(f"v_permlane32_swap_b32 v{vL}, v{vX}")
        for n in range(3):
            e(f"v_add_f32_dpp v{vO+n}, v{A(n,1)}, v{A(n,1)} row_ror:8 row_mask:0xf bank_mask:0xc")
        e(f"v_add_f32 v{vL}, v{vL}, v{vX}")
        e(f"v_cndmask_b32 v{vO+3}, v{vL}, v{vM}, s[{sPar}:{sPar+1}]")
        e(f"ds_write_b128 v{vRec}, v[{vO}:{vO+3}]")

    def vbegin(r):
        e(f"v_mov_b32 v{vL}, 0")
        for k in range(24):
            e(f"v_mov_b32 v{vAcc+k}, 0")
        e(f"v_mov_b32 v{vM}, s{sMx+r}")
        e(f"v_mul_f32 v{vAl}, s{sC}, v{vM}")

    def vend(r):
        def f():
            wave_reduce()
            e(f"v_add_u32 v{vRec}, {W*1024}, v{vRec}")
            vbegin(r + 1)
        return f

    def vunit(u, slot, st):
        if late & 2:
            pfin()
            def tail():
                e(f"ds_read_b32 v{vT0}, v{vSc} offset:{(u+1)*256}")
                e(f"s_waitcnt lgkmcnt(0)")
            consume(3 * u, slot, st, 'v', vdots, tail, 1)
        elif late & 4:
            def fn(regs):
                if 0 in regs: pcalc(u)
                vdots(regs)
            consume(3 * u, slot, st, 'v', fn)
        else:
            pcalc(u)
            consume(3 * u, slot, st, 'v', vdots)

    def pfin():
        e(f"v_fma_f32 v{vPh}, v{vT0}, s{sC}, -v{vAl}")
        e(f"v_exp_f32 v{vPh}, v{vPh}")
        e(f"v_cvt_pk_bf16_f32 v{vPh}, 0, v{vPh}")
        e(f"v_lshrrev_b32 v{vPl}, 16, v{vPh}")
        e(f"v_add_f32 v{vL}, v{vL}, v{vPh}")

    e(f"v_mov_b32 v{vSc}, v{vMsave}")
    vbegin(0)
    if late & 2:
        e(f"ds_read_b32 v{vT0}, v{vSc}")
        e(f"s_waitcnt lgkmcnt(0)")
    ph = phase("v", TOT - E, ph, vunit, {SPR * (r + 1): vend(r) for r in range(NR - 1)}, "L_endgame")
    e.label("L_endgame")
    e(f"v_add_u32 v{vSc}, {(TOT-E)*256}, v{vMsave}")
    order = [(ph + k) % N1 for k in range(N1)] + list(range(N1, N2))
    slot2 = lambda i: order[i % N2]
    st = {'issued': N1, 'lim': E * 3}
    while st['issued'] < min(N2, E * 3):
        load(st['issued'], slot2, 'e'); st['issued'] += 1
    for u in range(E):
        pcalc(u)
        consume(3 * u, slot2, st, 'e', vdots)
    if diag:
        e(f"s_memrealtime s[{sT0+2}:{sT0+3}]")
        e(f"s_waitcnt lgkmcnt(0)")
        for j in range(4):
            e(f"v_mov_b32 v{vRing+j}, s{sT0+j}")
        e(f"s_lshl_b32 s{sTmp}, s2, 9")
        e(f"s_add_u32 s{sTmp}, s{sTmp}, {DIAG_OFF}")
        e(f"s_lshl_b32 s{sCnt}, s{sWave}, 4")
        e(f"s_add_u32 s{sTmp}, s{sTmp}, s{sCnt}")
        e(f"v_mov_b32 v{vT1}, 0")
        e(f"s_mov_b64 exec, 1")
        e(f"buffer_store_dwordx4 v[{vRing}:{vRing+3}], v{vT1}, s[{sWs}:{sWs+3}], s{sTmp} offen")
        e(f"s_mov_b64 exec, -1")
        e(f"s_mul_i32 s{sTmp}, s2, {W*256}")
        e(f"s_add_u32 s{sTmp}, s{sTmp}, {DIAG_OFF+NWG*512}")
        e(f"v_lshlrev_b32 v{vT1}, 2, v0")
        e(f"buffer_store_dword v{vStamp}, v{vT1}, s[{sWs}:{sWs+3}], s{sTmp} offen")
        e.nop(4)
    wave_reduce()
    e(f"s_lshl_b32 s{sTmp}, s{sWave}, 12")
    e(f"s_add_u32 s{sTmp}, s{sTmp}, {LDS_REC}")
    e(f"v_add_u32 v{vT1}, s{sTmp}, v{vLa16}")
    e(f"s_waitcnt lgkmcnt(0)")
    e(f"s_barrier")
    if NR < W:
        e(f"s_cmp_ge_u32 s{sWave}, {NR}")
        e(f"s_cbranch_scc1 L_end")
    if diag: e(f"s_memrealtime s[{sT0}:{sT0+1}]")

    vMW = vS
    def combine(recs, out):
        n = len(recs)
        F = vAcc
        e(f"v_max_f32 v{vMW}, v{recs[0]+3}, v{recs[1]+3}")
        i = 2
        while i < n:
            if i + 1 < n:
                e(f"v_max3_f32 v{vMW}, v{vMW}, v{recs[i]+3}, v{recs[i+1]+3}"); i += 2
            else:
                e(f"v_max_f32 v{vMW}, v{vMW}, v{recs[i]+3}"); i += 1
        for i in range(n):
            e(f"v_sub_f32 v{F+i}, v{recs[i]+3}, v{vMW}")
        for i in range(n):
            e(f"v_mul_f32 v{F+i}, s{sC}, v{F+i}")
        for i in range(n):
            e(f"v_exp_f32 v{F+i}, v{F+i}")
        for i in range(n):
            e(f"v_mov_b32_dpp v{F+i}, v{F+i} quad_perm:[1,1,3,3] row_mask:0xf bank_mask:0xf")
        for j in range(4):
            e(f"v_mul_f32 v{out+j}, v{F}, v{recs[0]+j}")
        for i in range(1, n):
            for j in range(4):
                e(f"v_fmac_f32 v{out+j}, v{F+i}, v{recs[i]+j}")

    vB = vRing
    for w in range(W):
        e(f"ds_read_b128 v[{vB+4*w}:{vB+4*w+3}], v{vT1} offset:{w*1024}")
    e(f"s_waitcnt lgkmcnt(0)")
    combine([vB + 4 * w for w in range(W)] + [vTree], vO)
    e(f"v_cndmask_b32 v{vO+3}, v{vO+3}, v{vMW}, s[{sPar}:{sPar+1}]")
    e(f"buffer_store_dwordx4 v[{vO}:{vO+3}], v{vLa16}, s[{sWs}:{sWs+3}], s{sSlot} offen sc1")
    e(f"v_mov_b32 v{vT0}, {LDS_FLAG}")
    e(f"s_mov_b32 s{sTmp}, 1")
    e(f"s_waitcnt vmcnt(0)")
    e(f"s_barrier")
    if diag: e(f"s_memrealtime s[{sT0+2}:{sT0+3}]")
    e(f"s_cmp_lg_u32 s{sWave}, 0")
    e(f"s_cbranch_scc1 L_wait")
    e(f"s_atomic_add s{sTmp}, s[18:19], s{sArr} glc")
    e(f"s_waitcnt lgkmcnt(0)")
    e(f"v_mov_b32 v{vX}, s{sTmp}")
    e(f"ds_write_b32 v{vT0}, v{vX}")
    e(f"s_waitcnt lgkmcnt(0)")
    e(f"s_barrier")
    e(f"s_branch L_got")
    e.label("L_wait")
    e(f"s_barrier")
    e(f"ds_read_b32 v{vX}, v{vT0}")
    e(f"s_waitcnt lgkmcnt(0)")
    e(f"v_readfirstlane_b32 s{sTmp}, v{vX}")
    e.label("L_got")
    e(f"s_cmp_lg_u32 s{sTmp}, {T-1}")
    e(f"s_cbranch_scc1 L_fin")
    for m in range(T - 1):
        e(f"buffer_load_dwordx4 v[{vR+4*m}:{vR+4*m+3}], v{vLa16}, s[{sWs}:{sWs+3}], s{sRem+m} offen sc1")
    e(f"s_waitcnt vmcnt(0)")
    combine([vO] + [vR + 4 * k for k in range(T - 1)], vB)
    e(f"v_rcp_f32 v{vB+3}, v{vB+3}")
    e(f"v_mov_b32_dpp v{vB+3}, v{vB+3} quad_perm:[0,0,2,2] row_mask:0xf bank_mask:0xf")
    for j in range(3):
        e(f"v_mul_f32 v{vB+j}, v{vB+j}, v{vB+3}")
    for j in range(3):
        e(f"v_cvt_pk_bf16_f32 v{vB+j}, v{vB+j}, v{vB+j}")
    for j in range(3):
        e(f"buffer_store_short v{vB+j}, v{vOutOff}, s[{sOut}:{sOut+3}], s{sLim} offen offset:{j*128}")
    e.label("L_fin")
    if diag:
        e(f"s_cmp_lg_u32 s{sWave}, 1")
        e(f"s_cbranch_scc1 L_end")
        e(f"s_waitcnt vmcnt(0)")
        e(f"s_memrealtime s[{sT0+4}:{sT0+5}]")
        e(f"s_getreg_b32 s{sT0+6}, hwreg(HW_REG_XCC_ID)")
        e(f"s_getreg_b32 s{sT0+7}, hwreg(HW_REG_HW_ID)")
        e(f"s_waitcnt lgkmcnt(0)")
        for j in range(8):
            e(f"v_mov_b32 v{vR+j}, s{sT0+j}")
        e(f"s_lshl_b32 s{sTmp}, s2, 9")
        e(f"s_add_u32 s{sTmp}, s{sTmp}, {DIAG_OFF+256}")
        e(f"v_mov_b32 v{vT1}, 0")
        e(f"s_mov_b64 exec, 1")
        e(f"buffer_store_dwordx4 v[{vR}:{vR+3}], v{vT1}, s[{sWs}:{sWs+3}], s{sTmp} offen")
        e(f"buffer_store_dwordx4 v[{vR+4}:{vR+7}], v{vT1}, s[{sWs}:{sWs+3}], s{sTmp} offen offset:16")
    e.label("L_end")
    e("s_endpgm")

    acc_off = (vEnd + 3) // 4 * 4
    assert vEnd <= 256 and sEnd <= 100
    out = HEADER
    out += f"; params: v8 v4 late={late} T={T} N1={N1} N2={N2} E={E} grp={grp} pol={pol.strip()} {'diag' if diag else ''} off={DIAG_OFF}\n"
    out += f"; @launch grid=({NWG},1,1) block=({W*64},1,1) lds={LDS_BYTES}\n"
    out += f""".amdgcn_target "amdgcn-amd-amdhsa--gfx950"
.text
.globl {NAME}_kernel
.p2align 8
.type {NAME}_kernel,@function
{NAME}_kernel:
"""
    out += "\n".join(e.lines) + "\n"
    out += f""".section .rodata,"a"
.p2align 6
.amdhsa_kernel {NAME}_kernel
  .amdhsa_next_free_vgpr {vEnd}
  .amdhsa_next_free_sgpr {sEnd}
  .amdhsa_accum_offset {acc_off}
  .amdhsa_group_segment_fixed_size 0
  .amdhsa_kernarg_size 72
  .amdhsa_user_sgpr_count 2
  .amdhsa_user_sgpr_kernarg_segment_ptr 1
  .amdhsa_system_sgpr_workgroup_id_x 1
.end_amdhsa_kernel
"""
    return out


if __name__ == "__main__":
    ap = argparse.ArgumentParser()
    ap.add_argument("-o", default="cdna_kernels/" + NAME + ".s")
    ap.add_argument("--t", type=int, default=16)
    ap.add_argument("--n1", type=int, default=6)
    ap.add_argument("--n2", type=int, default=12)
    ap.add_argument("--e", type=int, default=12)
    ap.add_argument("--grp", type=int, default=3)
    ap.add_argument("--pol", default="nt")
    ap.add_argument("--x", default="")
    ap.add_argument("--late", type=int, default=0)
    ap.add_argument("--diag", action="store_true")
    a = ap.parse_args()
    open(a.o, "w").write(gen(a.t, a.n1, a.n2, a.e, a.grp, a.pol, a.diag, a.x, a.late))
```

```python
import math, argparse
from gen import Em, f2u, NAME, HEADER, NH, C, DH, ROWB, HEADB, KVB, SCALE_LOG2E, MASKRAW


def gen(T=16, RU=4, W0=2.0, E=8, I0=2, KMAX=3, KMIN=1, pol="nt", diag=False, x="", rotm=4, opol=" sc1", par=0.0,
        fb=0, gain=0.7, G=8, PU=8, dly=40, wmin=1.0, wmax=4.0, tries=3, bias=1.0, wsc=0):
    W, NWG = 4, 256
    NT = NWG // T
    NR = T // 4
    NWV = T * W
    SPR = 1024 // NWV
    TOT = NR * SPR
    STEP = NWV * 3072
    JUMP = STEP + (NT - 1) * HEADB
    assert NR == 4 and SPR % RU == 0 and E % RU == 0 and E >= RU and PU % RU == 0
    pol = (" " + pol) if pol else ""
    NP = 2 * TOT // PU
    HINT_OFF = NH * T * 1024
    ARR_OFF = HINT_OFF + NP * NWG * 128
    DIAG_OFF = ARR_OFF + NT * 256
    WS_BYTES = DIAG_OFF + (NWG * 512 + NWG * W * 256 if diag else 0)
    LDS_FLAG = 0
    LDS_OWN = 64
    LDS_REF = LDS_OWN + 4 * NP + 64
    LDS_SC = 1024
    assert LDS_REF + 4 * NP <= LDS_SC
    LDS_REC = LDS_SC + W * TOT * 256
    LDS_TREE = LDS_REC + NR * W * 1024
    LDS_BYTES = LDS_TREE + NR * 1024
    assert LDS_BYTES > 81920
    e = Em()
    vOff, vT0, vT1, vM, vL, vSc, vAl, vLane, vStamp, vPh, vPl = 1, 2, 3, 4, 5, 6, 7, 8, 9, 10, 11
    vS = 12
    vX = 15
    vSc0, vLa16, vOutOff, vRec = 16, 17, 18, 19
    vQoff, vHdr, vHm, vHl = 20, 21, 22, 23
    vO = 24
    vAcc = 28
    vQ = 52
    vLat, vOwn, vZero = 132, 136, 137
    vRing = 76
    vR = 52
    vEnd = max(vRing + 12 * RU, vR + 60 + 20, 138)
    vB = vR + 60
    sKV = 24
    sTeam, sMem, sWave, sOff, sIss, sCnt, sC, sTmp = 36, 37, 38, 39, 40, 41, 42, 43
    sPar = 44
    sPos, sBase = 46, 47
    sWs, sOut = 48, 52
    sT0 = 56
    sHead, sSlot, sLim, sArr, sStep, sJump, sOff0, sW = 64, 65, 66, 67, 68, 69, 70, 71
    sMx = 72
    sAcc, sK, sPt, sTown = 28, 29, 30, 31
    sTm = 32
    sStart, sTprev = 34, 35
    sRem = 76
    sEnd = sRem + 16
    WFIX = int(round(W0 * 256))
    nl = [0]

    def advance(sw):
        e(f"s_add_u32 s{sIss}, s{sIss}, 1")
        e(f"s_and_b32 s{sTmp}, s{sIss}, {SPR-1}")
        e(f"s_cselect_b32 s{sTmp}, s{sStep}, s{sJump}")
        e(f"s_add_u32 s{sBase}, s{sBase}, s{sTmp}")
        if sw:
            e(f"s_cmp_eq_u32 s{sIss}, {TOT}")
            e(f"s_cselect_b32 s{sKV}, s8, s{sKV}")
            e(f"s_cselect_b32 s{sKV+1}, s9, s{sKV+1}")
            e(f"s_cselect_b32 s{sBase}, s{sOff0}, s{sBase}")
        if rotm:
            assert (TOT * rotm) % NWV == 0
            e(f"s_add_u32 s{sPos}, s{sPos}, {rotm}")
            e(f"s_and_b32 s{sPos}, s{sPos}, {NWV-1}")
        e(f"s_mul_i32 s{sTmp}, s{sPos}, 3072")
        e(f"s_add_u32 s{sOff}, s{sBase}, s{sTmp}")

    def issue(ru, sw):
        for n in range(3):
            r = vRing + 12 * ru + 4 * n
            e(f"buffer_load_dwordx4 v[{r}:{r+3}], v{vOff}, s[{sKV}:{sKV+3}], s{sOff} offen offset:{n*128}{pol}")
        advance(sw)

    def gate():
        k = nl[0]; nl[0] += 1
        e(f"s_add_u32 s{sAcc}, s{sAcc}, s{sW}")
        e(f"s_lshr_b32 s{sK}, s{sAcc}, 8")
        e(f"s_and_b32 s{sAcc}, s{sAcc}, 255")
        for lv in range(KMAX, KMIN - 1, -1):
            e(f"s_cmp_gt_u32 s{sK}, {lv}")
            e(f"s_cbranch_scc1 L_go{k}")
            e(f"s_waitcnt vmcnt({3*(lv-1) if lv > 1 else 2})")
        e.label(f"L_go{k}")

    def stamp(k):
        if diag:
            e(f"s_memrealtime s[{sT0+4}:{sT0+5}]")
            e(f"s_waitcnt lgkmcnt(0)")
            e(f"v_writelane_b32 v{vStamp}, s{sT0+4}, {k}")

    def mk_ws():
        e(f"s_mov_b32 s{sWs}, s20")
        e(f"s_mov_b32 s{sWs+1}, s21")
        e(f"s_mov_b32 s{sWs+2}, {WS_BYTES}")
        e(f"s_mov_b32 s{sWs+3}, 0x00020000")

    e(f"s_cmp_ge_u32 s2, {NWG}")
    e(f"s_cbranch_scc1 L_end")
    e(f"s_load_dwordx16 s[4:19], s[0:1], 0")
    e(f"s_load_dwordx2 s[20:21], s[0:1], 64")
    if diag: e(f"s_memrealtime s[{sT0}:{sT0+1}]")
    e(f"v_lshrrev_b32 v{vT0}, 6, v0")
    e(f"v_and_b32 v{vLane}, 63, v0")
    e(f"v_readfirstlane_b32 s{sWave}, v{vT0}")
    e(f"v_lshrrev_b32 v{vT0}, 3, v{vLane}")
    e(f"v_and_b32 v{vT1}, 7, v{vLane}")
    e(f"v_mul_u32_u24 v{vOff}, {ROWB}, v{vT0}")
    e(f"v_lshlrev_b32 v{vT1}, 4, v{vT1}")
    e(f"v_add_u32 v{vOff}, v{vOff}, v{vT1}")
    e(f"v_lshl_add_u32 v{vOutOff}, v{vT0}, 1, v{vT1}")
    e(f"s_lshr_b32 s{sTeam}, s2, {int(math.log2(T))}")
    e(f"s_and_b32 s{sMem}, s2, {T-1}")
    e(f"s_mul_i32 s{sBase}, s{sTeam}, {HEADB}")
    e(f"s_lshl_b32 s{sPos}, s{sMem}, 2")
    e(f"s_add_u32 s{sPos}, s{sPos}, s{sWave}")
    e(f"s_mul_i32 s{sTmp}, s{sPos}, 3072")
    e(f"s_add_u32 s{sOff}, s{sBase}, s{sTmp}")
    e(f"s_mov_b32 s{sOff0}, s{sBase}")
    e(f"s_mul_i32 s{sTmp}, s{sTeam}, {ROWB}")
    e(f"v_add_u32 v{vQoff}, s{sTmp}, v{vT1}")
    e(f"s_mov_b32 s{sKV+2}, {KVB}")
    e(f"s_mov_b32 s{sKV+3}, 0x00020000")
    e(f"s_mov_b32 s{sStep}, {STEP}")
    e(f"s_mov_b32 s{sJump}, {JUMP}")
    e(f"s_mov_b32 s{sIss}, 0")
    e(f"s_mov_b32 s{sPar}, 0xaaaaaaaa")
    e(f"s_mov_b32 s{sPar+1}, 0xaaaaaaaa")
    e(f"s_cmp_eq_u32 s{sWave}, {W}")
    e(f"s_waitcnt lgkmcnt(0)")
    e(f"s_cbranch_scc1 L_helper")
    if diag: e(f"s_memrealtime s[{sT0+2}:{sT0+3}]")
    e(f"s_mov_b32 s{sKV}, s6")
    e(f"s_mov_b32 s{sKV+1}, s7")
    issue(0, False)
    for n in range(3):
        e(f"global_load_dwordx4 v[{vQ+4*n}:{vQ+4*n+3}], v{vQoff}, s[4:5] offset:{n*128}")
    for u in range(1, I0):
        issue(u, False)
    e(f"s_mov_b32 s{sC}, 0x{f2u(SCALE_LOG2E):08x}")
    e(f"s_mov_b32 s{sW}, {WFIX}")
    if par:
        e(f"s_bitcmp1_b32 s2, 0")
        e(f"s_mov_b32 s{sW}, {WFIX - int(par*256)}")
        e(f"s_cselect_b32 s{sW}, {WFIX + int(par*256)}, s{sW}")
    e(f"s_lshl_b32 s{sAcc}, s{sWave}, 6")
    e(f"s_mov_b32 s{sPt}, 0")
    e(f"s_mov_b32 s{sTprev}, {1200 if fb >= 3 else 0}")
    if fb >= 3:
        e(f"v_mov_b32 v{vZero}, 0")
        e(f"v_mov_b32 v{vOwn}, 0")
    e(f"s_mul_i32 s{sTmp}, s{sWave}, {TOT*256}")
    e(f"s_add_u32 s{sTmp}, s{sTmp}, {LDS_SC}")
    e(f"v_lshlrev_b32 v{vSc}, 2, v{vLane}")
    e(f"v_add_u32 v{vSc}, s{sTmp}, v{vSc}")
    e(f"v_mov_b32 v{vSc0}, v{vSc}")
    e(f"v_mov_b32 v{vM}, 0x{f2u(-1e30):08x}")
    if diag:
        e(f"v_mov_b32 v{vStamp}, 0")
        e(f"s_memrealtime s[{sT0+4}:{sT0+5}]")
        e(f"s_waitcnt lgkmcnt(0)")
        e(f"v_writelane_b32 v{vStamp}, s{sT0+2}, 61")
        e(f"v_writelane_b32 v{vStamp}, s{sT0+4}, 60")
        e(f"v_writelane_b32 v{vStamp}, s{sT0+4}, 62")
    for u in range(I0, RU):
        gate()
        issue(u, False)

    def qload(r):
        e(f"v_add_u32 v{vT0}, {r*NT*ROWB}, v{vQoff}")
        for n in range(3):
            e(f"global_load_dwordx4 v[{vQ+12+4*n}:{vQ+12+4*n+3}], v{vT0}, s[4:5] offset:{n*128}")
    qload(1)

    def control():
        if not fb: return
        k = nl[0]; nl[0] += 1
        if fb == 4:
            e(f"s_memrealtime s[{sTm}:{sTm+1}]")
            e(f"ds_read_b96 v[{vLat}:{vLat+2}], v{vZero} offset:{LDS_REF}")
            e(f"s_add_u32 s{sPt}, s{sPt}, {RU}")
            e(f"s_and_b32 s{sTmp}, s{sCnt}, {PU-1}")
            e(f"s_xor_b32 s{sK}, s{sWave}, 1")
            e(f"s_or_b32 s{sTmp}, s{sTmp}, s{sK}")
            e(f"s_waitcnt lgkmcnt(0)")
            e(f"s_cbranch_scc1 L_nopt{k}")
            e(f"s_lshr_b32 s{sTmp}, s{sPt}, {int(math.log2(PU)) - 2}")
            e(f"v_mov_b32 v{vT1}, s{sTmp}")
            e(f"v_mov_b32 v{vX}, s{sTm}")
            e(f"ds_write_b32 v{vT1}, v{vX} offset:{LDS_OWN-4}")
            e.label(f"L_nopt{k}")
            e(f"v_readfirstlane_b32 s{sK}, v{vLat}")
            e(f"v_readfirstlane_b32 s{sTmp}, v{vLat+1}")
            e(f"v_readfirstlane_b32 s{sTown}, v{vLat+2}")
            e(f"s_sub_i32 s{sK}, s{sPt}, s{sK}")
            e(f"s_sub_i32 s{sTmp}, s{sTm}, s{sTmp}")
            e(f"s_mul_i32 s{sTown}, s{sTown}, s{sK}")
            e(f"s_add_i32 s{sK}, s{sK}, 16")
            e(f"s_cmp_lt_u32 s{sK}, 64")
            e(f"s_cbranch_scc0 L_noctl{k}")
            e(f"s_cmp_lt_u32 s{sTmp}, 2000")
            e(f"s_cbranch_scc0 L_noctl{k}")
            e(f"s_ashr_i32 s{sTown}, s{sTown}, 4")
            e(f"s_sub_i32 s{sTmp}, s{sTmp}, s{sTown}")
            e(f"s_add_i32 s{sK}, s{sTmp}, 600")
            e(f"s_cmp_lt_u32 s{sK}, s{sTprev}")
            e(f"s_cbranch_scc0 L_noctl{k}")
            e(f"s_mul_i32 s{sTmp}, s{sTmp}, {int(round(gain * 256 * 256 / 100))}")
            e(f"s_ashr_i32 s{sTmp}, s{sTmp}, 8")
            e(f"s_add_i32 s{sTmp}, s{sTmp}, {WFIX}")
            e(f"s_max_i32 s{sTmp}, s{sTmp}, {int(wmin*256)}")
            e(f"s_min_i32 s{sW}, s{sTmp}, {int(wmax*256)}")
            e.label(f"L_noctl{k}")
            return
        if fb == 3:
            e(f"s_memrealtime s[{sTm}:{sTm+1}]")
            e(f"ds_read_b64 v[{vLat}:{vLat+1}], v{vZero} offset:{LDS_REF}")
            e(f"s_and_b32 s{sTmp}, s{sCnt}, {PU-1}")
            e(f"s_waitcnt lgkmcnt(0)")
            e(f"s_cbranch_scc1 L_nopt{k}")
            e(f"s_mov_b32 m0, s{sPt}")
            e(f"s_lshl_b32 s{sTmp}, s{sPt}, 2")
            e(f"v_writelane_b32 v{vOwn}, s{sTm}, m0")
            e(f"s_add_u32 s{sPt}, s{sPt}, 1")
            e(f"s_cmp_lg_u32 s{sWave}, 1")
            e(f"s_cbranch_scc1 L_nopt{k}")
            e(f"v_mov_b32 v{vT1}, s{sTmp}")
            e(f"v_mov_b32 v{vX}, s{sTm}")
            e(f"ds_write_b32 v{vT1}, v{vX} offset:{LDS_OWN}")
            e.label(f"L_nopt{k}")
            e(f"v_readfirstlane_b32 s{sK}, v{vLat}")
            e(f"v_readfirstlane_b32 s{sTmp}, v{vLat+1}")
            e(f"s_cmp_lt_u32 s{sK}, s{sPt}")
            e(f"s_cbranch_scc0 L_noctl{k}")
            e(f"s_mov_b32 m0, s{sK}")
            e.nop(1)
            e(f"v_readlane_b32 s{sK}, v{vOwn}, m0")
            e(f"s_sub_i32 s{sTmp}, s{sK}, s{sTmp}")
            e(f"s_add_i32 s{sK}, s{sTmp}, 600")
            e(f"s_cmp_lt_u32 s{sK}, s{sTprev}")
            e(f"s_cbranch_scc0 L_noctl{k}")
            e(f"s_mul_i32 s{sTmp}, s{sTmp}, {int(round(gain * 256 * 256 / 100))}")
            e(f"s_ashr_i32 s{sTmp}, s{sTmp}, 8")
            e(f"s_add_i32 s{sTmp}, s{sTmp}, {WFIX}")
            e(f"s_max_i32 s{sTmp}, s{sTmp}, {int(wmin*256)}")
            e(f"s_min_i32 s{sW}, s{sTmp}, {int(wmax*256)}")
            e.label(f"L_noctl{k}")
            return
        e(f"s_and_b32 s{sTmp}, s{sCnt}, {PU-1}")
        e(f"s_cbranch_scc1 L_noctl{k}")
        e(f"s_memrealtime s[{sTm}:{sTm+1}]")
        e(f"s_lshl_b32 s{sTmp}, s{sPt}, 2")
        e(f"v_mov_b32 v{vT1}, s{sTmp}")
        e(f"ds_read_b32 v{vX}, v{vT1} offset:{LDS_REF-4}")
        e(f"s_waitcnt lgkmcnt(0)")
        e(f"v_readfirstlane_b32 s{sTmp}, v{vX}")
        e(f"v_mov_b32 v{vX}, s{sTm}")
        e(f"s_cmp_lg_u32 s{sWave}, 1")
        e(f"s_cbranch_scc1 L_nopub{k}")
        e(f"ds_write_b32 v{vT1}, v{vX} offset:{LDS_OWN}")
        e.label(f"L_nopub{k}")
        e(f"s_sub_i32 s{sTmp}, s{sTprev}, s{sTmp}")
        e(f"s_mov_b32 s{sTprev}, s{sTm}")
        e(f"s_add_u32 s{sPt}, s{sPt}, 1")
        e(f"s_add_i32 s{sK}, s{sTmp}, 600")
        e(f"s_cmp_lt_u32 s{sK}, 1200")
        e(f"s_cbranch_scc0 L_noctl{k}")
        e(f"s_mul_i32 s{sTmp}, s{sTmp}, {int(round(gain * 256 * 256 / 100))}")
        e(f"s_ashr_i32 s{sTmp}, s{sTmp}, 8")
        e(f"s_add_i32 s{sTmp}, s{sTmp}, {WFIX}")
        e(f"s_max_i32 s{sTmp}, s{sTmp}, {KMIN*256}")
        e(f"s_min_i32 s{sW}, s{sTmp}, {(KMAX+1)*256}")
        e.label(f"L_noctl{k}")

    def phase(name, total, unit, handlers, sw):
        e(f"s_mov_b32 s{sCnt}, 0")
        e.nop(3)
        e.raw(".p2align 6")
        e.label(f"L_{name}loop")
        for u in range(RU):
            e(f"s_waitcnt vmcnt({3*(RU-1)})")
            unit(u)
            gate()
            issue(u, sw)
        e(f"v_add_u32 v{vSc}, {RU*256}, v{vSc}")
        e(f"s_add_u32 s{sCnt}, s{sCnt}, {RU}")
        control()
        for bnd in sorted(handlers):
            e(f"s_cmp_eq_u32 s{sCnt}, {bnd}")
            e(f"s_cbranch_scc1 L_{name}h{bnd}")
        e(f"s_cmp_lg_u32 s{sCnt}, {total}")
        e(f"s_cbranch_scc1 L_{name}loop")
        e(f"s_branch L_{name}done")
        for bnd in sorted(handlers):
            e.label(f"L_{name}h{bnd}")
            e.nop(3)
            handlers[bnd]()
            e.nop(2)
            e(f"s_branch L_{name}loop")
        e.label(f"L_{name}done")
        e.nop(3)

    def kunit(u):
        r0 = vRing + 12 * u
        for j in range(4):
            for n in range(3):
                e(f"v_dot2_f32_bf16 v{vS+n}, v{r0+4*n+j}, v{vQ+4*n+j}, {'0' if j == 0 else 'v%d' % (vS+n)}")
        e(f"v_add_f32 v{vS}, v{vS}, v{vS+1}")
        e(f"v_add_f32 v{vS}, v{vS}, v{vS+2}")
        for dp in ("quad_perm:[1,0,3,2]", "quad_perm:[2,3,0,1]", "row_half_mirror"):
            e(f"v_add_f32_dpp v{vS}, v{vS}, v{vS} {dp} row_mask:0xf bank_mask:0xf")
        e(f"ds_write_b32 v{vSc}, v{vS} offset:{u*256}")
        e(f"v_max_f32 v{vM}, v{vM}, v{vS}")

    def setup_tail(part):
        if part == 1:
            for k in range(1, T):
                e(f"s_add_u32 s{sTmp}, s{sMem}, {k}")
                e(f"s_and_b32 s{sTmp}, s{sTmp}, {T-1}")
                e(f"s_lshl_b32 s{sTmp}, s{sTmp}, 10")
                e(f"s_add_u32 s{sRem+k-1}, s{sTmp}, s{sSlot}")
            e(f"s_lshl_b32 s{sTmp}, s{sMem}, 10")
            e(f"s_add_u32 s{sSlot}, s{sSlot}, s{sTmp}")
            return
        mk_ws()
        e(f"s_mov_b32 s{sOut}, s16")
        e(f"s_mov_b32 s{sOut+1}, s17")
        e(f"s_mov_b32 s{sOut+2}, {NH*ROWB}")
        e(f"s_mov_b32 s{sOut+3}, 0x00020000")
        e(f"s_mul_i32 s{sHead}, s{sWave}, {NT}")
        e(f"s_add_u32 s{sHead}, s{sHead}, s{sTeam}")
        e(f"s_mul_i32 s{sSlot}, s{sHead}, {T*1024}")
        e(f"s_add_u32 s{sTmp}, s{sMem}, 1")
        e(f"v_add_u32 v{vHdr}, s{sTmp}, v{vLane}")
        e(f"v_and_b32 v{vHdr}, {T-1}, v{vHdr}")
        e(f"v_lshlrev_b32 v{vHdr}, 10, v{vHdr}")
        e(f"v_add_u32 v{vHdr}, s{sSlot}, v{vHdr}")
        if wsc:
            e(f"s_lshl_b32 s{sArr}, s{sTeam}, 8")
            e(f"s_add_u32 s{sArr}, s{sArr}, {ARR_OFF}")
        else:
            e(f"s_mul_i32 s{sArr}, s{sTeam}, {256 // NT}")
        e(f"s_mul_i32 s{sLim}, s{sHead}, {ROWB}")
        e(f"v_lshlrev_b32 v{vLa16}, 4, v{vLane}")
        e(f"v_lshlrev_b32 v{vRec}, 4, v0")
        e(f"v_add_u32 v{vRec}, {LDS_REC}, v{vRec}")

    def kend(r):
        def f():
            stamp(r)
            e(f"v_max_f32_dpp v{vM}, v{vM}, v{vM} row_ror:8 row_mask:0xf bank_mask:0xf")
            mv = [f"v_mov_b32 v{vQ+k}, v{vQ+12+k}" for k in range(12)] if r + 1 < NR else []
            e(f"v_mov_b32 v{vX}, v{vM}")
            for m in mv[:4]: e(m)
            e(f"v_permlane16_swap_b32 v{vM}, v{vX}")
            e(f"v_max_f32 v{vM}, v{vM}, v{vX}")
            e(f"v_mov_b32 v{vX}, v{vM}")
            for m in mv[4:8]: e(m)
            e(f"v_permlane32_swap_b32 v{vM}, v{vX}")
            e(f"v_max_f32 v{vM}, v{vM}, v{vX}")
            for m in mv[8:]: e(m)
            e(f"v_readfirstlane_b32 s{sMx+r}, v{vM}")
            e(f"v_mov_b32 v{vM}, 0x{f2u(-1e30):08x}")
            if r + 2 < NR: qload(r + 2)
            if r == 2: setup_tail(1)
        return f

    setup_tail(0)
    phase("k", TOT, kunit, {SPR * (r + 1): kend(r) for r in range(NR - 1)}, True)
    kend(NR - 1)()

    def vunit(u):
        r0 = vRing + 12 * (u % RU)
        e(f"v_fma_f32 v{vPh}, v{vT0}, s{sC}, -v{vAl}")
        e(f"ds_read_b32 v{vT0}, v{vSc} offset:{(u+1)*256}")
        e(f"v_exp_f32 v{vPh}, v{vPh}")
        e(f"v_cvt_pk_bf16_f32 v{vPh}, 0, v{vPh}")
        e(f"v_lshrrev_b32 v{vPl}, 16, v{vPh}")
        e(f"v_add_f32 v{vL}, v{vL}, v{vPh}")
        for n in range(3):
            for j in range(4):
                e(f"v_dot2c_f32_bf16 v{vAcc+8*n+2*j}, v{r0+4*n+j}, v{vPl}")
                e(f"v_dot2c_f32_bf16 v{vAcc+8*n+2*j+1}, v{r0+4*n+j}, v{vPh}")
        e(f"s_waitcnt lgkmcnt(0)")

    def wave_reduce():
        A = lambda n, ee: vAcc + 8 * n + ee
        e(f"v_add_f32_dpp v{vL}, v{vL}, v{vL} row_ror:8 row_mask:0xf bank_mask:0xf")
        for n in range(3):
            for ee in range(4):
                e(f"v_permlane32_swap_b32 v{A(n,ee)}, v{A(n,ee+4)}")
        e(f"v_mov_b32 v{vX}, v{vL}")
        for n in range(3):
            for ee in range(4):
                e(f"v_add_f32 v{A(n,ee)}, v{A(n,ee)}, v{A(n,ee+4)}")
        e(f"v_permlane16_swap_b32 v{vL}, v{vX}")
        for n in range(3):
            for ee in range(2):
                e(f"v_permlane16_swap_b32 v{A(n,ee)}, v{A(n,ee+2)}")
        e(f"v_add_f32 v{vL}, v{vL}, v{vX}")
        for n in range(3):
            for ee in range(2):
                e(f"v_add_f32 v{A(n,ee)}, v{A(n,ee)}, v{A(n,ee+2)}")
        e(f"v_mov_b32 v{vX}, v{vL}")
        for n in range(3):
            e(f"v_add_f32_dpp v{vO+n}, v{A(n,0)}, v{A(n,0)} row_ror:8 row_mask:0xf bank_mask:0x3")
        e(f"v_permlane32_swap_b32 v{vL}, v{vX}")
        for n in range(3):
            e(f"v_add_f32_dpp v{vO+n}, v{A(n,1)}, v{A(n,1)} row_ror:8 row_mask:0xf bank_mask:0xc")
        e(f"v_add_f32 v{vL}, v{vL}, v{vX}")
        e(f"v_cndmask_b32 v{vO+3}, v{vL}, v{vM}, s[{sPar}:{sPar+1}]")
        e(f"ds_write_b128 v{vRec}, v[{vO}:{vO+3}]")

    def vbegin(r):
        e(f"v_mov_b32 v{vL}, 0")
        for k in range(24):
            e(f"v_mov_b32 v{vAcc+k}, 0")
        e(f"v_mov_b32 v{vM}, s{sMx+r}")
        e(f"v_mul_f32 v{vAl}, s{sC}, v{vM}")

    def vend(r):
        def f():
            stamp(NR + r)
            wave_reduce()
            e(f"v_add_u32 v{vRec}, {W*1024}, v{vRec}")
            vbegin(r + 1)
        return f

    def open_window():
        stamp(2 * NR - 1)
        e(f"s_mov_b32 s{sW}, {(KMAX+1)*256}")
        e(f"s_mov_b32 s{sTprev}, 0")

    e(f"v_mov_b32 v{vSc}, v{vSc0}")
    e(f"ds_read_b32 v{vT0}, v{vSc}")
    vbegin(0)
    e(f"s_waitcnt lgkmcnt(0)")
    hs = {SPR * (r + 1): vend(r) for r in range(NR - 1)}
    if E > RU:
        b0 = TOT - E
        if b0 in hs:
            old = hs[b0]; hs[b0] = lambda: (old(), open_window())
        else:
            hs[b0] = open_window
    phase("v", TOT - RU, vunit, hs, False)
    for u in range(RU):
        e(f"s_waitcnt vmcnt({3*(RU-1-u)})")
        vunit(u)
    if diag:
        e(f"s_memrealtime s[{sT0+2}:{sT0+3}]")
        e(f"s_waitcnt lgkmcnt(0)")
        for j in range(4):
            e(f"v_mov_b32 v{vRing+j}, s{sT0+j}")
        e(f"s_lshl_b32 s{sTmp}, s2, 9")
        e(f"s_add_u32 s{sTmp}, s{sTmp}, {DIAG_OFF}")
        e(f"s_lshl_b32 s{sCnt}, s{sWave}, 4")
        e(f"s_add_u32 s{sTmp}, s{sTmp}, s{sCnt}")
        e(f"v_mov_b32 v{vT1}, 0")
        e(f"s_mov_b64 exec, 1")
        e(f"buffer_store_dwordx4 v[{vRing}:{vRing+3}], v{vT1}, s[{sWs}:{sWs+3}], s{sTmp} offen")
        e(f"s_mov_b64 exec, -1")
        e(f"s_mul_i32 s{sTmp}, s2, {W*256}")
        e(f"s_add_u32 s{sTmp}, s{sTmp}, {DIAG_OFF+NWG*512}")
        e(f"v_lshlrev_b32 v{vT1}, 2, v0")
        e(f"buffer_store_dword v{vStamp}, v{vT1}, s[{sWs}:{sWs+3}], s{sTmp} offen")
        e.nop(4)
    wave_reduce()
    e(f"s_lshl_b32 s{sTmp}, s{sWave}, 12")
    e(f"s_add_u32 s{sTmp}, s{sTmp}, {LDS_REC}")
    e(f"v_add_u32 v{vT1}, s{sTmp}, v{vLa16}")
    e(f"s_lshl_b32 s{sTmp}, s{sWave}, 10")
    e(f"s_add_u32 s{sTmp}, s{sTmp}, {LDS_TREE}")
    e(f"v_add_u32 v{vT0}, s{sTmp}, v{vLa16}")
    e(f"s_waitcnt lgkmcnt(0)")
    e(f"s_barrier")
    if diag: e(f"s_memrealtime s[{sT0}:{sT0+1}]")

    vMW = vS
    def combine(recs, out):
        n = len(recs)
        F = vAcc
        e(f"v_max_f32 v{vMW}, v{recs[0]+3}, v{recs[1]+3}")
        i = 2
        while i < n:
            if i + 1 < n:
                e(f"v_max3_f32 v{vMW}, v{vMW}, v{recs[i]+3}, v{recs[i+1]+3}"); i += 2
            else:
                e(f"v_max_f32 v{vMW}, v{vMW}, v{recs[i]+3}"); i += 1
        for i in range(n):
            e(f"v_sub_f32 v{F+i}, v{recs[i]+3}, v{vMW}")
        for i in range(n):
            e(f"v_mul_f32 v{F+i}, s{sC}, v{F+i}")
        for i in range(n):
            e(f"v_exp_f32 v{F+i}, v{F+i}")
        for i in range(n):
            e(f"v_mov_b32_dpp v{F+i}, v{F+i} quad_perm:[1,1,3,3] row_mask:0xf bank_mask:0xf")
        for j in range(4):
            e(f"v_mul_f32 v{out+j}, v{F}, v{recs[0]+j}")
        for i in range(1, n):
            for j in range(4):
                e(f"v_fmac_f32 v{out+j}, v{F+i}, v{recs[i]+j}")

    for w in range(W):
        e(f"ds_read_b128 v[{vB+4*w}:{vB+4*w+3}], v{vT1} offset:{w*1024}")
    e(f"ds_read_b128 v[{vB+16}:{vB+19}], v{vT0}")
    e(f"s_waitcnt lgkmcnt(0)")
    combine([vB + 4 * w for w in range(W + 1)], vO)
    e(f"v_cndmask_b32 v{vO+3}, v{vO+3}, v{vMW}, s[{sPar}:{sPar+1}]")
    if 's' not in x: e(f"buffer_store_dwordx4 v[{vO}:{vO+3}], v{vLa16}, s[{sWs}:{sWs+3}], s{sSlot} offen sc1{' nt' if 'n' in x else ''}")
    e(f"v_mov_b32 v{vT0}, {LDS_FLAG}")
    e(f"v_readlane_b32 s{sAcc}, v{vO+3}, 0")
    e(f"v_readlane_b32 s{sK}, v{vO+3}, 1")
    e(f"s_mov_b32 s{sTmp}, 1")
    e(f"s_waitcnt vmcnt(0)")
    e(f"s_barrier")
    if diag: e(f"s_memrealtime s[{sT0+2}:{sT0+3}]")
    e(f"s_cmp_lg_u32 s{sWave}, 0")
    e(f"s_cbranch_scc1 L_wait")
    if 'a' not in x: e(f"s_atomic_add s{sTmp}, s[{'20:21' if wsc else '18:19'}], s{sArr} glc")
    e(f"s_waitcnt lgkmcnt(0)")
    e(f"v_mov_b32 v{vX}, s{sTmp}")
    e(f"ds_write_b32 v{vT0}, v{vX}")
    e(f"s_waitcnt lgkmcnt(0)")
    e(f"s_barrier")
    e(f"s_branch L_got")
    e.label("L_wait")
    e(f"s_barrier")
    e(f"ds_read_b32 v{vX}, v{vT0}")
    e(f"s_waitcnt lgkmcnt(0)")
    e(f"v_readfirstlane_b32 s{sTmp}, v{vX}")
    e.label("L_got")
    if diag:
        e(f"s_memrealtime s[92:93]")
        e(f"s_mov_b64 s[94:95], 0")
        e(f"s_mov_b64 s[96:97], 0")
    e(f"s_cmp_lg_u32 s{sTmp}, {T-1}")
    e(f"s_cbranch_scc1 L_fin")
    e(f"s_mov_b64 exec, 0x7fff")
    e(f"buffer_load_dword v{vHm}, v{vHdr}, s[{sWs}:{sWs+3}], 0 offen offset:28 sc1")
    e(f"buffer_load_dword v{vHl}, v{vHdr}, s[{sWs}:{sWs+3}], 0 offen offset:12 sc1")
    e(f"s_mov_b64 exec, -1")
    for m in range(T - 1):
        e(f"buffer_load_dwordx3 v[{vR+4*m}:{vR+4*m+2}], v{vLa16}, s[{sWs}:{sWs+3}], s{sRem+m} offen sc1")
    e(f"s_waitcnt vmcnt({T-1})")
    e(f"v_writelane_b32 v{vHm}, s{sK}, 15")
    e(f"v_writelane_b32 v{vHl}, s{sAcc}, 15")
    e(f"v_max_f32_dpp v{vMW}, v{vHm}, v{vHm} row_ror:8 row_mask:0xf bank_mask:0xf")
    for rr in (4, 2, 1):
        e(f"v_max_f32_dpp v{vMW}, v{vMW}, v{vMW} row_ror:{rr} row_mask:0xf bank_mask:0xf")
    e(f"v_sub_f32 v{vHm}, v{vHm}, v{vMW}")
    e(f"v_mul_f32 v{vHm}, s{sC}, v{vHm}")
    e(f"v_exp_f32 v{vHm}, v{vHm}")
    e(f"v_mul_f32 v{vHl}, v{vHl}, v{vHm}")
    for rr in (8, 4, 2, 1):
        e(f"v_add_f32_dpp v{vHl}, v{vHl}, v{vHl} row_ror:{rr} row_mask:0xf bank_mask:0xf")
    e(f"v_rcp_f32 v{vHl}, v{vHl}")
    e(f"v_mul_f32 v{vHm}, v{vHm}, v{vHl}")
    for m in range(T):
        e(f"v_readlane_b32 s{sRem+m}, v{vHm}, {m}")
    for j in range(3):
        e(f"v_mul_f32 v{vO+j}, s{sRem+15}, v{vO+j}")
    for m in range(T - 1):
        if m % 3 == 0:
            e(f"s_waitcnt vmcnt({max(0, T - 1 - (m + 3))})")
            if diag and m == 12: e(f"s_memrealtime s[94:95]")
        for j in range(3):
            e(f"v_fmac_f32 v{vO+j}, s{sRem+m}, v{vR+4*m+j}")
    for j in range(3):
        e(f"v_cvt_pk_bf16_f32 v{vO+j}, v{vO+j}, v{vO+j}")
    for j in range(3):
        e(f"buffer_store_short v{vO+j}, v{vOutOff}, s[{sOut}:{sOut+3}], s{sLim} offen offset:{j*128}{opol}")
    if diag: e(f"s_memrealtime s[96:97]")
    e.label("L_fin")
    if diag:
        e(f"s_cmp_lg_u32 s{sWave}, 1")
        e(f"s_cbranch_scc1 L_end")
        e(f"s_waitcnt vmcnt(0)")
        e(f"s_memrealtime s[{sT0+4}:{sT0+5}]")
        e(f"s_getreg_b32 s{sT0+6}, hwreg(HW_REG_XCC_ID)")
        e(f"s_getreg_b32 s{sT0+7}, hwreg(HW_REG_HW_ID)")
        e(f"s_waitcnt lgkmcnt(0)")
        for j in range(8):
            e(f"v_mov_b32 v{vR+j}, s{sT0+j}")
        e(f"s_lshl_b32 s{sTmp}, s2, 9")
        e(f"s_add_u32 s{sTmp}, s{sTmp}, {DIAG_OFF+256}")
        e(f"v_mov_b32 v{vT1}, 0")
        e(f"s_mov_b64 exec, 1")
        e(f"buffer_store_dwordx4 v[{vR}:{vR+3}], v{vT1}, s[{sWs}:{sWs+3}], s{sTmp} offen")
        e(f"buffer_store_dwordx4 v[{vR+4}:{vR+7}], v{vT1}, s[{sWs}:{sWs+3}], s{sTmp} offen offset:16")
        for j in range(3):
            e(f"v_mov_b32 v{vR+8+j}, s{92+2*j}")
        e(f"buffer_store_dwordx4 v[{vR+8}:{vR+11}], v{vT1}, s[{sWs}:{sWs+3}], s{sTmp} offen offset:32")
    e("s_endpgm")

    e.label("L_helper")
    e.nop(3)
    e(f"s_memrealtime s[{sTm}:{sTm+1}]")
    e(f"v_lshlrev_b32 v{vLa16}, 4, v{vLane}")
    e(f"v_mov_b32 v{vO}, 0")
    e(f"v_mov_b32 v{vO+1}, 0")
    e(f"v_mov_b32 v{vO+2}, 0")
    e(f"v_mov_b32 v{vM}, 0x{f2u(-1e30):08x}")
    e(f"v_cndmask_b32 v{vO+3}, v{vO}, v{vM}, s[{sPar}:{sPar+1}]")
    e(f"v_add_u32 v{vRec}, {LDS_TREE}, v{vLa16}")
    e(f"s_cmp_eq_u32 s{sMem}, 0")
    e(f"s_cbranch_scc1 L_tree")
    for r in range(NR):
        e(f"ds_write_b128 v{vRec}, v[{vO}:{vO+3}] offset:{r*1024}")
    e(f"s_branch L_treedone")
    e.label("L_tree")
    if wsc:
        e(f"s_lshl_b32 s{sArr}, s{sTeam}, 8")
        e(f"s_add_u32 s{sArr}, s{sArr}, {ARR_OFF}")
        e(f"s_mov_b32 s{sLim}, 0")
        e(f"s_atomic_swap s{sLim}, s[20:21], s{sArr} glc")
    e(f"s_mul_i32 s{sTmp}, s{sTeam}, {ROWB}")
    e(f"v_add_u32 v{vT1}, s{sTmp}, v{vOutOff}")
    hb = vAcc
    assert hb + 28 * NR <= 160
    vEnd = max(vEnd, hb + 28 * NR)
    for r in range(NR):
        b = hb + 28 * r
        e(f"v_add_u32 v{vT0}, {r*NT*ROWB}, v{vQoff}")
        for n in range(3):
            e(f"global_load_dwordx4 v[{b+4*n}:{b+4*n+3}], v{vT0}, s[10:11] offset:{n*128}")
        for n in range(3):
            e(f"global_load_dwordx4 v[{b+12+4*n}:{b+12+4*n+3}], v{vT0}, s[4:5] offset:{n*128}")
        e(f"v_add_u32 v{vT0}, {r*NT*ROWB}, v{vT1}")
        for n in range(3):
            e(f"global_load_ushort v{b+24+n}, v{vT0}, s[12:13] offset:{n*128}")
        e(f"s_add_u32 s{sTmp}, s{sTeam}, {r*NT}")
        e(f"s_lshr_b32 s{sTmp}, s{sTmp}, 5")
        e(f"s_lshl_b32 s{sTmp}, s{sTmp}, 1")
        e(f"v_mov_b32 v{vT0}, s{sTmp}")
        e(f"global_load_ushort v{b+27}, v{vT0}, s[14:15]")
    e(f"v_mov_b32 v{vX}, 0x{f2u(MASKRAW):08x}")
    if wsc:
        e(f"s_waitcnt lgkmcnt(0)")
        e(f"s_lshl_b32 s{sArr}, s{sTeam}, 4")
        e(f"s_mov_b32 s{sLim}, 1")
        e(f"s_atomic_add s{sLim}, s[18:19], s{sArr} glc")
    e(f"s_waitcnt vmcnt(0)")
    for r in range(NR):
        b = hb + 28 * r
        for j in range(4):
            for n in range(3):
                e(f"v_dot2_f32_bf16 v{vS+n}, v{b+4*n+j}, v{b+12+4*n+j}, {'0' if j == 0 else 'v%d' % (vS+n)}")
        for n in range(4):
            e(f"v_lshlrev_b32 v{b+24+n}, 16, v{b+24+n}")
        e(f"v_add_f32 v{vS}, v{vS}, v{vS+1}")
        e(f"v_add_f32 v{vS}, v{vS}, v{vS+2}")
        for dp in ("quad_perm:[1,0,3,2]", "quad_perm:[2,3,0,1]", "row_half_mirror"):
            e(f"v_add_f32_dpp v{vS}, v{vS}, v{vS} {dp} row_mask:0xf bank_mask:0xf")
        e(f"v_sub_f32 v{b+27}, 1.0, v{b+27}")
        e(f"v_fma_f32 v{vS}, v{b+27}, v{vX}, v{vS}")
        e(f"v_cndmask_b32 v{b+27}, 1.0, v{vS}, s[{sPar}:{sPar+1}]")
        e(f"ds_write_b128 v{vRec}, v[{b+24}:{b+27}] offset:{r*1024}")
    e.label("L_treedone")
    e(f"s_waitcnt lgkmcnt(0)")
    if fb >= 3:
        NW_ = 2 if fb == 3 else 3
        sR1, sR2 = sBase, sPos
        LASTP = (2 * TOT - E) // PU - 1
        REFL = HINT_OFF + NP * 16 * 128
        sPub, sLead, sRefl, sTry = sCnt, sIss, sStep, sJump
        mk_ws()
        e(f"s_mov_b32 s{sStart}, s{sTm}")
        e(f"s_mov_b32 s{sPt}, 0")
        e(f"v_mov_b32 v{vZero}, 0")
        e(f"s_getreg_b32 s{sRefl}, hwreg(HW_REG_XCC_ID)")
        e(f"s_and_b32 s{sRefl}, s{sRefl}, 15")
        e(f"s_lshl_b32 s{sRefl}, s{sRefl}, 7")
        e(f"s_add_u32 s{sRefl}, s{sRefl}, {REFL}")
        e(f"v_lshlrev_b32 v{vHdr}, 7, v{vLane}")
        e(f"s_cmp_eq_u32 s{sTeam}, s{sMem}")
        e(f"s_cselect_b32 s{sPub}, 1, 0")
        e(f"s_cmp_lt_u32 s{sTeam}, 8")
        e(f"s_cselect_b32 s{sLead}, s{sPub}, 0")
        e(f"s_lshl_b32 s{sTmp}, s{sTeam}, 7")
        e(f"v_mov_b32 v{vHl}, s{sTmp}")
        e(f"s_mov_b32 s{sOff}, {HINT_OFF}")
        e(f"s_mov_b64 exec, 1")
        e.label("L_hp")
        e(f"s_lshl_b32 s{sTmp}, s{sPt}, 2")
        e(f"v_mov_b32 v{vT1}, s{sTmp}")
        e.label("L_hwait")
        e(f"s_sleep 6")
        e(f"s_cmp_lg_u32 s{sLead}, 0")
        e(f"s_cbranch_scc1 L_hnoref")
        e(f"buffer_load_dwordx{NW_} v[{vLat}:{vLat+NW_-1}], v{vZero}, s[{sWs}:{sWs+3}], s{sRefl} offen sc1")
        e(f"s_waitcnt vmcnt(0)")
        e(f"ds_write_b{32*NW_} v{vZero}, v[{vLat}:{vLat+NW_-1}] offset:{LDS_REF}")
        e.label("L_hnoref")
        e(f"ds_read_b32 v{vX}, v{vT1} offset:{LDS_OWN}")
        e(f"s_memrealtime s[{sTm}:{sTm+1}]")
        e(f"s_waitcnt lgkmcnt(0)")
        e(f"v_readfirstlane_b32 s{sTown}, v{vX}")
        e(f"s_sub_u32 s{sK}, s{sTm}, s{sStart}")
        e(f"s_sub_u32 s{sTmp}, s{sTown}, s{sStart}")
        e(f"s_add_u32 s{sAcc}, s{sK}, 50")
        e(f"s_cmp_lt_u32 s{sTmp}, s{sAcc}")
        e(f"s_cbranch_scc1 L_hgot")
        e(f"s_cmp_lt_u32 s{sK}, 100000")
        e(f"s_cbranch_scc1 L_hwait")
        e(f"s_branch L_hdone")
        e.label("L_hgot")
        e(f"s_cmp_eq_u32 s{sPub}, 0")
        e(f"s_cbranch_scc1 L_hnext")
        e(f"buffer_store_dword v{vX}, v{vHl}, s[{sWs}:{sWs+3}], s{sOff} offen sc1")
        e(f"s_cmp_eq_u32 s{sLead}, 0")
        e(f"s_cbranch_scc1 L_hnext")
        e(f"s_mov_b64 exec, 0xffff")
        e(f"s_mov_b32 s{sTry}, {tries}")
        e.label("L_hgather")
        e(f"s_sleep {dly}")
        e(f"buffer_load_dword v{vHm}, v{vHdr}, s[{sWs}:{sWs+3}], s{sOff} offen sc1")
        e(f"s_waitcnt vmcnt(0)")
        e(f"s_memrealtime s[{sTm}:{sTm+1}]")
        e(f"v_subrev_u32 v{vHm}, s{sStart}, v{vHm}")
        e(f"s_waitcnt lgkmcnt(0)")
        e(f"s_sub_u32 s{sK}, s{sTm}, s{sStart}")
        e(f"v_cmp_lt_u32 vcc, s{sK}, v{vHm}")
        e(f"s_sub_u32 s{sTry}, s{sTry}, 1")
        e(f"s_cbranch_vccz L_hall")
        e(f"s_cmp_lg_u32 s{sTry}, 0")
        e(f"s_cbranch_scc1 L_hgather")
        e.label("L_hall")
        e(f"v_min_u32 v{vHm}, s{sK}, v{vHm}")
        for dp in ("quad_perm:[1,0,3,2]", "quad_perm:[2,3,0,1]", "row_half_mirror", "row_mirror"):
            e(f"v_add_u32_dpp v{vHm}, v{vHm}, v{vHm} {dp} row_mask:0xf bank_mask:0xf")
        e(f"v_lshrrev_b32 v{vHm}, 4, v{vHm}")
        e(f"v_add_u32 v{vLat+1}, s{sStart}, v{vHm}")
        e(f"s_mov_b64 exec, 1")
        if fb == 3:
            e(f"v_mov_b32 v{vLat}, s{sPt}")
        else:
            e(f"v_readfirstlane_b32 s{sTown}, v{vLat+1}")
            e(f"s_add_u32 s{sTmp}, s{sPt}, 1")
            e(f"s_mul_i32 s{sTmp}, s{sTmp}, {PU}")
            e(f"v_mov_b32 v{vLat}, s{sTmp}")
            e(f"s_sub_u32 s{sK}, s{sTown}, s{sR1}")
            e(f"s_lshl_b32 s{sK}, s{sK}, 1")
            e(f"s_sub_u32 s{sTmp}, s{sTown}, s{sR2}")
            e(f"s_cmp_eq_u32 s{sPt}, 1")
            e(f"s_cselect_b32 s{sTmp}, s{sK}, s{sTmp}")
            e(f"s_mul_i32 s{sTmp}, s{sTmp}, {int(round(bias * 4096 * 16 / (2 * PU)))}")
            e(f"s_lshr_b32 s{sTmp}, s{sTmp}, 12")
            e(f"v_mov_b32 v{vLat+2}, s{sTmp}")
            e(f"s_mov_b32 s{sR2}, s{sR1}")
            e(f"s_mov_b32 s{sR1}, s{sTown}")
            e(f"s_cmp_eq_u32 s{sPt}, 0")
            e(f"s_cbranch_scc1 L_hnext")
        e(f"buffer_store_dwordx{NW_} v[{vLat}:{vLat+NW_-1}], v{vZero}, s[{sWs}:{sWs+3}], s{sRefl} offen")
        e(f"ds_write_b{32*NW_} v{vZero}, v[{vLat}:{vLat+NW_-1}] offset:{LDS_REF}")
        e.label("L_hnext")
        e(f"s_add_u32 s{sOff}, s{sOff}, {16*128}")
        e(f"s_add_u32 s{sPt}, s{sPt}, 1")
        e(f"s_cmp_lt_u32 s{sPt}, {LASTP}")
        e(f"s_cbranch_scc1 L_hp")
        e.label("L_hdone")
        e(f"s_waitcnt lgkmcnt(0)")
    elif fb:
        LASTP = (2 * TOT - E) // PU - 1
        mk_ws()
        e(f"s_mov_b32 s{sStart}, s{sTm}")
        e(f"s_mov_b32 s{sPt}, 0")
        if fb == 1:
            e(f"v_mul_u32_u24 v{vHdr}, 33, v{vLane}")
            e(f"v_add_u32 v{vHdr}, s2, v{vHdr}")
            e(f"v_and_b32 v{vHdr}, 255, v{vHdr}")
            e(f"v_lshlrev_b32 v{vHdr}, 7, v{vHdr}")
            e(f"v_mov_b32 v{vHl}, v{vHdr}")
            e(f"s_mov_b32 s{sCnt}, 1")
        else:
            pm = 256 // G + 1
            e(f"v_lshlrev_b32 v{vHdr}, 7, v{vLane}")
            e(f"s_lshr_b32 s{sTmp}, s2, {int(math.log2(256 // G))}")
            e(f"s_mul_i32 s{sK}, s{sTmp}, {pm}")
            e(f"s_cmp_eq_u32 s{sK}, s2")
            e(f"s_cselect_b32 s{sCnt}, 1, 0")
            e(f"s_lshl_b32 s{sTmp}, s{sTmp}, 7")
            e(f"v_mov_b32 v{vHl}, s{sTmp}")
        e(f"s_mov_b32 s{sOff}, {HINT_OFF}")
        e(f"s_mov_b64 exec, {(1 << G) - 1}")
        e.label("L_hp")
        e(f"s_lshl_b32 s{sTmp}, s{sPt}, 2")
        e(f"v_mov_b32 v{vT1}, s{sTmp}")
        e.label("L_hwait")
        e(f"s_sleep 4")
        e(f"ds_read_b32 v{vX}, v{vT1} offset:{LDS_OWN}")
        e(f"s_memrealtime s[{sTm}:{sTm+1}]")
        e(f"s_waitcnt lgkmcnt(0)")
        e(f"v_readfirstlane_b32 s{sTown}, v{vX}")
        e(f"s_sub_u32 s{sK}, s{sTm}, s{sStart}")
        e(f"s_sub_u32 s{sTmp}, s{sTown}, s{sStart}")
        e(f"s_add_u32 s{sAcc}, s{sK}, 50")
        e(f"s_cmp_lt_u32 s{sTmp}, s{sAcc}")
        e(f"s_cbranch_scc1 L_hgot")
        e(f"s_cmp_lt_u32 s{sK}, 100000")
        e(f"s_cbranch_scc1 L_hwait")
        e(f"s_branch L_hdone")
        e.label("L_hgot")
        e(f"s_cmp_eq_u32 s{sCnt}, 0")
        e(f"s_cbranch_scc1 L_hnopub")
        e(f"s_mov_b64 exec, 1")
        if 'w' not in x: e(f"buffer_store_dword v{vX}, v{vHl}, s[{sWs}:{sWs+3}], s{sOff} offen sc1")
        e(f"s_mov_b64 exec, {(1 << G) - 1}")
        e.label("L_hnopub")
        e(f"s_sleep {dly}")
        if 'r' not in x: e(f"buffer_load_dword v{vHm}, v{vHdr}, s[{sWs}:{sWs+3}], s{sOff} offen{'' if 'p' in x else ' sc1'}")
        e(f"s_memrealtime s[{sTm}:{sTm+1}]")
        e(f"s_waitcnt vmcnt(0) lgkmcnt(0)")
        e(f"s_sub_u32 s{sK}, s{sTm}, s{sStart}")
        e(f"v_subrev_u32 v{vHm}, s{sStart}, v{vHm}")
        e(f"v_min_u32 v{vHm}, s{sK}, v{vHm}")
        steps = ["quad_perm:[1,0,3,2]", "quad_perm:[2,3,0,1]", "row_half_mirror", "row_mirror"][: int(math.log2(G))]
        for dp in steps:
            e(f"v_add_u32_dpp v{vHm}, v{vHm}, v{vHm} {dp} row_mask:0xf bank_mask:0xf")
        e(f"v_lshrrev_b32 v{vHm}, {int(math.log2(G))}, v{vHm}")
        e(f"v_add_u32 v{vHm}, s{sStart}, v{vHm}")
        e(f"ds_write_b32 v{vT1}, v{vHm} offset:{LDS_REF}")
        e(f"s_add_u32 s{sOff}, s{sOff}, {NWG*128}")
        e(f"s_add_u32 s{sPt}, s{sPt}, 1")
        e(f"s_cmp_lt_u32 s{sPt}, {LASTP}")
        e(f"s_cbranch_scc1 L_hp")
        e.label("L_hdone")
        e(f"s_waitcnt lgkmcnt(0)")
    if wsc:
        e(f"s_lshl_b32 s{sArr}, s{sTeam}, 4")
        e(f"s_load_dword s{sLim}, s[18:19], s{sArr}")
        e.label("L_rdy")
        e(f"s_waitcnt lgkmcnt(0)")
        e(f"s_cmp_lg_u32 s{sLim}, 0")
        e(f"s_cbranch_scc1 L_rdyok")
        e(f"s_sleep 16")
        e(f"s_atomic_add s{sLim}, s[18:19], s{sArr} glc")
        e(f"s_branch L_rdy")
        e.label("L_rdyok")
    e(f"s_barrier")
    e.label("L_end")
    e("s_endpgm")

    acc_off = (vEnd + 3) // 4 * 4
    assert vEnd <= 256 and sEnd <= 92
    out = HEADER
    out += f"; params: v9 v4 HW=1 T={T} RU={RU} W0={W0} E={E} I0={I0} rotm={rotm} fb={fb} gain={gain} G={G} PU={PU} dly={dly} {'diag' if diag else ''} off={DIAG_OFF}\n"
    out += f"; @launch grid=({NWG},1,1) block=({(W+1)*64},1,1) lds={LDS_BYTES}\n"
    out += f""".amdgcn_target "amdgcn-amd-amdhsa--gfx950"
.text
.globl {NAME}_kernel
.p2align 8
.type {NAME}_kernel,@function
{NAME}_kernel:
"""
    out += "\n".join(e.lines) + "\n"
    out += f""".section .rodata,"a"
.p2align 6
.amdhsa_kernel {NAME}_kernel
  .amdhsa_next_free_vgpr {vEnd}
  .amdhsa_next_free_sgpr {100 if diag else sEnd}
  .amdhsa_accum_offset {acc_off}
  .amdhsa_group_segment_fixed_size 0
  .amdhsa_kernarg_size 72
  .amdhsa_user_sgpr_count 2
  .amdhsa_user_sgpr_kernarg_segment_ptr 1
  .amdhsa_system_sgpr_workgroup_id_x 1
.end_amdhsa_kernel
"""
    return out


if __name__ == "__main__":
    ap = argparse.ArgumentParser()
    ap.add_argument("-o", default="cdna_kernels/" + NAME + ".s")
    ap.add_argument("--ru", type=int, default=4)
    ap.add_argument("--w0", type=float, default=2.0)
    ap.add_argument("--e", type=int, default=8)
    ap.add_argument("--i0", type=int, default=2)
    ap.add_argument("--kmax", type=int, default=3)
    ap.add_argument("--kmin", type=int, default=1)
    ap.add_argument("--rotm", type=int, default=4)
    ap.add_argument("--par", type=float, default=0.0)
    ap.add_argument("--fb", type=int, default=0)
    ap.add_argument("--gain", type=float, default=0.7)
    ap.add_argument("--g", type=int, default=8)
    ap.add_argument("--pu", type=int, default=8)
    ap.add_argument("--dly", type=int, default=40)
    ap.add_argument("--diag", action="store_true")
    ap.add_argument("--x", default="")
    ap.add_argument("--wmin", type=float, default=1.0)
    ap.add_argument("--wmax", type=float, default=4.0)
    ap.add_argument("--tries", type=int, default=3)
    ap.add_argument("--bias", type=float, default=1.0)
    ap.add_argument("--wsc", type=int, default=0)
    a = ap.parse_args()
    open(a.o, "w").write(gen(16, a.ru, a.w0, a.e, a.i0, a.kmax, a.kmin, "nt", a.diag, a.x, a.rotm, " sc1", a.par, a.fb, a.gain, a.g, a.pu, a.dly, a.wmin, a.wmax, a.tries, a.bias, a.wsc))
```

```python
import math, argparse
from gen import Em, f2u, NAME, HEADER, NH, C, DH, ROWB, HEADB, KVB, SCALE_LOG2E, MASKRAW


def gen(RU=4, W0=2.0, I0=2, pol="nt", diag=False, rotm=4, opol=" sc1", gain=0.8, PU=8, dly=20, wmin=1.0, wmax=3.0,
        tries=3, nlead=16, touch=1, poll=6, vat=0, x="", nopen=0, pk=0, ph=0):
    T, W, NWG = 16, 4, 256
    NT = NWG // T
    NR = T // 4
    NWV = T * W
    SPR = 1024 // NWV
    TOT = NR * SPR
    STEP = NWV * 3072
    JUMP = STEP + (NT - 1) * HEADB
    assert SPR % RU == 0 and PU % RU == 0
    pol = (" " + pol) if pol else ""
    NP = 2 * TOT // PU
    HINT_OFF = NH * T * 1024
    REFL = HINT_OFF + NP * 16 * 128
    ARR_OFF = REFL + 16 * 128
    DIAG_OFF = ARR_OFF + NT * 512
    WS_BYTES = DIAG_OFF + (NWG * 512 + NWG * W * 256 if diag else 0)
    LDS_FLAG = 0
    LDS_REF = 16
    LDS_OWN = 64
    LDS_Q = 512
    LDS_SC = 2048
    assert LDS_OWN + 4 * NP <= 256 and LDS_Q + NR * ROWB <= LDS_SC
    LDS_REC = LDS_SC + W * TOT * 256
    LDS_TREE = LDS_REC + NR * W * 1024
    LDS_BYTES = LDS_TREE + NR * 1024
    assert LDS_BYTES > 81920
    e = Em()
    c = lambda t: e.raw("    ; " + t)
    vOff, vT0, vT1, vM, vL, vSc, vAl, vLane, vStamp, vPh, vPl = 1, 2, 3, 4, 5, 6, 7, 8, 9, 10, 11
    vS = 12
    vX = 15
    vSc0, vLa16, vOutOff, vRec = 16, 17, 18, 19
    vS16, vHdr, vHm, vHl = 20, 21, 22, 23
    vO = 24
    vAcc = 28
    vLat, vZero = 52, 55
    vQ = 56
    vRing = 68
    vR = 56
    vB = vR + 60
    vEnd = max(vRing + 12 * RU, vB + 20)
    sKV = 24
    sAcc, sK, sPt, sTown = 28, 29, 30, 31
    sTm = 32
    sStart = 34
    sTeam, sMem, sWave, sOff, sIss, sCnt, sC, sTmp = 36, 37, 38, 39, 40, 41, 42, 43
    sPar = 44
    sPos, sBase = 46, 47
    sWs, sOut = 48, 52
    sT0 = 56
    sHead, sSlot, sLim, sArr, sStep, sJump, sOff0, sW = 64, 65, 66, 67, 68, 69, 70, 71
    sMx = 72
    sRem = 76
    sEnd = sRem + 16
    WFIX = int(round(W0 * 256))
    nl = [0]

    def advance(sw):
        e(f"s_add_u32 s{sIss}, s{sIss}, 1")
        e(f"s_and_b32 s{sTmp}, s{sIss}, {SPR-1}")
        e(f"s_cselect_b32 s{sTmp}, s{sStep}, s{sJump}")
        e(f"s_add_u32 s{sBase}, s{sBase}, s{sTmp}")
        if sw:
            e(f"s_cmp_eq_u32 s{sIss}, {TOT}")
            e(f"s_cselect_b32 s{sKV}, s8, s{sKV}")
            e(f"s_cselect_b32 s{sKV+1}, s9, s{sKV+1}")
            e(f"s_cselect_b32 s{sBase}, s{sOff0}, s{sBase}")
        if rotm:
            assert (TOT * rotm) % NWV == 0
            e(f"s_add_u32 s{sPos}, s{sPos}, {rotm}")
            e(f"s_and_b32 s{sPos}, s{sPos}, {NWV-1}")
        e(f"s_mul_i32 s{sTmp}, s{sPos}, 3072")
        e(f"s_add_u32 s{sOff}, s{sBase}, s{sTmp}")

    def issue(ru, sw):
        for n in range(3):
            r = vRing + 12 * ru + 4 * n
            e(f"buffer_load_dwordx4 v[{r}:{r+3}], v{vOff}, s[{sKV}:{sKV+3}], s{sOff} offen offset:{n*128}{pol}")
        advance(sw)

    KMAX = min(RU - 1, int(math.ceil(wmax)))
    def gate():
        k = nl[0]; nl[0] += 1
        e(f"s_add_u32 s{sAcc}, s{sAcc}, s{sW}")
        e(f"s_lshr_b32 s{sK}, s{sAcc}, 8")
        e(f"s_and_b32 s{sAcc}, s{sAcc}, 255")
        for lv in range(KMAX, 0, -1):
            if lv < wmax:
                e(f"s_cmp_gt_u32 s{sK}, {lv}")
                e(f"s_cbranch_scc1 L_go{k}")
            e(f"s_waitcnt vmcnt({3*(lv-1) if lv > 1 else 2})")
        e.label(f"L_go{k}")

    def stamp(k):
        if diag:
            e(f"s_memrealtime s[{sT0+4}:{sT0+5}]")
            e(f"s_waitcnt lgkmcnt(0)")
            e(f"v_writelane_b32 v{vStamp}, s{sT0+4}, {k}")

    def mk_ws():
        e(f"s_mov_b32 s{sWs}, s20")
        e(f"s_mov_b32 s{sWs+1}, s21")
        e(f"s_mov_b32 s{sWs+2}, {WS_BYTES}")
        e(f"s_mov_b32 s{sWs+3}, 0x00020000")

    e(f"s_cmp_ge_u32 s2, {NWG}")
    e(f"s_cbranch_scc1 L_end")
    e(f"s_load_dwordx16 s[4:19], s[0:1], 0")
    if diag: e(f"s_memrealtime s[{sT0}:{sT0+1}]")
    e(f"v_lshrrev_b32 v{vT0}, 6, v0")
    e(f"v_and_b32 v{vLane}, 63, v0")
    e(f"v_readfirstlane_b32 s{sWave}, v{vT0}")
    e(f"v_lshrrev_b32 v{vT0}, 3, v{vLane}")
    e(f"v_and_b32 v{vS16}, 7, v{vLane}")
    e(f"v_mul_u32_u24 v{vOff}, {ROWB}, v{vT0}")
    e(f"v_lshlrev_b32 v{vS16}, 4, v{vS16}")
    e(f"v_add_u32 v{vOff}, v{vOff}, v{vS16}")
    e(f"v_lshl_add_u32 v{vOutOff}, v{vT0}, 1, v{vS16}")
    e(f"s_lshr_b32 s{sTeam}, s2, 4")
    e(f"s_and_b32 s{sMem}, s2, {T-1}")
    e(f"s_mul_i32 s{sBase}, s{sTeam}, {HEADB}")
    e(f"s_lshl_b32 s{sPos}, s{sMem}, 2")
    e(f"s_add_u32 s{sPos}, s{sPos}, s{sWave}")
    e(f"s_mul_i32 s{sTmp}, s{sPos}, 3072")
    e(f"s_add_u32 s{sOff}, s{sBase}, s{sTmp}")
    e(f"s_mov_b32 s{sOff0}, s{sBase}")
    e(f"s_mov_b32 s{sKV+2}, {KVB}")
    e(f"s_mov_b32 s{sKV+3}, 0x00020000")
    e(f"s_mov_b32 s{sStep}, {STEP}")
    e(f"s_mov_b32 s{sJump}, {JUMP}")
    e(f"s_mov_b32 s{sIss}, 0")
    e(f"v_lshlrev_b32 v{vLa16}, 4, v{vLane}")
    e(f"v_mov_b32 v{vZero}, 0")
    e(f"s_cmp_eq_u32 s{sWave}, {W}")
    e(f"s_waitcnt lgkmcnt(0)")
    e(f"s_cbranch_scc1 L_helper")
    if diag: e(f"s_memrealtime s[{sT0+2}:{sT0+3}]")
    e(f"s_mov_b32 s{sKV}, s6")
    e(f"s_mov_b32 s{sKV+1}, s7")
    for u in range(I0):
        issue(u, False)
    e(f"s_load_dwordx2 s[20:21], s[0:1], 64")
    e(f"s_mov_b32 s{sPar}, 0xaaaaaaaa")
    e(f"s_mov_b32 s{sPar+1}, 0xaaaaaaaa")
    e(f"s_mov_b32 s{sC}, 0x{f2u(SCALE_LOG2E):08x}")
    e(f"s_mov_b32 s{sW}, {WFIX}")
    e(f"s_lshl_b32 s{sAcc}, s{sWave}, 6")
    e(f"s_mov_b32 s{sPt}, 0")
    e(f"s_mul_i32 s{sTmp}, s{sWave}, {TOT*256}")
    e(f"s_add_u32 s{sTmp}, s{sTmp}, {LDS_SC}")
    e(f"v_lshlrev_b32 v{vSc}, 2, v{vLane}")
    e(f"v_add_u32 v{vSc}, s{sTmp}, v{vSc}")
    e(f"v_mov_b32 v{vSc0}, v{vSc}")
    e(f"v_mov_b32 v{vM}, 0x{f2u(-1e30):08x}")
    if diag:
        e(f"v_mov_b32 v{vStamp}, 0")
        e(f"s_memrealtime s[{sT0+4}:{sT0+5}]")
        e(f"s_waitcnt lgkmcnt(0)")
        e(f"v_writelane_b32 v{vStamp}, s{sT0+2}, 61")
        e(f"v_writelane_b32 v{vStamp}, s{sT0+4}, 60")

    def setup_tail(part):
        if part == 1:
            for k in range(1, T):
                e(f"s_add_u32 s{sTmp}, s{sMem}, {k}")
                e(f"s_and_b32 s{sTmp}, s{sTmp}, {T-1}")
                e(f"s_lshl_b32 s{sTmp}, s{sTmp}, 10")
                e(f"s_add_u32 s{sRem+k-1}, s{sTmp}, s{sSlot}")
            e(f"s_lshl_b32 s{sTmp}, s{sMem}, 10")
            e(f"s_add_u32 s{sSlot}, s{sSlot}, s{sTmp}")
            return
        e(f"s_mov_b32 s{sOut}, s16")
        e(f"s_mov_b32 s{sOut+1}, s17")
        e(f"s_mov_b32 s{sOut+2}, {NH*ROWB}")
        e(f"s_mov_b32 s{sOut+3}, 0x00020000")
        e(f"s_mul_i32 s{sHead}, s{sWave}, {NT}")
        e(f"s_add_u32 s{sHead}, s{sHead}, s{sTeam}")
        e(f"s_mul_i32 s{sSlot}, s{sHead}, {T*1024}")
        e(f"s_add_u32 s{sTmp}, s{sMem}, 1")
        e(f"v_add_u32 v{vHdr}, s{sTmp}, v{vLane}")
        e(f"v_and_b32 v{vHdr}, {T-1}, v{vHdr}")
        e(f"v_lshlrev_b32 v{vHdr}, 10, v{vHdr}")
        e(f"v_add_u32 v{vHdr}, s{sSlot}, v{vHdr}")
        e(f"s_lshl_b32 s{sArr}, s{sTeam}, 9")
        e(f"s_add_u32 s{sArr}, s{sArr}, {ARR_OFF}")
        if ph:
            e(f"s_lshl_b32 s{sTmp}, s{sWave}, 7")
            e(f"s_add_u32 s{sArr}, s{sArr}, s{sTmp}")
        e(f"s_mul_i32 s{sLim}, s{sHead}, {ROWB}")
        e(f"v_lshlrev_b32 v{vRec}, 4, v0")
        e(f"v_add_u32 v{vRec}, {LDS_REC}, v{vRec}")
        e(f"s_waitcnt lgkmcnt(0)")
        mk_ws()

    setup_tail(0)
    setup_tail(1)
    for u in range(I0, RU):
        gate()
        if diag and u == I0: stamp(62)
        issue(u, False)

    def qread(r):
        for n in range(3):
            e(f"ds_read_b128 v[{vQ+4*n}:{vQ+4*n+3}], v{vS16} offset:{LDS_Q + r*ROWB + n*128}")
    e(f"s_barrier")
    qread(0)
    e(f"s_waitcnt lgkmcnt(0)")

    def control():
        k = nl[0]; nl[0] += 1
        e(f"s_memrealtime s[{sTm}:{sTm+1}]")
        e(f"ds_read_b96 v[{vLat}:{vLat+2}], v{vZero} offset:{LDS_REF}")
        e(f"s_add_u32 s{sPt}, s{sPt}, {RU}")
        e(f"s_and_b32 s{sTmp}, s{sCnt}, {PU-1}")
        e(f"s_xor_b32 s{sK}, s{sWave}, 1")
        e(f"s_or_b32 s{sTmp}, s{sTmp}, s{sK}")
        e(f"s_waitcnt lgkmcnt(0)")
        e(f"s_cbranch_scc1 L_nopt{k}")
        e(f"s_lshr_b32 s{sTmp}, s{sPt}, {int(math.log2(PU)) - 2}")
        e(f"s_or_b32 s{sK}, s{sTm}, 1")
        e(f"v_mov_b32 v{vT1}, s{sTmp}")
        e(f"v_mov_b32 v{vX}, s{sK}")
        e(f"ds_write_b32 v{vT1}, v{vX} offset:{LDS_OWN-4}")
        e.label(f"L_nopt{k}")
        e(f"v_readfirstlane_b32 s{sK}, v{vLat}")
        e(f"v_readfirstlane_b32 s{sTmp}, v{vLat+1}")
        e(f"v_readfirstlane_b32 s{sTown}, v{vLat+2}")
        e(f"s_cmp_eq_u32 s{sK}, 0")
        e(f"s_cbranch_scc1 L_noctl{k}")
        e(f"s_sub_i32 s{sK}, s{sPt}, s{sK}")
        e(f"s_sub_i32 s{sTmp}, s{sTm}, s{sTmp}")
        e(f"s_mul_i32 s{sTown}, s{sTown}, s{sK}")
        e(f"s_ashr_i32 s{sTown}, s{sTown}, 4")
        e(f"s_sub_i32 s{sTmp}, s{sTmp}, s{sTown}")
        e(f"s_max_i32 s{sTmp}, s{sTmp}, -1000")
        e(f"s_min_i32 s{sTmp}, s{sTmp}, 1000")
        e(f"s_mul_i32 s{sTmp}, s{sTmp}, {int(round(gain * 256 * 256 / 100))}")
        e(f"s_ashr_i32 s{sTmp}, s{sTmp}, 8")
        e(f"s_add_i32 s{sTmp}, s{sTmp}, {WFIX}")
        e(f"s_max_i32 s{sTmp}, s{sTmp}, {int(wmin*256)}")
        e(f"s_min_i32 s{sW}, s{sTmp}, {int(wmax*256)}")
        e.label(f"L_noctl{k}")

    def phase(name, total, unit, handlers, sw):
        e(f"s_mov_b32 s{sCnt}, 0")
        e.nop(3)
        e.raw(".p2align 6")
        e.label(f"L_{name}loop")
        for u in range(RU):
            e(f"s_waitcnt vmcnt({3*(RU-1)})")
            unit(u)
            gate()
            issue(u, sw)
        e(f"v_add_u32 v{vSc}, {RU*256}, v{vSc}")
        e(f"s_add_u32 s{sCnt}, s{sCnt}, {RU}")
        control()
        e(f"s_and_b32 s{sTmp}, s{sCnt}, {SPR-1}")
        e(f"s_cbranch_scc0 L_{name}round")
        if total % SPR:
            e(f"s_cmp_lg_u32 s{sCnt}, {total}")
            e(f"s_cbranch_scc1 L_{name}loop")
            e(f"s_branch L_{name}done")
        else:
            e(f"s_branch L_{name}loop")
        e.label(f"L_{name}round")
        hs = sorted(handlers)
        for bnd in hs[1:]:
            e(f"s_cmp_eq_u32 s{sCnt}, {bnd}")
            e(f"s_cbranch_scc1 L_{name}h{bnd}")
        if total % SPR == 0:
            e(f"s_cmp_eq_u32 s{sCnt}, {total}")
            e(f"s_cbranch_scc1 L_{name}done")
        for bnd in hs:
            e.label(f"L_{name}h{bnd}")
            e.nop(3)
            handlers[bnd]()
            e.nop(2)
            e(f"s_branch L_{name}loop")
        e.label(f"L_{name}done")
        e.nop(3)

    def kunit(u):
        r0 = vRing + 12 * u
        for j in range(4):
            for n in range(3):
                e(f"v_dot2_f32_bf16 v{vS+n}, v{r0+4*n+j}, v{vQ+4*n+j}, {'0' if j == 0 else 'v%d' % (vS+n)}")
        e(f"v_add_f32 v{vS}, v{vS}, v{vS+1}")
        e(f"v_add_f32 v{vS}, v{vS}, v{vS+2}")
        for dp in ("quad_perm:[1,0,3,2]", "quad_perm:[2,3,0,1]", "row_half_mirror"):
            e(f"v_add_f32_dpp v{vS}, v{vS}, v{vS} {dp} row_mask:0xf bank_mask:0xf")
        e(f"ds_write_b32 v{vSc}, v{vS} offset:{u*256}")
        e(f"v_max_f32 v{vM}, v{vM}, v{vS}")

    def kend(r):
        def f():
            stamp(r)
            if r + 1 < NR: qread(r + 1)
            e(f"v_max_f32_dpp v{vM}, v{vM}, v{vM} row_ror:8 row_mask:0xf bank_mask:0xf")
            e(f"v_mov_b32 v{vX}, v{vM}")
            e(f"v_permlane16_swap_b32 v{vM}, v{vX}")
            e(f"v_max_f32 v{vM}, v{vM}, v{vX}")
            e(f"v_mov_b32 v{vX}, v{vM}")
            e(f"v_permlane32_swap_b32 v{vM}, v{vX}")
            e(f"v_max_f32 v{vM}, v{vM}, v{vX}")
            e(f"v_readfirstlane_b32 s{sMx+r}, v{vM}")
            e(f"v_mov_b32 v{vM}, 0x{f2u(-1e30):08x}")
            e(f"s_waitcnt lgkmcnt(0)")
        return f

    phase("k", TOT, kunit, {SPR * (r + 1): kend(r) for r in range(NR - 1)}, True)
    kend(NR - 1)()

    def vunit(u):
        r0 = vRing + 12 * (u % RU)
        e(f"v_sub_f32 v{vPh}, v{vT0}, v{vM}")
        e(f"ds_read_b32 v{vT0}, v{vSc} offset:{(u+1)*256}")
        e(f"v_mul_f32 v{vPh}, s{sC}, v{vPh}")
        e(f"v_exp_f32 v{vPh}, v{vPh}")
        e(f"v_cvt_pk_bf16_f32 v{vPh}, 0, v{vPh}")
        e(f"v_lshrrev_b32 v{vPl}, 16, v{vPh}")
        e(f"v_add_f32 v{vL}, v{vL}, v{vPh}")

    def vdots(u):
        r0 = vRing + 12 * (u % RU)
        for n in range(3):
            for j in range(4):
                e(f"v_dot2c_f32_bf16 v{vAcc+8*n+2*j}, v{r0+4*n+j}, v{vPl}")
                e(f"v_dot2c_f32_bf16 v{vAcc+8*n+2*j+1}, v{r0+4*n+j}, v{vPh}")
        e(f"s_waitcnt lgkmcnt(0)")

    def l_reduce():
        e(f"v_add_f32_dpp v{vL}, v{vL}, v{vL} row_ror:8 row_mask:0xf bank_mask:0xf")
        e(f"v_mov_b32 v{vX}, v{vL}")
        e(f"v_permlane16_swap_b32 v{vL}, v{vX}")
        e(f"v_add_f32 v{vL}, v{vL}, v{vX}")
        e(f"v_mov_b32 v{vX}, v{vL}")
        e(f"v_permlane32_swap_b32 v{vL}, v{vX}")
        e(f"v_add_f32 v{vL}, v{vL}, v{vX}")
        e(f"v_cndmask_b32 v{vO+3}, v{vL}, v{vM}, s[{sPar}:{sPar+1}]")

    def acc_reduce():
        A = lambda n, ee: vAcc + 8 * n + ee
        for n in range(3):
            for ee in range(4):
                e(f"v_permlane32_swap_b32 v{A(n,ee)}, v{A(n,ee+4)}")
        for n in range(3):
            for ee in range(4):
                e(f"v_add_f32 v{A(n,ee)}, v{A(n,ee)}, v{A(n,ee+4)}")
        for n in range(3):
            for ee in range(2):
                e(f"v_permlane16_swap_b32 v{A(n,ee)}, v{A(n,ee+2)}")
        for n in range(3):
            for ee in range(2):
                e(f"v_add_f32 v{A(n,ee)}, v{A(n,ee)}, v{A(n,ee+2)}")
        for n in range(3):
            e(f"v_add_f32_dpp v{vO+n}, v{A(n,0)}, v{A(n,0)} row_ror:8 row_mask:0xf bank_mask:0x3")
        for n in range(3):
            e(f"v_add_f32_dpp v{vO+n}, v{A(n,1)}, v{A(n,1)} row_ror:8 row_mask:0xf bank_mask:0xc")
        e(f"ds_write_b128 v{vRec}, v[{vO}:{vO+3}]")

    def vbegin(r):
        e(f"v_mov_b32 v{vL}, 0")
        for k in range(24):
            e(f"v_mov_b32 v{vAcc+k}, 0")
        e(f"v_mov_b32 v{vM}, s{sMx+r}")

    def vend(r):
        def f():
            stamp(NR + r)
            l_reduce()
            acc_reduce()
            e(f"v_add_u32 v{vRec}, {W*1024}, v{vRec}")
            vbegin(r + 1)
        return f

    e(f"v_mov_b32 v{vSc}, v{vSc0}")
    e(f"ds_read_b32 v{vT0}, v{vSc}")
    vbegin(0)
    e(f"s_waitcnt lgkmcnt(0)")
    phase("v", TOT - RU - (RU if nopen else 0), lambda u: (vunit(u), vdots(u)), {SPR * (r + 1): vend(r) for r in range(NR - 1)}, False)
    if nopen:
        for u in range(RU):
            e(f"s_waitcnt vmcnt({3*(RU-1)})")
            vunit(u); vdots(u)
            if u < RU - nopen: gate()
            issue(u, False)
        e(f"v_add_u32 v{vSc}, {RU*256}, v{vSc}")
    stamp(2 * NR - 1)
    for u in range(RU):
        vunit(u)
        if u == RU - 1:
            l_reduce()
            e(f"s_lshl_b32 s{sTmp}, s{sWave}, 12")
            e(f"s_add_u32 s{sTmp}, s{sTmp}, {LDS_REC}")
            e(f"v_add_u32 v{vT1}, s{sTmp}, v{vLa16}")
            e(f"s_lshl_b32 s{sTmp}, s{sWave}, 10")
            e(f"s_add_u32 s{sTmp}, s{sTmp}, {LDS_TREE}")
            e(f"v_add_u32 v{vSc}, s{sTmp}, v{vLa16}")
        e(f"s_waitcnt vmcnt({3*(RU-1-u)})")
        vdots(u)
    if diag:
        e(f"s_memrealtime s[{sT0+2}:{sT0+3}]")
        e(f"s_waitcnt lgkmcnt(0)")
        for j in range(4):
            e(f"v_mov_b32 v{vRing+j}, s{sT0+j}")
        e(f"s_lshl_b32 s{sTmp}, s2, 9")
        e(f"s_add_u32 s{sTmp}, s{sTmp}, {DIAG_OFF}")
        e(f"s_lshl_b32 s{sCnt}, s{sWave}, 4")
        e(f"s_add_u32 s{sTmp}, s{sTmp}, s{sCnt}")
        e(f"s_mov_b64 exec, 1")
        e(f"buffer_store_dwordx4 v[{vRing}:{vRing+3}], v{vZero}, s[{sWs}:{sWs+3}], s{sTmp} offen")
        e(f"s_mov_b64 exec, -1")
        e(f"s_mul_i32 s{sTmp}, s2, {W*256}")
        e(f"s_add_u32 s{sTmp}, s{sTmp}, {DIAG_OFF+NWG*512}")
        e(f"v_lshlrev_b32 v{vT0}, 2, v0")
        e(f"buffer_store_dword v{vStamp}, v{vT0}, s[{sWs}:{sWs+3}], s{sTmp} offen")
        e.nop(4)
    acc_reduce()
    e(f"s_mov_b32 s{sStep}, 0xfffff800")
    e(f"s_waitcnt lgkmcnt(0)")
    e(f"s_barrier")
    if diag: e(f"s_memrealtime s[{sT0}:{sT0+1}]")

    vMW = vS
    def combine(recs, out):
        n = len(recs)
        F = vAcc
        e(f"v_max_f32 v{vMW}, v{recs[0]+3}, v{recs[1]+3}")
        i = 2
        while i < n:
            if i + 1 < n:
                e(f"v_max3_f32 v{vMW}, v{vMW}, v{recs[i]+3}, v{recs[i+1]+3}"); i += 2
            else:
                e(f"v_max_f32 v{vMW}, v{vMW}, v{recs[i]+3}"); i += 1
        for i in range(n):
            e(f"v_sub_f32 v{F+i}, v{recs[i]+3}, v{vMW}")
        for i in range(n):
            e(f"v_mul_f32 v{F+i}, s{sC}, v{F+i}")
        for i in range(n):
            e(f"v_exp_f32 v{F+i}, v{F+i}")
        for i in range(n):
            e(f"v_mov_b32_dpp v{F+i}, v{F+i} quad_perm:[1,1,3,3] row_mask:0xf bank_mask:0xf")
        for j in range(4):
            e(f"v_mul_f32 v{out+j}, v{F}, v{recs[0]+j}")
        for i in range(1, n):
            for j in range(4):
                e(f"v_fmac_f32 v{out+j}, v{F+i}, v{recs[i]+j}")

    for w in range(W):
        e(f"ds_read_b128 v[{vB+4*w}:{vB+4*w+3}], v{vT1} offset:{w*1024}")
    e(f"ds_read_b128 v[{vB+16}:{vB+19}], v{vSc}")
    e(f"s_waitcnt lgkmcnt(0)")
    combine([vB + 4 * w for w in range(W + 1)], vO)
    e(f"v_cndmask_b32 v{vO+3}, v{vO+3}, v{vMW}, s[{sPar}:{sPar+1}]")
    if pk == 1:
        e(f"v_mul_u32_u24 v{vLa16}, 12, v{vLane}")
        e(f"v_lshlrev_b32 v{vT0}, 2, v{vLane}")
        e(f"buffer_store_dwordx3 v[{vO}:{vO+2}], v{vLa16}, s[{sWs}:{sWs+3}], s{sSlot} offen sc1")
        e(f"s_mov_b64 exec, 3")
        e(f"buffer_store_dword v{vO+3}, v{vT0}, s[{sWs}:{sWs+3}], s{sSlot} offen offset:768 sc1")
        e(f"s_mov_b64 exec, -1")
    elif pk == 2:
        e(f"v_lshrrev_b32 v{vB}, 21, v{vO+2}")
        e(f"v_bfe_u32 v{vB+1}, v{vO+2}, 10, 11")
        e(f"v_lshlrev_b32 v{vLa16}, 3, v{vLane}")
        e(f"v_and_or_b32 v{vB}, v{vO}, s{sStep}, v{vB}")
        e(f"v_and_or_b32 v{vB+1}, v{vO+1}, s{sStep}, v{vB+1}")
        e(f"v_lshlrev_b32 v{vT0}, 2, v{vLane}")
        e(f"buffer_store_dwordx2 v[{vB}:{vB+1}], v{vLa16}, s[{sWs}:{sWs+3}], s{sSlot} offen sc1")
        e(f"s_mov_b64 exec, 3")
        e(f"buffer_store_dword v{vO+3}, v{vT0}, s[{sWs}:{sWs+3}], s{sSlot} offen offset:768 sc1")
        e(f"s_mov_b64 exec, -1")
    else:
        e(f"buffer_store_dwordx4 v[{vO}:{vO+3}], v{vLa16}, s[{sWs}:{sWs+3}], s{sSlot} offen sc1")
    e(f"v_readlane_b32 s{sAcc}, v{vO+3}, 0")
    e(f"v_readlane_b32 s{sK}, v{vO+3}, 1")
    e(f"s_mov_b32 s{sTmp}, 1")
    e(f"v_mov_b32 v{vX}, 1")
    e(f"v_writelane_b32 v{vHm}, s{sK}, 15")
    e(f"v_writelane_b32 v{vHl}, s{sAcc}, 15")
    if ph:
        e(f"s_mov_b64 exec, 1")
        e(f"s_waitcnt vmcnt(0)")
        if diag: e(f"s_memrealtime s[{sT0+2}:{sT0+3}]")
        e(f"buffer_atomic_add v{vX}, v{vZero}, s[{sWs}:{sWs+3}], s{sArr} offen sc0")
        e(f"s_waitcnt vmcnt(0)")
        e(f"v_readfirstlane_b32 s{sTmp}, v{vX}")
    else:
        e(f"s_cmp_lg_u32 s{sWave}, 0")
        e(f"s_waitcnt vmcnt(0)")
        e(f"s_barrier")
        if diag: e(f"s_memrealtime s[{sT0+2}:{sT0+3}]")
        e(f"s_cbranch_scc1 L_wait")
        if vat:
            e(f"s_mov_b64 exec, 1")
            e(f"buffer_atomic_add v{vX}, v{vZero}, s[{sWs}:{sWs+3}], s{sArr} offen sc0")
            e(f"s_waitcnt vmcnt(0)")
            e(f"ds_write_b32 v{vZero}, v{vX} offset:{LDS_FLAG}")
            e(f"v_readfirstlane_b32 s{sTmp}, v{vX}")
            e(f"s_mov_b64 exec, -1")
        else:
            e(f"s_atomic_add s{sTmp}, s[20:21], s{sArr} glc")
            e(f"s_waitcnt lgkmcnt(0)")
            e(f"v_mov_b32 v{vX}, s{sTmp}")
            e(f"ds_write_b32 v{vZero}, v{vX} offset:{LDS_FLAG}")
        e(f"s_waitcnt lgkmcnt(0)")
        e(f"s_barrier")
        e(f"s_branch L_got")
        e.label("L_wait")
        e(f"s_barrier")
        e(f"ds_read_b32 v{vX}, v{vZero} offset:{LDS_FLAG}")
        e(f"s_waitcnt lgkmcnt(0)")
        e(f"v_readfirstlane_b32 s{sTmp}, v{vX}")
    e.label("L_got")
    if diag:
        e(f"s_memrealtime s[92:93]")
        e(f"s_mov_b64 s[94:95], 0")
        e(f"s_mov_b64 s[96:97], 0")
    e(f"s_cmp_lg_u32 s{sTmp}, {T-1}")
    e(f"s_cbranch_scc1 L_fin")
    e(f"s_mov_b64 exec, 0x7fff")
    e(f"buffer_load_dword v{vHm}, v{vHdr}, s[{sWs}:{sWs+3}], 0 offen offset:{772 if pk else 28} sc1")
    e(f"buffer_load_dword v{vHl}, v{vHdr}, s[{sWs}:{sWs+3}], 0 offen offset:{768 if pk else 12} sc1")
    e(f"s_mov_b64 exec, -1")
    for m in range(T - 1):
        if pk == 2: e(f"buffer_load_dwordx2 v[{vR+4*m}:{vR+4*m+1}], v{vLa16}, s[{sWs}:{sWs+3}], s{sRem+m} offen sc1")
        elif 'f' in x: e(f"buffer_load_dwordx4 v[{vR+4*m}:{vR+4*m+3}], v{vLa16}, s[{sWs}:{sWs+3}], s{sRem+m} offen sc1")
        else: e(f"buffer_load_dwordx3 v[{vR+4*m}:{vR+4*m+2}], v{vLa16}, s[{sWs}:{sWs+3}], s{sRem+m} offen sc1")
    if diag and 'i' in x: e(f"s_memrealtime s[94:95]")
    e(f"s_waitcnt vmcnt({T})")
    if diag and 'h' in x: e(f"s_memrealtime s[94:95]")
    e(f"v_max_f32_dpp v{vMW}, v{vHm}, v{vHm} row_ror:8 row_mask:0xf bank_mask:0xf")
    for rr in (4, 2, 1):
        e(f"v_max_f32_dpp v{vMW}, v{vMW}, v{vMW} row_ror:{rr} row_mask:0xf bank_mask:0xf")
    e(f"v_sub_f32 v{vHm}, v{vHm}, v{vMW}")
    e(f"v_mul_f32 v{vHm}, s{sC}, v{vHm}")
    e(f"v_exp_f32 v{vHm}, v{vHm}")
    e(f"s_waitcnt vmcnt({T-1})")
    e(f"v_mul_f32 v{vHl}, v{vHl}, v{vHm}")
    rs = [8, 4, 2, 1]
    for m in range(T):
        e(f"v_readlane_b32 s{sRem+m}, v{vHm}, {m}")
        if m % 3 == 1 and rs:
            e(f"v_add_f32_dpp v{vHl}, v{vHl}, v{vHl} row_ror:{rs.pop(0)} row_mask:0xf bank_mask:0xf")
    e(f"v_rcp_f32 v{vHl}, v{vHl}")
    for j in range(3):
        e(f"v_mul_f32 v{vO+j}, s{sRem+15}, v{vO+j}")
    e(f"v_readfirstlane_b32 s{sTmp}, v{vHl}")
    if diag and 'r' in x: e(f"s_memrealtime s[94:95]")
    for m in range(T - 1):
        if m % 3 == 0:
            e(f"s_waitcnt vmcnt({max(0, T - 1 - (m + 3))})")
            if diag and m == 12 and not set('ihr') & set(x): e(f"s_memrealtime s[94:95]")
        if pk == 2:
            e(f"v_lshlrev_b32 v{vR+4*m+2}, 21, v{vR+4*m+1}")
            e(f"v_fmac_f32 v{vO}, s{sRem+m}, v{vR+4*m}")
            e(f"v_alignbit_b32 v{vR+4*m+2}, v{vR+4*m}, v{vR+4*m+2}, 11")
            e(f"v_fmac_f32 v{vO+1}, s{sRem+m}, v{vR+4*m+1}")
            e(f"v_fmac_f32 v{vO+2}, s{sRem+m}, v{vR+4*m+2}")
            continue
        for j in range(3):
            e(f"v_fmac_f32 v{vO+j}, s{sRem+m}, v{vR+4*m+j}")
    for j in range(3):
        e(f"v_mul_f32 v{vO+j}, s{sTmp}, v{vO+j}")
    for j in range(3):
        e(f"v_cvt_pk_bf16_f32 v{vO+j}, v{vO+j}, v{vO+j}")
    for j in range(3):
        e(f"buffer_store_short v{vO+j}, v{vOutOff}, s[{sOut}:{sOut+3}], s{sLim} offen offset:{j*128}{opol}")
    if diag: e(f"s_memrealtime s[96:97]")
    e.label("L_fin")
    if diag:
        e(f"s_cmp_lg_u32 s{sWave}, 1")
        e(f"s_cbranch_scc1 L_end")
        e(f"s_waitcnt vmcnt(0)")
        e(f"s_memrealtime s[{sT0+4}:{sT0+5}]")
        e(f"s_getreg_b32 s{sT0+6}, hwreg(HW_REG_XCC_ID)")
        e(f"s_getreg_b32 s{sT0+7}, hwreg(HW_REG_HW_ID)")
        e(f"s_waitcnt lgkmcnt(0)")
        for j in range(8):
            e(f"v_mov_b32 v{vR+j}, s{sT0+j}")
        e(f"s_lshl_b32 s{sTmp}, s2, 9")
        e(f"s_add_u32 s{sTmp}, s{sTmp}, {DIAG_OFF+256}")
        e(f"s_mov_b64 exec, 1")
        e(f"buffer_store_dwordx4 v[{vR}:{vR+3}], v{vZero}, s[{sWs}:{sWs+3}], s{sTmp} offen")
        e(f"buffer_store_dwordx4 v[{vR+4}:{vR+7}], v{vZero}, s[{sWs}:{sWs+3}], s{sTmp} offen offset:16")
        for j in range(3):
            e(f"v_mov_b32 v{vR+8+j}, s{92+2*j}")
        e(f"buffer_store_dwordx4 v[{vR+8}:{vR+11}], v{vZero}, s[{sWs}:{sWs+3}], s{sTmp} offen offset:32")
    e("s_endpgm")

    e.label("L_helper")
    e.nop(3)
    hb = vAcc
    e(f"s_mul_i32 s{sTmp}, s{sTeam}, {ROWB}")
    e(f"v_add_u32 v{vT1}, s{sTmp}, v{vLa16}")
    e(f"s_mov_b64 exec, 0xffffff")
    for r in range(NR):
        if r: e(f"v_add_u32 v{vT1}, {NT*ROWB}, v{vT1}")
        e(f"global_load_dwordx4 v[{hb+4*r}:{hb+4*r+3}], v{vT1}, s[4:5]")
    e(f"s_mov_b64 exec, -1")
    e(f"s_load_dwordx2 s[20:21], s[0:1], 64")
    e(f"s_memrealtime s[{sStart}:{sStart+1}]")
    e(f"v_lshlrev_b32 v{vT0}, 2, v{vLane}")
    e(f"ds_write_b32 v{vT0}, v{vZero}")
    e(f"s_mov_b32 s{sPar}, 0xaaaaaaaa")
    e(f"s_mov_b32 s{sPar+1}, 0xaaaaaaaa")
    e(f"s_mov_b64 exec, 0xffffff")
    e(f"s_waitcnt vmcnt(0)")
    for r in range(NR):
        e(f"ds_write_b128 v{vLa16}, v[{hb+4*r}:{hb+4*r+3}] offset:{LDS_Q + r*ROWB}")
    e(f"s_mov_b64 exec, -1")
    e(f"s_waitcnt lgkmcnt(0)")
    e(f"s_barrier")
    mk_ws()
    e(f"v_mov_b32 v{vO}, 0")
    e(f"v_mov_b32 v{vO+1}, 0")
    e(f"v_mov_b32 v{vO+2}, 0")
    e(f"v_mov_b32 v{vM}, 0x{f2u(-1e30):08x}")
    e(f"v_cndmask_b32 v{vO+3}, v{vO}, v{vM}, s[{sPar}:{sPar+1}]")
    e(f"v_add_u32 v{vRec}, {LDS_TREE}, v{vLa16}")
    e(f"s_add_u32 s{sTmp}, s{sTeam}, 1")
    e(f"s_and_b32 s{sTmp}, s{sTmp}, {T-1}")
    e(f"s_cmp_eq_u32 s{sMem}, s{sTmp}")
    e(f"s_cbranch_scc1 L_tree")
    for r in range(NR):
        e(f"ds_write_b128 v{vRec}, v[{vO}:{vO+3}] offset:{r*1024}")
    e(f"s_branch L_treedone")
    e.label("L_tree")
    e(f"s_lshl_b32 s{sArr}, s{sTeam}, 9")
    e(f"s_add_u32 s{sArr}, s{sArr}, {ARR_OFF}")
    e(f"v_lshlrev_b32 v{vT0}, 7, v{vLane}")
    e(f"v_mov_b32 v{vPh}, 0")
    e(f"s_mov_b64 exec, 15")
    e(f"buffer_atomic_swap v{vPh}, v{vT0}, s[{sWs}:{sWs+3}], s{sArr} offen sc0")
    e(f"s_mov_b64 exec, -1")
    e(f"s_mul_i32 s{sTmp}, s{sTeam}, {ROWB}")
    e(f"v_add_u32 v{vT1}, s{sTmp}, v{vOutOff}")
    e(f"v_add_u32 v{vAl}, s{sTmp}, v{vS16}")
    hb = 56
    vEnd = max(vEnd, hb + 16 * NR + 12)
    hq = hb + 16 * NR
    for r in range(NR):
        b = hb + 16 * r
        e(f"v_add_u32 v{vT0}, {r*NT*ROWB}, v{vAl}")
        for n in range(3):
            e(f"global_load_dwordx4 v[{b+4*n}:{b+4*n+3}], v{vT0}, s[10:11] offset:{n*128}")
        e(f"v_add_u32 v{vT0}, {r*NT*ROWB}, v{vT1}")
        for n in range(3):
            e(f"global_load_ushort v{b+12+n}, v{vT0}, s[12:13] offset:{n*128}")
        e(f"s_add_u32 s{sTmp}, s{sTeam}, {r*NT}")
        e(f"s_lshr_b32 s{sTmp}, s{sTmp}, 5")
        e(f"s_lshl_b32 s{sTmp}, s{sTmp}, 1")
        e(f"v_mov_b32 v{vT0}, s{sTmp}")
        e(f"global_load_ushort v{b+15}, v{vT0}, s[14:15]")
    e(f"v_mov_b32 v{vX}, 0x{f2u(MASKRAW):08x}")
    e(f"s_lshl_b32 s{sArr}, s{sTeam}, 4")
    e(f"v_mov_b32 v{vT0}, s{sArr}")
    e(f"v_mov_b32 v{vPl}, 1")
    e(f"s_waitcnt vmcnt(0)")
    e(f"s_mov_b64 exec, 1")
    e(f"global_atomic_add v{vT0}, v{vPl}, s[18:19]")
    e(f"s_mov_b64 exec, -1")
    for r in range(NR):
        b = hb + 16 * r
        for n in range(3):
            e(f"ds_read_b128 v[{hq+4*n}:{hq+4*n+3}], v{vS16} offset:{LDS_Q + r*ROWB + n*128}")
        e(f"s_waitcnt lgkmcnt(0)")
        for j in range(4):
            for n in range(3):
                e(f"v_dot2_f32_bf16 v{vS+n}, v{b+4*n+j}, v{hq+4*n+j}, {'0' if j == 0 else 'v%d' % (vS+n)}")
        for n in range(4):
            e(f"v_lshlrev_b32 v{b+12+n}, 16, v{b+12+n}")
        e(f"v_add_f32 v{vS}, v{vS}, v{vS+1}")
        e(f"v_add_f32 v{vS}, v{vS}, v{vS+2}")
        for dp in ("quad_perm:[1,0,3,2]", "quad_perm:[2,3,0,1]", "row_half_mirror"):
            e(f"v_add_f32_dpp v{vS}, v{vS}, v{vS} {dp} row_mask:0xf bank_mask:0xf")
        e(f"v_sub_f32 v{b+15}, 1.0, v{b+15}")
        e(f"v_fma_f32 v{vS}, v{b+15}, v{vX}, v{vS}")
        e(f"v_cndmask_b32 v{b+15}, 1.0, v{vS}, s[{sPar}:{sPar+1}]")
        e(f"ds_write_b128 v{vRec}, v[{b+12}:{b+15}] offset:{r*1024}")
    e.label("L_treedone")
    LASTP = (2 * TOT - RU) // PU - 1
    sPub, sLead, sRefl, sTry, sR1, sR2 = sCnt, sIss, sStep, sJump, sBase, sPos
    e(f"s_mov_b32 s{sPt}, 0")
    e(f"s_getreg_b32 s{sRefl}, hwreg(HW_REG_XCC_ID)")
    e(f"s_and_b32 s{sRefl}, s{sRefl}, 15")
    e(f"s_lshl_b32 s{sRefl}, s{sRefl}, 7")
    e(f"s_add_u32 s{sRefl}, s{sRefl}, {REFL}")
    e(f"v_lshlrev_b32 v{vHdr}, 7, v{vLane}")
    e(f"s_cmp_eq_u32 s{sTeam}, s{sMem}")
    e(f"s_cselect_b32 s{sPub}, 1, 0")
    e(f"s_cmp_lt_u32 s{sTeam}, {nlead}")
    e(f"s_cselect_b32 s{sLead}, s{sPub}, 0")
    e(f"s_lshl_b32 s{sTmp}, s{sTeam}, 7")
    e(f"v_mov_b32 v{vHl}, s{sTmp}")
    e(f"s_mov_b32 s{sOff}, {HINT_OFF}")
    e(f"s_mov_b32 s{sSlot}, 100000")
    e(f"s_mov_b64 exec, 1")
    e(f"s_waitcnt lgkmcnt(0)")
    e.label("L_hp")
    e(f"s_lshl_b32 s{sTmp}, s{sPt}, 2")
    e(f"v_mov_b32 v{vT1}, s{sTmp}")
    e.label("L_hwait")
    e(f"s_sleep {poll}")
    e(f"s_cmp_lg_u32 s{sLead}, 0")
    e(f"s_cbranch_scc1 L_hnoref")
    e(f"s_cmp_lt_u32 s{sPt}, 2")
    e(f"s_cbranch_scc1 L_hnoref")
    e(f"buffer_load_dwordx3 v[{vLat}:{vLat+2}], v{vZero}, s[{sWs}:{sWs+3}], s{sRefl} offen sc1")
    e(f"s_waitcnt vmcnt(0)")
    e(f"v_readfirstlane_b32 s{sTmp}, v{vLat+1}")
    e(f"s_sub_u32 s{sTmp}, s{sTmp}, s{sStart}")
    e(f"s_cmp_lt_u32 s{sTmp}, s{sSlot}")
    e(f"s_cbranch_scc0 L_hnoref")
    e(f"ds_write_b96 v{vZero}, v[{vLat}:{vLat+2}] offset:{LDS_REF}")
    e.label("L_hnoref")
    e(f"ds_read_b32 v{vX}, v{vT1} offset:{LDS_OWN}")
    e(f"s_waitcnt lgkmcnt(0)")
    e(f"v_readfirstlane_b32 s{sTown}, v{vX}")
    e(f"s_cmp_eq_u32 s{sTown}, 0")
    e(f"s_cbranch_scc1 L_hwait")
    e(f"s_cmp_eq_u32 s{sPub}, 0")
    e(f"s_cbranch_scc1 L_hnext")
    e(f"buffer_store_dword v{vX}, v{vHl}, s[{sWs}:{sWs+3}], s{sOff} offen sc1")
    e(f"s_cmp_eq_u32 s{sLead}, 0")
    e(f"s_cbranch_scc1 L_hnext")
    e(f"s_mov_b64 exec, 0xffff")
    e(f"s_mov_b32 s{sTry}, {tries}")
    e.label("L_hgather")
    e(f"s_sleep {dly}")
    e(f"buffer_load_dword v{vHm}, v{vHdr}, s[{sWs}:{sWs+3}], s{sOff} offen sc1")
    e(f"s_sub_u32 s{sTry}, s{sTry}, 1")
    e(f"s_waitcnt vmcnt(0)")
    e(f"v_subrev_u32 v{vHm}, s{sStart}, v{vHm}")
    e(f"v_cmp_le_u32 vcc, s{sSlot}, v{vHm}")
    e(f"s_cbranch_vccz L_hall")
    e(f"s_cmp_lg_u32 s{sTry}, 0")
    e(f"s_cbranch_scc1 L_hgather")
    e(f"s_sub_u32 s{sK}, s{sTown}, s{sStart}")
    e(f"s_add_u32 s{sK}, s{sK}, 250")
    e(f"v_mov_b32 v{vT0}, s{sK}")
    e(f"v_cndmask_b32 v{vHm}, v{vHm}, v{vT0}, vcc")
    e.label("L_hall")
    e.nop(2)
    for dp in ("quad_perm:[1,0,3,2]", "quad_perm:[2,3,0,1]", "row_half_mirror", "row_mirror"):
        e(f"v_add_u32_dpp v{vHm}, v{vHm}, v{vHm} {dp} row_mask:0xf bank_mask:0xf")
    e(f"v_lshrrev_b32 v{vHm}, 4, v{vHm}")
    e(f"v_add_u32 v{vLat+1}, s{sStart}, v{vHm}")
    e(f"s_mov_b64 exec, 1")
    e(f"v_readfirstlane_b32 s{sTown}, v{vLat+1}")
    e(f"s_add_u32 s{sTmp}, s{sPt}, 1")
    e(f"s_mul_i32 s{sTmp}, s{sTmp}, {PU}")
    e(f"v_mov_b32 v{vLat}, s{sTmp}")
    e(f"s_sub_u32 s{sK}, s{sTown}, s{sR1}")
    e(f"s_lshl_b32 s{sK}, s{sK}, 1")
    e(f"s_sub_u32 s{sTmp}, s{sTown}, s{sR2}")
    e(f"s_cmp_eq_u32 s{sPt}, 1")
    e(f"s_cselect_b32 s{sTmp}, s{sK}, s{sTmp}")
    if 2 * PU > 16: e(f"s_lshr_b32 s{sTmp}, s{sTmp}, {int(math.log2(2 * PU)) - 4}")
    if 2 * PU < 16: e(f"s_lshl_b32 s{sTmp}, s{sTmp}, {4 - int(math.log2(2 * PU))}")
    e(f"v_mov_b32 v{vLat+2}, s{sTmp}")
    e(f"s_mov_b32 s{sR2}, s{sR1}")
    e(f"s_mov_b32 s{sR1}, s{sTown}")
    e(f"s_cmp_eq_u32 s{sPt}, 0")
    e(f"s_cbranch_scc1 L_hnext")
    e(f"buffer_store_dwordx3 v[{vLat}:{vLat+2}], v{vZero}, s[{sWs}:{sWs+3}], s{sRefl} offen")
    e(f"ds_write_b96 v{vZero}, v[{vLat}:{vLat+2}] offset:{LDS_REF}")
    e.label("L_hnext")
    e(f"s_add_u32 s{sOff}, s{sOff}, {16*128}")
    e(f"s_add_u32 s{sPt}, s{sPt}, 1")
    e(f"s_cmp_lt_u32 s{sPt}, {LASTP}")
    e(f"s_cbranch_scc1 L_hp")
    if touch:
        e(f"global_load_dword v{vAl}, v{vZero}, s[16:17]")
    e(f"s_lshl_b32 s{sArr}, s{sTeam}, 4")
    e(f"s_load_dword s{sLim}, s[18:19], s{sArr}")
    e.label("L_rdy")
    e(f"s_waitcnt lgkmcnt(0)")
    e(f"s_cmp_lg_u32 s{sLim}, 0")
    e(f"s_cbranch_scc1 L_rdyok")
    e(f"s_sleep 16")
    e(f"s_atomic_add s{sLim}, s[18:19], s{sArr} glc")
    e(f"s_branch L_rdy")
    e.label("L_rdyok")
    e(f"s_barrier")
    e.label("L_end")
    e("s_endpgm")

    acc_off = (vEnd + 3) // 4 * 4
    assert vEnd <= 256 and sEnd <= 92
    out = HEADER
    out += f"; params: v10 v4 HW=1 RU={RU} W0={W0} I0={I0} rotm={rotm} gain={gain} PU={PU} dly={dly} wmin={wmin} wmax={wmax} nlead={nlead} {'diag' if diag else ''} off={DIAG_OFF}\n"
    out += f"; @launch grid=({NWG},1,1) block=({(W+1)*64},1,1) lds={LDS_BYTES}\n"
    out += f""".amdgcn_target "amdgcn-amd-amdhsa--gfx950"
.text
.globl {NAME}_kernel
.p2align 8
.type {NAME}_kernel,@function
{NAME}_kernel:
"""
    out += "\n".join(e.lines) + "\n"
    out += f""".section .rodata,"a"
.p2align 6
.amdhsa_kernel {NAME}_kernel
  .amdhsa_next_free_vgpr {vEnd}
  .amdhsa_next_free_sgpr {100 if diag else sEnd}
  .amdhsa_accum_offset {acc_off}
  .amdhsa_group_segment_fixed_size 0
  .amdhsa_kernarg_size 72
  .amdhsa_user_sgpr_count 2
  .amdhsa_user_sgpr_kernarg_segment_ptr 1
  .amdhsa_system_sgpr_workgroup_id_x 1
.end_amdhsa_kernel
"""
    return out


if __name__ == "__main__":
    ap = argparse.ArgumentParser()
    ap.add_argument("-o", default="cdna_kernels/" + NAME + ".s")
    for k, t, d in (("ru", int, 4), ("w0", float, 2.0), ("i0", int, 2), ("rotm", int, 4), ("gain", float, 0.8), ("pu", int, 8),
                    ("dly", int, 20), ("wmin", float, 1.0), ("wmax", float, 3.0), ("tries", int, 3), ("nlead", int, 16),
                    ("touch", int, 1), ("poll", int, 6), ("vat", int, 0), ("x", str, ""), ("opol", str, "sc1"), ("nopen", int, 0), ("pk", int, 0), ("ph", int, 0)):
        ap.add_argument("--" + k, type=t, default=d)
    ap.add_argument("--diag", action="store_true")
    a = ap.parse_args()
    open(a.o, "w").write(gen(a.ru, a.w0, a.i0, "nt", a.diag, a.rotm, (" " + a.opol) if a.opol else "", a.gain, a.pu, a.dly, a.wmin, a.wmax,
                             a.tries, a.nlead, a.touch, a.poll, a.vat, a.x, a.nopen, a.pk, a.ph))
```

```python
import math, argparse
from gen import Em, f2u, NAME, HEADER, NH, C, DH, ROWB, HEADB, KVB, SCALE_LOG2E, MASKRAW


def gen(RU=4, W0=2.0, I0=2, pol="nt", diag=False, rotm=4, opol=" sc1", gain=0.8, PU=8, dly=20, wmin=1.0, wmax=3.0,
        tries=3, nlead=16, touch=1, poll=6, vat=0, x="", nopen=0, pk=0, ph=0, pm=0, pair=0, tm=0):
    T, W, NWG = 16, 4, 256
    NT = NWG // T
    NR = T // 4
    NWV = T * W
    SPR = 1024 // NWV
    TOT = NR * SPR
    STEP = NWV * 3072 * (2 if pair else 1)
    JUMP = STEP + (NT - 1) * HEADB
    assert SPR % RU == 0 and PU % RU == 0
    pol = (" " + pol) if pol else ""
    NP = 2 * TOT // PU
    HINT_OFF = NH * T * 1024
    REFL = HINT_OFF + NP * 16 * 128
    ARR_OFF = REFL + 16 * 128
    DIAG_OFF = ARR_OFF + NT * 512
    WS_BYTES = DIAG_OFF + (NWG * 512 + NWG * W * 256 if diag else 0)
    LDS_FLAG = 0
    LDS_REF = 16
    LDS_OWN = 64
    LDS_Q = 512
    LDS_SC = 2048
    assert LDS_OWN + 4 * NP <= 256 and LDS_Q + NR * ROWB <= LDS_SC
    LDS_REC = LDS_SC + W * TOT * 256
    LDS_TREE = LDS_REC + NR * W * 1024
    LDS_BYTES = LDS_TREE + NR * 1024
    assert LDS_BYTES > 81920
    e = Em()
    c = lambda t: e.raw("    ; " + t)
    vOff, vT0, vT1, vM, vL, vSc, vAl, vLane, vStamp, vPh, vPl = 1, 2, 3, 4, 5, 6, 7, 8, 9, 10, 11
    vS = 12
    vX = 15
    vSc0, vLa16, vOutOff, vRec = 16, 17, 18, 19
    vS16, vHdr, vHm, vHl = 20, 21, 22, 23
    vO = 24
    vAcc = 28
    vLat, vZero = 52, 55
    vQ = 56
    vRing = 68
    vR = 56
    vB = vR + 60
    vEnd = max(vRing + 12 * RU, vB + 20)
    sKV = 24
    sAcc, sK, sPt, sTown = 28, 29, 30, 31
    sTm = 32
    sStart = 34
    sTeam, sMem, sWave, sOff, sIss, sCnt, sC, sTmp = 36, 37, 38, 39, 40, 41, 42, 43
    sPar = 44
    sPos, sBase = 46, 47
    sWs, sOut = 48, 52
    sT0 = 56
    sHead, sSlot, sLim, sArr, sStep, sJump, sOff0, sW = 64, 65, 66, 67, 68, 69, 70, 71
    sMx = 72
    sRem = 76
    sEnd = sRem + 16
    WFIX = int(round(W0 * 256))
    nl = [0]

    def advance(sw, odd_next=False):
        if pair and odd_next:
            e(f"s_add_u32 s{sIss}, s{sIss}, 1")
            e(f"s_add_u32 s{sOff}, s{sOff}, 3072")
            return
        e(f"s_add_u32 s{sIss}, s{sIss}, 1")
        e(f"s_and_b32 s{sTmp}, s{sIss}, {SPR-1}")
        e(f"s_cselect_b32 s{sTmp}, s{sStep}, s{sJump}")
        e(f"s_add_u32 s{sBase}, s{sBase}, s{sTmp}")
        if sw:
            e(f"s_cmp_eq_u32 s{sIss}, {TOT}")
            e(f"s_cselect_b32 s{sKV}, s8, s{sKV}")
            e(f"s_cselect_b32 s{sKV+1}, s9, s{sKV+1}")
            e(f"s_cselect_b32 s{sBase}, s{sOff0}, s{sBase}")
        if rotm:
            assert (TOT // (2 if pair else 1) * rotm) % NWV == 0
            e(f"s_add_u32 s{sPos}, s{sPos}, {rotm}")
            e(f"s_and_b32 s{sPos}, s{sPos}, {NWV-1}")
        e(f"s_mul_i32 s{sTmp}, s{sPos}, {6144 if pair else 3072}")
        e(f"s_add_u32 s{sOff}, s{sBase}, s{sTmp}")

    def issue(ru, sw):
        for n in range(3):
            r = vRing + 12 * ru + 4 * n
            e(f"buffer_load_dwordx4 v[{r}:{r+3}], v{vOff}, s[{sKV}:{sKV+3}], s{sOff} offen offset:{n*128}{pol}")
        advance(sw, ru % 2 == 0)

    KMAX = min(RU - 1, int(math.ceil(wmax)))
    def gate():
        k = nl[0]; nl[0] += 1
        e(f"s_add_u32 s{sAcc}, s{sAcc}, s{sW}")
        e(f"s_lshr_b32 s{sK}, s{sAcc}, 8")
        e(f"s_and_b32 s{sAcc}, s{sAcc}, 255")
        for lv in range(KMAX, 0, -1):
            if lv < wmax:
                e(f"s_cmp_gt_u32 s{sK}, {lv}")
                e(f"s_cbranch_scc1 L_go{k}")
            e(f"s_waitcnt vmcnt({3*(lv-1) if lv > 1 else 2})")
        e.label(f"L_go{k}")

    def stamp(k):
        if diag:
            e(f"s_memrealtime s[{sT0+4}:{sT0+5}]")
            e(f"s_waitcnt lgkmcnt(0)")
            e(f"v_writelane_b32 v{vStamp}, s{sT0+4}, {k}")

    def mk_ws():
        e(f"s_mov_b32 s{sWs}, s20")
        e(f"s_mov_b32 s{sWs+1}, s21")
        e(f"s_mov_b32 s{sWs+2}, {WS_BYTES}")
        e(f"s_mov_b32 s{sWs+3}, 0x00020000")

    e(f"s_cmp_ge_u32 s2, {NWG}")
    e(f"s_cbranch_scc1 L_end")
    e(f"s_load_dwordx16 s[4:19], s[0:1], 0")
    if diag: e(f"s_memrealtime s[{sT0}:{sT0+1}]")
    e(f"v_lshrrev_b32 v{vT0}, 6, v0")
    e(f"v_and_b32 v{vLane}, 63, v0")
    e(f"v_readfirstlane_b32 s{sWave}, v{vT0}")
    e(f"v_lshrrev_b32 v{vT0}, 3, v{vLane}")
    e(f"v_and_b32 v{vS16}, 7, v{vLane}")
    e(f"v_mul_u32_u24 v{vOff}, {ROWB}, v{vT0}")
    e(f"v_lshlrev_b32 v{vS16}, 4, v{vS16}")
    e(f"v_add_u32 v{vOff}, v{vOff}, v{vS16}")
    e(f"v_lshl_add_u32 v{vOutOff}, v{vT0}, 1, v{vS16}")
    if tm == 1:
        e(f"s_and_b32 s{sTeam}, s2, 7")
        e(f"s_lshr_b32 s{sTmp}, s2, 7")
        e(f"s_lshl_b32 s{sTeam}, s{sTeam}, 1")
        e(f"s_add_u32 s{sTeam}, s{sTeam}, s{sTmp}")
        e(f"s_bfe_u32 s{sMem}, s2, {(4 << 16) | 3}")
    elif tm == 2:
        e(f"s_bfe_u32 s{sTeam}, s2, {(2 << 16) | 1}")
        e(f"s_lshr_b32 s{sTmp}, s2, 6")
        e(f"s_lshl_b32 s{sTeam}, s{sTeam}, 2")
        e(f"s_add_u32 s{sTeam}, s{sTeam}, s{sTmp}")
        e(f"s_bfe_u32 s{sMem}, s2, {(3 << 16) | 3}")
        e(f"s_and_b32 s{sTmp}, s2, 1")
        e(f"s_lshl_b32 s{sTmp}, s{sTmp}, 3")
        e(f"s_add_u32 s{sMem}, s{sMem}, s{sTmp}")
    elif tm == 4:
        e(f"s_bfe_u32 s{sTeam}, s2, {(1 << 16) | 2}")
        e(f"s_lshr_b32 s{sTmp}, s2, 5")
        e(f"s_lshl_b32 s{sTeam}, s{sTeam}, 3")
        e(f"s_add_u32 s{sTeam}, s{sTeam}, s{sTmp}")
        e(f"s_bfe_u32 s{sMem}, s2, {(2 << 16) | 3}")
        e(f"s_and_b32 s{sTmp}, s2, 3")
        e(f"s_lshl_b32 s{sTmp}, s{sTmp}, 2")
        e(f"s_add_u32 s{sMem}, s{sMem}, s{sTmp}")
    else:
        e(f"s_lshr_b32 s{sTeam}, s2, 4")
        e(f"s_and_b32 s{sMem}, s2, {T-1}")
    e(f"s_mul_i32 s{sBase}, s{sTeam}, {HEADB}")
    if pm == 2:
        e(f"s_and_b32 s{sPos}, s{sMem}, 7")
        e(f"s_lshl_b32 s{sPos}, s{sPos}, 1")
        e(f"s_lshr_b32 s{sTmp}, s{sMem}, 3")
        e(f"s_add_u32 s{sPos}, s{sPos}, s{sTmp}")
        e(f"s_lshl_b32 s{sPos}, s{sPos}, 2")
        e(f"s_add_u32 s{sPos}, s{sPos}, s{sWave}")
    elif pm:
        e(f"s_lshl_b32 s{sPos}, s{sWave}, 4")
        e(f"s_add_u32 s{sPos}, s{sPos}, s{sMem}")
    else:
        e(f"s_lshl_b32 s{sPos}, s{sMem}, 2")
        e(f"s_add_u32 s{sPos}, s{sPos}, s{sWave}")
    e(f"s_mul_i32 s{sTmp}, s{sPos}, {6144 if pair else 3072}")
    e(f"s_add_u32 s{sOff}, s{sBase}, s{sTmp}")
    e(f"s_mov_b32 s{sOff0}, s{sBase}")
    e(f"s_mov_b32 s{sKV+2}, {KVB}")
    e(f"s_mov_b32 s{sKV+3}, 0x00020000")
    e(f"s_mov_b32 s{sStep}, {STEP}")
    e(f"s_mov_b32 s{sJump}, {JUMP}")
    e(f"s_mov_b32 s{sIss}, 0")
    e(f"v_lshlrev_b32 v{vLa16}, 4, v{vLane}")
    e(f"v_mov_b32 v{vZero}, 0")
    e(f"s_cmp_eq_u32 s{sWave}, {W}")
    e(f"s_waitcnt lgkmcnt(0)")
    e(f"s_cbranch_scc1 L_helper")
    if diag: e(f"s_memrealtime s[{sT0+2}:{sT0+3}]")
    e(f"s_mov_b32 s{sKV}, s6")
    e(f"s_mov_b32 s{sKV+1}, s7")
    for u in range(I0):
        issue(u, False)
    e(f"s_load_dwordx2 s[20:21], s[0:1], 64")
    e(f"s_mov_b32 s{sPar}, 0xaaaaaaaa")
    e(f"s_mov_b32 s{sPar+1}, 0xaaaaaaaa")
    e(f"s_mov_b32 s{sC}, 0x{f2u(SCALE_LOG2E):08x}")
    e(f"s_mov_b32 s{sW}, {WFIX}")
    e(f"s_lshl_b32 s{sAcc}, s{sWave}, 6")
    e(f"s_mov_b32 s{sPt}, 0")
    e(f"s_mul_i32 s{sTmp}, s{sWave}, {TOT*256}")
    e(f"s_add_u32 s{sTmp}, s{sTmp}, {LDS_SC}")
    e(f"v_lshlrev_b32 v{vSc}, 2, v{vLane}")
    e(f"v_add_u32 v{vSc}, s{sTmp}, v{vSc}")
    e(f"v_mov_b32 v{vSc0}, v{vSc}")
    e(f"v_mov_b32 v{vM}, 0x{f2u(-1e30):08x}")
    if diag:
        e(f"v_mov_b32 v{vStamp}, 0")
        e(f"s_memrealtime s[{sT0+4}:{sT0+5}]")
        e(f"s_waitcnt lgkmcnt(0)")
        e(f"v_writelane_b32 v{vStamp}, s{sT0+2}, 61")
        e(f"v_writelane_b32 v{vStamp}, s{sT0+4}, 60")

    def setup_tail(part):
        if part == 1:
            for k in range(1, T):
                e(f"s_add_u32 s{sTmp}, s{sMem}, {k}")
                e(f"s_and_b32 s{sTmp}, s{sTmp}, {T-1}")
                e(f"s_lshl_b32 s{sTmp}, s{sTmp}, 10")
                e(f"s_add_u32 s{sRem+k-1}, s{sTmp}, s{sSlot}")
            e(f"s_lshl_b32 s{sTmp}, s{sMem}, 10")
            e(f"s_add_u32 s{sSlot}, s{sSlot}, s{sTmp}")
            return
        e(f"s_mov_b32 s{sOut}, s16")
        e(f"s_mov_b32 s{sOut+1}, s17")
        e(f"s_mov_b32 s{sOut+2}, {NH*ROWB}")
        e(f"s_mov_b32 s{sOut+3}, 0x00020000")
        e(f"s_mul_i32 s{sHead}, s{sWave}, {NT}")
        e(f"s_add_u32 s{sHead}, s{sHead}, s{sTeam}")
        e(f"s_mul_i32 s{sSlot}, s{sHead}, {T*1024}")
        e(f"s_add_u32 s{sTmp}, s{sMem}, 1")
        e(f"v_add_u32 v{vHdr}, s{sTmp}, v{vLane}")
        e(f"v_and_b32 v{vHdr}, {T-1}, v{vHdr}")
        e(f"v_lshlrev_b32 v{vHdr}, 10, v{vHdr}")
        e(f"v_add_u32 v{vHdr}, s{sSlot}, v{vHdr}")
        e(f"s_lshl_b32 s{sArr}, s{sTeam}, 9")
        e(f"s_add_u32 s{sArr}, s{sArr}, {ARR_OFF}")
        if ph:
            e(f"s_lshl_b32 s{sTmp}, s{sWave}, 7")
            e(f"s_add_u32 s{sArr}, s{sArr}, s{sTmp}")
        e(f"s_mul_i32 s{sLim}, s{sHead}, {ROWB}")
        e(f"v_lshlrev_b32 v{vRec}, 4, v0")
        e(f"v_add_u32 v{vRec}, {LDS_REC}, v{vRec}")
        e(f"s_waitcnt lgkmcnt(0)")
        mk_ws()

    setup_tail(0)
    setup_tail(1)
    for u in range(I0, RU):
        gate()
        if diag and u == I0: stamp(62)
        issue(u, False)

    def qread(r):
        for n in range(3):
            e(f"ds_read_b128 v[{vQ+4*n}:{vQ+4*n+3}], v{vS16} offset:{LDS_Q + r*ROWB + n*128}")
    e(f"s_barrier")
    qread(0)
    e(f"s_waitcnt lgkmcnt(0)")

    def control():
        k = nl[0]; nl[0] += 1
        e(f"s_memrealtime s[{sTm}:{sTm+1}]")
        e(f"ds_read_b96 v[{vLat}:{vLat+2}], v{vZero} offset:{LDS_REF}")
        e(f"s_add_u32 s{sPt}, s{sPt}, {RU}")
        e(f"s_and_b32 s{sTmp}, s{sCnt}, {PU-1}")
        e(f"s_xor_b32 s{sK}, s{sWave}, 1")
        e(f"s_or_b32 s{sTmp}, s{sTmp}, s{sK}")
        e(f"s_waitcnt lgkmcnt(0)")
        e(f"s_cbranch_scc1 L_nopt{k}")
        e(f"s_lshr_b32 s{sTmp}, s{sPt}, {int(math.log2(PU)) - 2}")
        e(f"s_or_b32 s{sK}, s{sTm}, 1")
        e(f"v_mov_b32 v{vT1}, s{sTmp}")
        e(f"v_mov_b32 v{vX}, s{sK}")
        e(f"ds_write_b32 v{vT1}, v{vX} offset:{LDS_OWN-4}")
        e.label(f"L_nopt{k}")
        e(f"v_readfirstlane_b32 s{sK}, v{vLat}")
        e(f"v_readfirstlane_b32 s{sTmp}, v{vLat+1}")
        e(f"v_readfirstlane_b32 s{sTown}, v{vLat+2}")
        e(f"s_cmp_eq_u32 s{sK}, 0")
        e(f"s_cbranch_scc1 L_noctl{k}")
        e(f"s_sub_i32 s{sK}, s{sPt}, s{sK}")
        e(f"s_sub_i32 s{sTmp}, s{sTm}, s{sTmp}")
        e(f"s_mul_i32 s{sTown}, s{sTown}, s{sK}")
        e(f"s_ashr_i32 s{sTown}, s{sTown}, 4")
        e(f"s_sub_i32 s{sTmp}, s{sTmp}, s{sTown}")
        e(f"s_max_i32 s{sTmp}, s{sTmp}, -1000")
        e(f"s_min_i32 s{sTmp}, s{sTmp}, 1000")
        e(f"s_mul_i32 s{sTmp}, s{sTmp}, {int(round(gain * 256 * 256 / 100))}")
        e(f"s_ashr_i32 s{sTmp}, s{sTmp}, 8")
        e(f"s_add_i32 s{sTmp}, s{sTmp}, {WFIX}")
        e(f"s_max_i32 s{sTmp}, s{sTmp}, {int(wmin*256)}")
        e(f"s_min_i32 s{sW}, s{sTmp}, {int(wmax*256)}")
        e.label(f"L_noctl{k}")

    def phase(name, total, unit, handlers, sw):
        e(f"s_mov_b32 s{sCnt}, 0")
        e.nop(3)
        e.raw(".p2align 6")
        e.label(f"L_{name}loop")
        for u in range(RU):
            e(f"s_waitcnt vmcnt({3*(RU-1)})")
            unit(u)
            gate()
            issue(u, sw)
        e(f"v_add_u32 v{vSc}, {RU*256}, v{vSc}")
        e(f"s_add_u32 s{sCnt}, s{sCnt}, {RU}")
        control()
        e(f"s_and_b32 s{sTmp}, s{sCnt}, {SPR-1}")
        e(f"s_cbranch_scc0 L_{name}round")
        if total % SPR:
            e(f"s_cmp_lg_u32 s{sCnt}, {total}")
            e(f"s_cbranch_scc1 L_{name}loop")
            e(f"s_branch L_{name}done")
        else:
            e(f"s_branch L_{name}loop")
        e.label(f"L_{name}round")
        hs = sorted(handlers)
        for bnd in hs[1:]:
            e(f"s_cmp_eq_u32 s{sCnt}, {bnd}")
            e(f"s_cbranch_scc1 L_{name}h{bnd}")
        if total % SPR == 0:
            e(f"s_cmp_eq_u32 s{sCnt}, {total}")
            e(f"s_cbranch_scc1 L_{name}done")
        for bnd in hs:
            e.label(f"L_{name}h{bnd}")
            e.nop(3)
            handlers[bnd]()
            e.nop(2)
            e(f"s_branch L_{name}loop")
        e.label(f"L_{name}done")
        e.nop(3)

    def kunit(u):
        r0 = vRing + 12 * u
        for j in range(4):
            for n in range(3):
                e(f"v_dot2_f32_bf16 v{vS+n}, v{r0+4*n+j}, v{vQ+4*n+j}, {'0' if j == 0 else 'v%d' % (vS+n)}")
        e(f"v_add_f32 v{vS}, v{vS}, v{vS+1}")
        e(f"v_add_f32 v{vS}, v{vS}, v{vS+2}")
        for dp in ("quad_perm:[1,0,3,2]", "quad_perm:[2,3,0,1]", "row_half_mirror"):
            e(f"v_add_f32_dpp v{vS}, v{vS}, v{vS} {dp} row_mask:0xf bank_mask:0xf")
        e(f"ds_write_b32 v{vSc}, v{vS} offset:{u*256}")
        e(f"v_max_f32 v{vM}, v{vM}, v{vS}")

    def kend(r):
        def f():
            stamp(r)
            if r + 1 < NR: qread(r + 1)
            e(f"v_max_f32_dpp v{vM}, v{vM}, v{vM} row_ror:8 row_mask:0xf bank_mask:0xf")
            e(f"v_mov_b32 v{vX}, v{vM}")
            e(f"v_permlane16_swap_b32 v{vM}, v{vX}")
            e(f"v_max_f32 v{vM}, v{vM}, v{vX}")
            e(f"v_mov_b32 v{vX}, v{vM}")
            e(f"v_permlane32_swap_b32 v{vM}, v{vX}")
            e(f"v_max_f32 v{vM}, v{vM}, v{vX}")
            e(f"v_readfirstlane_b32 s{sMx+r}, v{vM}")
            e(f"v_mov_b32 v{vM}, 0x{f2u(-1e30):08x}")
            e(f"s_waitcnt lgkmcnt(0)")
        return f

    phase("k", TOT, kunit, {SPR * (r + 1): kend(r) for r in range(NR - 1)}, True)
    kend(NR - 1)()

    def vunit(u):
        r0 = vRing + 12 * (u % RU)
        e(f"v_sub_f32 v{vPh}, v{vT0}, v{vM}")
        e(f"ds_read_b32 v{vT0}, v{vSc} offset:{(u+1)*256}")
        e(f"v_mul_f32 v{vPh}, s{sC}, v{vPh}")
        e(f"v_exp_f32 v{vPh}, v{vPh}")
        e(f"v_cvt_pk_bf16_f32 v{vPh}, 0, v{vPh}")
        e(f"v_lshrrev_b32 v{vPl}, 16, v{vPh}")
        e(f"v_add_f32 v{vL}, v{vL}, v{vPh}")

    def vdots(u):
        r0 = vRing + 12 * (u % RU)
        for n in range(3):
            for j in range(4):
                e(f"v_dot2c_f32_bf16 v{vAcc+8*n+2*j}, v{r0+4*n+j}, v{vPl}")
                e(f"v_dot2c_f32_bf16 v{vAcc+8*n+2*j+1}, v{r0+4*n+j}, v{vPh}")
        e(f"s_waitcnt lgkmcnt(0)")

    def l_reduce():
        e(f"v_add_f32_dpp v{vL}, v{vL}, v{vL} row_ror:8 row_mask:0xf bank_mask:0xf")
        e(f"v_mov_b32 v{vX}, v{vL}")
        e(f"v_permlane16_swap_b32 v{vL}, v{vX}")
        e(f"v_add_f32 v{vL}, v{vL}, v{vX}")
        e(f"v_mov_b32 v{vX}, v{vL}")
        e(f"v_permlane32_swap_b32 v{vL}, v{vX}")
        e(f"v_add_f32 v{vL}, v{vL}, v{vX}")
        e(f"v_cndmask_b32 v{vO+3}, v{vL}, v{vM}, s[{sPar}:{sPar+1}]")

    def acc_reduce():
        A = lambda n, ee: vAcc + 8 * n + ee
        for n in range(3):
            for ee in range(4):
                e(f"v_permlane32_swap_b32 v{A(n,ee)}, v{A(n,ee+4)}")
        for n in range(3):
            for ee in range(4):
                e(f"v_add_f32 v{A(n,ee)}, v{A(n,ee)}, v{A(n,ee+4)}")
        for n in range(3):
            for ee in range(2):
                e(f"v_permlane16_swap_b32 v{A(n,ee)}, v{A(n,ee+2)}")
        for n in range(3):
            for ee in range(2):
                e(f"v_add_f32 v{A(n,ee)}, v{A(n,ee)}, v{A(n,ee+2)}")
        for n in range(3):
            e(f"v_add_f32_dpp v{vO+n}, v{A(n,0)}, v{A(n,0)} row_ror:8 row_mask:0xf bank_mask:0x3")
        for n in range(3):
            e(f"v_add_f32_dpp v{vO+n}, v{A(n,1)}, v{A(n,1)} row_ror:8 row_mask:0xf bank_mask:0xc")
        e(f"ds_write_b128 v{vRec}, v[{vO}:{vO+3}]")

    def vbegin(r):
        e(f"v_mov_b32 v{vL}, 0")
        for k in range(24):
            e(f"v_mov_b32 v{vAcc+k}, 0")
        e(f"v_mov_b32 v{vM}, s{sMx+r}")

    def vend(r):
        def f():
            stamp(NR + r)
            l_reduce()
            acc_reduce()
            e(f"v_add_u32 v{vRec}, {W*1024}, v{vRec}")
            vbegin(r + 1)
        return f

    e(f"v_mov_b32 v{vSc}, v{vSc0}")
    e(f"ds_read_b32 v{vT0}, v{vSc}")
    vbegin(0)
    e(f"s_waitcnt lgkmcnt(0)")
    phase("v", TOT - RU - (RU if nopen else 0), lambda u: (vunit(u), vdots(u)), {SPR * (r + 1): vend(r) for r in range(NR - 1)}, False)
    if nopen:
        for u in range(RU):
            e(f"s_waitcnt vmcnt({3*(RU-1)})")
            vunit(u); vdots(u)
            if u < RU - nopen: gate()
            issue(u, False)
        e(f"v_add_u32 v{vSc}, {RU*256}, v{vSc}")
    stamp(2 * NR - 1)
    for u in range(RU):
        vunit(u)
        if u == RU - 1:
            l_reduce()
            e(f"s_lshl_b32 s{sTmp}, s{sWave}, 12")
            e(f"s_add_u32 s{sTmp}, s{sTmp}, {LDS_REC}")
            e(f"v_add_u32 v{vT1}, s{sTmp}, v{vLa16}")
            e(f"s_lshl_b32 s{sTmp}, s{sWave}, 10")
            e(f"s_add_u32 s{sTmp}, s{sTmp}, {LDS_TREE}")
            e(f"v_add_u32 v{vSc}, s{sTmp}, v{vLa16}")
        e(f"s_waitcnt vmcnt({3*(RU-1-u)})")
        vdots(u)
    if diag:
        e(f"s_memrealtime s[{sT0+2}:{sT0+3}]")
        e(f"s_waitcnt lgkmcnt(0)")
        for j in range(4):
            e(f"v_mov_b32 v{vRing+j}, s{sT0+j}")
        e(f"s_lshl_b32 s{sTmp}, s2, 9")
        e(f"s_add_u32 s{sTmp}, s{sTmp}, {DIAG_OFF}")
        e(f"s_lshl_b32 s{sCnt}, s{sWave}, 4")
        e(f"s_add_u32 s{sTmp}, s{sTmp}, s{sCnt}")
        e(f"s_mov_b64 exec, 1")
        e(f"buffer_store_dwordx4 v[{vRing}:{vRing+3}], v{vZero}, s[{sWs}:{sWs+3}], s{sTmp} offen")
        e(f"s_mov_b64 exec, -1")
        e(f"s_mul_i32 s{sTmp}, s2, {W*256}")
        e(f"s_add_u32 s{sTmp}, s{sTmp}, {DIAG_OFF+NWG*512}")
        e(f"v_lshlrev_b32 v{vT0}, 2, v0")
        e(f"buffer_store_dword v{vStamp}, v{vT0}, s[{sWs}:{sWs+3}], s{sTmp} offen")
        e.nop(4)
    acc_reduce()
    e(f"s_mov_b32 s{sStep}, 0xfffff800")
    e(f"s_waitcnt lgkmcnt(0)")
    e(f"s_barrier")
    if diag: e(f"s_memrealtime s[{sT0}:{sT0+1}]")

    vMW = vS
    def combine(recs, out):
        n = len(recs)
        F = vAcc
        e(f"v_max_f32 v{vMW}, v{recs[0]+3}, v{recs[1]+3}")
        i = 2
        while i < n:
            if i + 1 < n:
                e(f"v_max3_f32 v{vMW}, v{vMW}, v{recs[i]+3}, v{recs[i+1]+3}"); i += 2
            else:
                e(f"v_max_f32 v{vMW}, v{vMW}, v{recs[i]+3}"); i += 1
        for i in range(n):
            e(f"v_sub_f32 v{F+i}, v{recs[i]+3}, v{vMW}")
        for i in range(n):
            e(f"v_mul_f32 v{F+i}, s{sC}, v{F+i}")
        for i in range(n):
            e(f"v_exp_f32 v{F+i}, v{F+i}")
        for i in range(n):
            e(f"v_mov_b32_dpp v{F+i}, v{F+i} quad_perm:[1,1,3,3] row_mask:0xf bank_mask:0xf")
        for j in range(4):
            e(f"v_mul_f32 v{out+j}, v{F}, v{recs[0]+j}")
        for i in range(1, n):
            for j in range(4):
                e(f"v_fmac_f32 v{out+j}, v{F+i}, v{recs[i]+j}")

    for w in range(W):
        e(f"ds_read_b128 v[{vB+4*w}:{vB+4*w+3}], v{vT1} offset:{w*1024}")
    e(f"ds_read_b128 v[{vB+16}:{vB+19}], v{vSc}")
    e(f"s_waitcnt lgkmcnt(0)")
    combine([vB + 4 * w for w in range(W + 1)], vO)
    e(f"v_cndmask_b32 v{vO+3}, v{vO+3}, v{vMW}, s[{sPar}:{sPar+1}]")
    if pk == 1:
        e(f"v_mul_u32_u24 v{vLa16}, 12, v{vLane}")
        e(f"v_lshlrev_b32 v{vT0}, 2, v{vLane}")
        e(f"buffer_store_dwordx3 v[{vO}:{vO+2}], v{vLa16}, s[{sWs}:{sWs+3}], s{sSlot} offen sc1")
        e(f"s_mov_b64 exec, 3")
        e(f"buffer_store_dword v{vO+3}, v{vT0}, s[{sWs}:{sWs+3}], s{sSlot} offen offset:768 sc1")
        e(f"s_mov_b64 exec, -1")
    elif pk == 2:
        e(f"v_lshrrev_b32 v{vB}, 21, v{vO+2}")
        e(f"v_bfe_u32 v{vB+1}, v{vO+2}, 10, 11")
        e(f"v_lshlrev_b32 v{vLa16}, 3, v{vLane}")
        e(f"v_and_or_b32 v{vB}, v{vO}, s{sStep}, v{vB}")
        e(f"v_and_or_b32 v{vB+1}, v{vO+1}, s{sStep}, v{vB+1}")
        e(f"v_lshlrev_b32 v{vT0}, 2, v{vLane}")
        e(f"buffer_store_dwordx2 v[{vB}:{vB+1}], v{vLa16}, s[{sWs}:{sWs+3}], s{sSlot} offen sc1")
        e(f"s_mov_b64 exec, 3")
        e(f"buffer_store_dword v{vO+3}, v{vT0}, s[{sWs}:{sWs+3}], s{sSlot} offen offset:768 sc1")
        e(f"s_mov_b64 exec, -1")
    else:
        e(f"buffer_store_dwordx4 v[{vO}:{vO+3}], v{vLa16}, s[{sWs}:{sWs+3}], s{sSlot} offen sc1")
    e(f"v_readlane_b32 s{sAcc}, v{vO+3}, 0")
    e(f"v_readlane_b32 s{sK}, v{vO+3}, 1")
    e(f"s_mov_b32 s{sTmp}, 1")
    e(f"v_mov_b32 v{vX}, 1")
    e(f"v_writelane_b32 v{vHm}, s{sK}, 15")
    e(f"v_writelane_b32 v{vHl}, s{sAcc}, 15")
    if ph:
        e(f"s_mov_b64 exec, 1")
        e(f"s_waitcnt vmcnt(0)")
        if diag: e(f"s_memrealtime s[{sT0+2}:{sT0+3}]")
        e(f"buffer_atomic_add v{vX}, v{vZero}, s[{sWs}:{sWs+3}], s{sArr} offen sc0")
        if 'L' in x or 'M' in x:
            e(f"s_mov_b64 exec, -1")
            e(f"buffer_load_dwordx4 v[{vB}:{vB+3}], v{vLa16}, s[{sWs}:{sWs+3}], s{sSlot} offen{' sc1' if 'L' in x else ''}")
            e(f"s_waitcnt vmcnt(1)")
        else:
            e(f"s_waitcnt vmcnt(0)")
        e(f"v_readfirstlane_b32 s{sTmp}, v{vX}")
    else:
        e(f"s_cmp_lg_u32 s{sWave}, 0")
        e(f"s_waitcnt vmcnt(0)")
        e(f"s_barrier")
        if diag: e(f"s_memrealtime s[{sT0+2}:{sT0+3}]")
        e(f"s_cbranch_scc1 L_wait")
        if vat:
            e(f"s_mov_b64 exec, 1")
            e(f"buffer_atomic_add v{vX}, v{vZero}, s[{sWs}:{sWs+3}], s{sArr} offen sc0")
            e(f"s_waitcnt vmcnt(0)")
            e(f"ds_write_b32 v{vZero}, v{vX} offset:{LDS_FLAG}")
            e(f"v_readfirstlane_b32 s{sTmp}, v{vX}")
            e(f"s_mov_b64 exec, -1")
        else:
            e(f"s_atomic_add s{sTmp}, s[20:21], s{sArr} glc")
            e(f"s_waitcnt lgkmcnt(0)")
            e(f"v_mov_b32 v{vX}, s{sTmp}")
            e(f"ds_write_b32 v{vZero}, v{vX} offset:{LDS_FLAG}")
        e(f"s_waitcnt lgkmcnt(0)")
        e(f"s_barrier")
        e(f"s_branch L_got")
        e.label("L_wait")
        e(f"s_barrier")
        e(f"ds_read_b32 v{vX}, v{vZero} offset:{LDS_FLAG}")
        e(f"s_waitcnt lgkmcnt(0)")
        e(f"v_readfirstlane_b32 s{sTmp}, v{vX}")
    e.label("L_got")
    if diag:
        e(f"s_memrealtime s[92:93]")
        e(f"s_mov_b64 s[94:95], 0")
        e(f"s_mov_b64 s[96:97], 0")
    e(f"s_cmp_lg_u32 s{sTmp}, {T-1}")
    e(f"s_cbranch_scc1 L_fin")
    e(f"s_mov_b64 exec, 0x7fff")
    e(f"buffer_load_dword v{vHm}, v{vHdr}, s[{sWs}:{sWs+3}], 0 offen offset:{772 if pk else 28} sc1")
    e(f"buffer_load_dword v{vHl}, v{vHdr}, s[{sWs}:{sWs+3}], 0 offen offset:{768 if pk else 12} sc1")
    e(f"s_mov_b64 exec, -1")
    for m in range(T - 1):
        if pk == 2: e(f"buffer_load_dwordx2 v[{vR+4*m}:{vR+4*m+1}], v{vLa16}, s[{sWs}:{sWs+3}], s{sRem+m} offen sc1")
        elif 'f' in x: e(f"buffer_load_dwordx4 v[{vR+4*m}:{vR+4*m+3}], v{vLa16}, s[{sWs}:{sWs+3}], s{sRem+m} offen sc1")
        else: e(f"buffer_load_dwordx3 v[{vR+4*m}:{vR+4*m+2}], v{vLa16}, s[{sWs}:{sWs+3}], s{sRem+m} offen sc1")
    if diag and 'i' in x: e(f"s_memrealtime s[94:95]")
    e(f"s_waitcnt vmcnt({T})")
    if diag and 'h' in x: e(f"s_memrealtime s[94:95]")
    e(f"v_max_f32_dpp v{vMW}, v{vHm}, v{vHm} row_ror:8 row_mask:0xf bank_mask:0xf")
    for rr in (4, 2, 1):
        e(f"v_max_f32_dpp v{vMW}, v{vMW}, v{vMW} row_ror:{rr} row_mask:0xf bank_mask:0xf")
    e(f"v_sub_f32 v{vHm}, v{vHm}, v{vMW}")
    e(f"v_mul_f32 v{vHm}, s{sC}, v{vHm}")
    e(f"v_exp_f32 v{vHm}, v{vHm}")
    e(f"s_waitcnt vmcnt({T-1})")
    e(f"v_mul_f32 v{vHl}, v{vHl}, v{vHm}")
    rs = [8, 4, 2, 1]
    for m in range(T):
        e(f"v_readlane_b32 s{sRem+m}, v{vHm}, {m}")
        if m % 3 == 1 and rs:
            e(f"v_add_f32_dpp v{vHl}, v{vHl}, v{vHl} row_ror:{rs.pop(0)} row_mask:0xf bank_mask:0xf")
    e(f"v_rcp_f32 v{vHl}, v{vHl}")
    for j in range(3):
        e(f"v_mul_f32 v{vO+j}, s{sRem+15}, v{vO+j}")
    e(f"v_readfirstlane_b32 s{sTmp}, v{vHl}")
    if diag and 'r' in x: e(f"s_memrealtime s[94:95]")
    for m in range(T - 1):
        if m % 3 == 0:
            e(f"s_waitcnt vmcnt({max(0, T - 1 - (m + 3))})")
            if diag and m == 12 and not set('ihr') & set(x): e(f"s_memrealtime s[94:95]")
        if pk == 2:
            e(f"v_lshlrev_b32 v{vR+4*m+2}, 21, v{vR+4*m+1}")
            e(f"v_fmac_f32 v{vO}, s{sRem+m}, v{vR+4*m}")
            e(f"v_alignbit_b32 v{vR+4*m+2}, v{vR+4*m}, v{vR+4*m+2}, 11")
            e(f"v_fmac_f32 v{vO+1}, s{sRem+m}, v{vR+4*m+1}")
            e(f"v_fmac_f32 v{vO+2}, s{sRem+m}, v{vR+4*m+2}")
            continue
        for j in range(3):
            e(f"v_fmac_f32 v{vO+j}, s{sRem+m}, v{vR+4*m+j}")
    for j in range(3):
        e(f"v_mul_f32 v{vO+j}, s{sTmp}, v{vO+j}")
    for j in range(3):
        e(f"v_cvt_pk_bf16_f32 v{vO+j}, v{vO+j}, v{vO+j}")
    for j in range(3):
        e(f"buffer_store_short v{vO+j}, v{vOutOff}, s[{sOut}:{sOut+3}], s{sLim} offen offset:{j*128}{opol}")
    if diag: e(f"s_memrealtime s[96:97]")
    e.label("L_fin")
    if diag:
        e(f"s_cmp_lg_u32 s{sWave}, 1")
        e(f"s_cbranch_scc1 L_end")
        e(f"s_waitcnt vmcnt(0)")
        e(f"s_memrealtime s[{sT0+4}:{sT0+5}]")
        e(f"s_getreg_b32 s{sT0+6}, hwreg(HW_REG_XCC_ID)")
        e(f"s_getreg_b32 s{sT0+7}, hwreg(HW_REG_HW_ID)")
        e(f"s_waitcnt lgkmcnt(0)")
        for j in range(8):
            e(f"v_mov_b32 v{vR+j}, s{sT0+j}")
        e(f"s_lshl_b32 s{sTmp}, s2, 9")
        e(f"s_add_u32 s{sTmp}, s{sTmp}, {DIAG_OFF+256}")
        e(f"s_mov_b64 exec, 1")
        e(f"buffer_store_dwordx4 v[{vR}:{vR+3}], v{vZero}, s[{sWs}:{sWs+3}], s{sTmp} offen")
        e(f"buffer_store_dwordx4 v[{vR+4}:{vR+7}], v{vZero}, s[{sWs}:{sWs+3}], s{sTmp} offen offset:16")
        for j in range(3):
            e(f"v_mov_b32 v{vR+8+j}, s{92+2*j}")
        e(f"buffer_store_dwordx4 v[{vR+8}:{vR+11}], v{vZero}, s[{sWs}:{sWs+3}], s{sTmp} offen offset:32")
    e("s_endpgm")

    e.label("L_helper")
    e.nop(3)
    hb = vAcc
    e(f"s_mul_i32 s{sTmp}, s{sTeam}, {ROWB}")
    e(f"v_add_u32 v{vT1}, s{sTmp}, v{vLa16}")
    e(f"s_mov_b64 exec, 0xffffff")
    for r in range(NR):
        if r: e(f"v_add_u32 v{vT1}, {NT*ROWB}, v{vT1}")
        e(f"global_load_dwordx4 v[{hb+4*r}:{hb+4*r+3}], v{vT1}, s[4:5]")
    e(f"s_mov_b64 exec, -1")
    e(f"s_load_dwordx2 s[20:21], s[0:1], 64")
    e(f"s_memrealtime s[{sStart}:{sStart+1}]")
    e(f"v_lshlrev_b32 v{vT0}, 2, v{vLane}")
    e(f"ds_write_b32 v{vT0}, v{vZero}")
    e(f"s_mov_b32 s{sPar}, 0xaaaaaaaa")
    e(f"s_mov_b32 s{sPar+1}, 0xaaaaaaaa")
    e(f"s_mov_b64 exec, 0xffffff")
    e(f"s_waitcnt vmcnt(0)")
    for r in range(NR):
        e(f"ds_write_b128 v{vLa16}, v[{hb+4*r}:{hb+4*r+3}] offset:{LDS_Q + r*ROWB}")
    e(f"s_mov_b64 exec, -1")
    e(f"s_waitcnt lgkmcnt(0)")
    e(f"s_barrier")
    mk_ws()
    e(f"v_mov_b32 v{vO}, 0")
    e(f"v_mov_b32 v{vO+1}, 0")
    e(f"v_mov_b32 v{vO+2}, 0")
    e(f"v_mov_b32 v{vM}, 0x{f2u(-1e30):08x}")
    e(f"v_cndmask_b32 v{vO+3}, v{vO}, v{vM}, s[{sPar}:{sPar+1}]")
    e(f"v_add_u32 v{vRec}, {LDS_TREE}, v{vLa16}")
    e(f"s_cmp_eq_u32 s{sMem}, 0")
    e(f"s_cbranch_scc1 L_tree")
    for r in range(NR):
        e(f"ds_write_b128 v{vRec}, v[{vO}:{vO+3}] offset:{r*1024}")
    e(f"s_branch L_treedone")
    e.label("L_tree")
    e(f"s_lshl_b32 s{sArr}, s{sTeam}, 9")
    e(f"s_add_u32 s{sArr}, s{sArr}, {ARR_OFF}")
    e(f"v_lshlrev_b32 v{vT0}, 7, v{vLane}")
    e(f"v_mov_b32 v{vPh}, 0")
    e(f"s_mov_b64 exec, 15")
    e(f"buffer_atomic_swap v{vPh}, v{vT0}, s[{sWs}:{sWs+3}], s{sArr} offen sc0")
    e(f"s_mov_b64 exec, -1")
    e(f"s_mul_i32 s{sTmp}, s{sTeam}, {ROWB}")
    e(f"v_add_u32 v{vT1}, s{sTmp}, v{vOutOff}")
    e(f"v_add_u32 v{vAl}, s{sTmp}, v{vS16}")
    hb = 56
    vEnd = max(vEnd, hb + 16 * NR + 12)
    hq = hb + 16 * NR
    for r in range(NR):
        b = hb + 16 * r
        e(f"v_add_u32 v{vT0}, {r*NT*ROWB}, v{vAl}")
        for n in range(3):
            e(f"global_load_dwordx4 v[{b+4*n}:{b+4*n+3}], v{vT0}, s[10:11] offset:{n*128}")
        e(f"v_add_u32 v{vT0}, {r*NT*ROWB}, v{vT1}")
        for n in range(3):
            e(f"global_load_ushort v{b+12+n}, v{vT0}, s[12:13] offset:{n*128}")
        e(f"s_add_u32 s{sTmp}, s{sTeam}, {r*NT}")
        e(f"s_lshr_b32 s{sTmp}, s{sTmp}, 5")
        e(f"s_lshl_b32 s{sTmp}, s{sTmp}, 1")
        e(f"v_mov_b32 v{vT0}, s{sTmp}")
        e(f"global_load_ushort v{b+15}, v{vT0}, s[14:15]")
    e(f"v_mov_b32 v{vX}, 0x{f2u(MASKRAW):08x}")
    e(f"s_lshl_b32 s{sArr}, s{sTeam}, 4")
    e(f"v_mov_b32 v{vT0}, s{sArr}")
    e(f"v_mov_b32 v{vPl}, 1")
    e(f"s_waitcnt vmcnt(0)")
    e(f"s_mov_b64 exec, 1")
    e(f"global_atomic_add v{vT0}, v{vPl}, s[18:19]")
    e(f"s_mov_b64 exec, -1")
    for r in range(NR):
        b = hb + 16 * r
        for n in range(3):
            e(f"ds_read_b128 v[{hq+4*n}:{hq+4*n+3}], v{vS16} offset:{LDS_Q + r*ROWB + n*128}")
        e(f"s_waitcnt lgkmcnt(0)")
        for j in range(4):
            for n in range(3):
                e(f"v_dot2_f32_bf16 v{vS+n}, v{b+4*n+j}, v{hq+4*n+j}, {'0' if j == 0 else 'v%d' % (vS+n)}")
        for n in range(4):
            e(f"v_lshlrev_b32 v{b+12+n}, 16, v{b+12+n}")
        e(f"v_add_f32 v{vS}, v{vS}, v{vS+1}")
        e(f"v_add_f32 v{vS}, v{vS}, v{vS+2}")
        for dp in ("quad_perm:[1,0,3,2]", "quad_perm:[2,3,0,1]", "row_half_mirror"):
            e(f"v_add_f32_dpp v{vS}, v{vS}, v{vS} {dp} row_mask:0xf bank_mask:0xf")
        e(f"v_sub_f32 v{b+15}, 1.0, v{b+15}")
        e(f"v_fma_f32 v{vS}, v{b+15}, v{vX}, v{vS}")
        e(f"v_cndmask_b32 v{b+15}, 1.0, v{vS}, s[{sPar}:{sPar+1}]")
        e(f"ds_write_b128 v{vRec}, v[{b+12}:{b+15}] offset:{r*1024}")
    e.label("L_treedone")
    LASTP = (2 * TOT - RU) // PU - 1
    sPub, sLead, sRefl, sTry, sR1, sR2 = sCnt, sIss, sStep, sJump, sBase, sPos
    e(f"s_mov_b32 s{sPt}, 0")
    e(f"s_getreg_b32 s{sRefl}, hwreg(HW_REG_XCC_ID)")
    e(f"s_and_b32 s{sRefl}, s{sRefl}, 15")
    e(f"s_lshl_b32 s{sRefl}, s{sRefl}, 7")
    e(f"s_add_u32 s{sRefl}, s{sRefl}, {REFL}")
    e(f"v_lshlrev_b32 v{vHdr}, 7, v{vLane}")
    e(f"s_lshr_b32 s{sK}, s2, 4")
    e(f"s_and_b32 s{sTmp}, s2, 15")
    e(f"s_cmp_eq_u32 s{sK}, s{sTmp}")
    e(f"s_cselect_b32 s{sPub}, 1, 0")
    e(f"s_cmp_lt_u32 s{sK}, {nlead}")
    e(f"s_cselect_b32 s{sLead}, s{sPub}, 0")
    e(f"s_lshl_b32 s{sTmp}, s{sK}, 7")
    e(f"v_mov_b32 v{vHl}, s{sTmp}")
    e(f"s_mov_b32 s{sOff}, {HINT_OFF}")
    e(f"s_mov_b32 s{sSlot}, 100000")
    e(f"s_mov_b64 exec, 1")
    e(f"s_waitcnt lgkmcnt(0)")
    e.label("L_hp")
    e(f"s_lshl_b32 s{sTmp}, s{sPt}, 2")
    e(f"v_mov_b32 v{vT1}, s{sTmp}")
    e.label("L_hwait")
    e(f"s_sleep {poll}")
    e(f"s_cmp_lg_u32 s{sLead}, 0")
    e(f"s_cbranch_scc1 L_hnoref")
    e(f"s_cmp_lt_u32 s{sPt}, 2")
    e(f"s_cbranch_scc1 L_hnoref")
    e(f"buffer_load_dwordx3 v[{vLat}:{vLat+2}], v{vZero}, s[{sWs}:{sWs+3}], s{sRefl} offen sc1")
    e(f"s_waitcnt vmcnt(0)")
    e(f"v_readfirstlane_b32 s{sTmp}, v{vLat+1}")
    e(f"s_sub_u32 s{sTmp}, s{sTmp}, s{sStart}")
    e(f"s_cmp_lt_u32 s{sTmp}, s{sSlot}")
    e(f"s_cbranch_scc0 L_hnoref")
    e(f"ds_write_b96 v{vZero}, v[{vLat}:{vLat+2}] offset:{LDS_REF}")
    e.label("L_hnoref")
    e(f"ds_read_b32 v{vX}, v{vT1} offset:{LDS_OWN}")
    e(f"s_waitcnt lgkmcnt(0)")
    e(f"v_readfirstlane_b32 s{sTown}, v{vX}")
    e(f"s_cmp_eq_u32 s{sTown}, 0")
    e(f"s_cbranch_scc1 L_hwait")
    e(f"s_cmp_eq_u32 s{sPub}, 0")
    e(f"s_cbranch_scc1 L_hnext")
    e(f"buffer_store_dword v{vX}, v{vHl}, s[{sWs}:{sWs+3}], s{sOff} offen sc1")
    e(f"s_cmp_eq_u32 s{sLead}, 0")
    e(f"s_cbranch_scc1 L_hnext")
    e(f"s_mov_b64 exec, 0xffff")
    e(f"s_mov_b32 s{sTry}, {tries}")
    e.label("L_hgather")
    e(f"s_sleep {dly}")
    e(f"buffer_load_dword v{vHm}, v{vHdr}, s[{sWs}:{sWs+3}], s{sOff} offen sc1")
    e(f"s_sub_u32 s{sTry}, s{sTry}, 1")
    e(f"s_waitcnt vmcnt(0)")
    e(f"v_subrev_u32 v{vHm}, s{sStart}, v{vHm}")
    e(f"v_cmp_le_u32 vcc, s{sSlot}, v{vHm}")
    e(f"s_cbranch_vccz L_hall")
    e(f"s_cmp_lg_u32 s{sTry}, 0")
    e(f"s_cbranch_scc1 L_hgather")
    e(f"s_sub_u32 s{sK}, s{sTown}, s{sStart}")
    e(f"s_add_u32 s{sK}, s{sK}, 250")
    e(f"v_mov_b32 v{vT0}, s{sK}")
    e(f"v_cndmask_b32 v{vHm}, v{vHm}, v{vT0}, vcc")
    e.label("L_hall")
    e.nop(2)
    for dp in ("quad_perm:[1,0,3,2]", "quad_perm:[2,3,0,1]", "row_half_mirror", "row_mirror"):
        e(f"v_add_u32_dpp v{vHm}, v{vHm}, v{vHm} {dp} row_mask:0xf bank_mask:0xf")
    e(f"v_lshrrev_b32 v{vHm}, 4, v{vHm}")
    e(f"v_add_u32 v{vLat+1}, s{sStart}, v{vHm}")
    e(f"s_mov_b64 exec, 1")
    e(f"v_readfirstlane_b32 s{sTown}, v{vLat+1}")
    e(f"s_add_u32 s{sTmp}, s{sPt}, 1")
    e(f"s_mul_i32 s{sTmp}, s{sTmp}, {PU}")
    e(f"v_mov_b32 v{vLat}, s{sTmp}")
    e(f"s_sub_u32 s{sK}, s{sTown}, s{sR1}")
    e(f"s_lshl_b32 s{sK}, s{sK}, 1")
    e(f"s_sub_u32 s{sTmp}, s{sTown}, s{sR2}")
    e(f"s_cmp_eq_u32 s{sPt}, 1")
    e(f"s_cselect_b32 s{sTmp}, s{sK}, s{sTmp}")
    if 2 * PU > 16: e(f"s_lshr_b32 s{sTmp}, s{sTmp}, {int(math.log2(2 * PU)) - 4}")
    if 2 * PU < 16: e(f"s_lshl_b32 s{sTmp}, s{sTmp}, {4 - int(math.log2(2 * PU))}")
    e(f"v_mov_b32 v{vLat+2}, s{sTmp}")
    e(f"s_mov_b32 s{sR2}, s{sR1}")
    e(f"s_mov_b32 s{sR1}, s{sTown}")
    e(f"s_cmp_eq_u32 s{sPt}, 0")
    e(f"s_cbranch_scc1 L_hnext")
    e(f"buffer_store_dwordx3 v[{vLat}:{vLat+2}], v{vZero}, s[{sWs}:{sWs+3}], s{sRefl} offen")
    e(f"ds_write_b96 v{vZero}, v[{vLat}:{vLat+2}] offset:{LDS_REF}")
    e.label("L_hnext")
    e(f"s_add_u32 s{sOff}, s{sOff}, {16*128}")
    e(f"s_add_u32 s{sPt}, s{sPt}, 1")
    e(f"s_cmp_lt_u32 s{sPt}, {LASTP}")
    e(f"s_cbranch_scc1 L_hp")
    if touch:
        e(f"global_load_dword v{vAl}, v{vZero}, s[16:17]")
    e(f"s_lshl_b32 s{sArr}, s{sTeam}, 4")
    e(f"s_load_dword s{sLim}, s[18:19], s{sArr}")
    e.label("L_rdy")
    e(f"s_waitcnt lgkmcnt(0)")
    e(f"s_cmp_lg_u32 s{sLim}, 0")
    e(f"s_cbranch_scc1 L_rdyok")
    e(f"s_sleep 16")
    e(f"s_atomic_add s{sLim}, s[18:19], s{sArr} glc")
    e(f"s_branch L_rdy")
    e.label("L_rdyok")
    if 'S' in x:
        e.label("L_hold")
        e(f"s_memrealtime s[{sTm}:{sTm+1}]")
        e(f"s_waitcnt lgkmcnt(0)")
        e(f"s_sub_u32 s{sTmp}, s{sTm}, s{sStart}")
        e(f"s_cmp_lt_u32 s{sTmp}, 7500")
        e(f"s_cbranch_scc1 L_hold")
    e(f"s_barrier")
    e.label("L_end")
    e("s_endpgm")

    acc_off = (vEnd + 3) // 4 * 4
    assert vEnd <= 256 and sEnd <= 92
    out = HEADER
    out += f"; params: v10 v4 HW=1 RU={RU} W0={W0} I0={I0} rotm={rotm} gain={gain} PU={PU} dly={dly} wmin={wmin} wmax={wmax} nlead={nlead} {'diag' if diag else ''} off={DIAG_OFF}\n"
    out += f"; @launch grid=({NWG},1,1) block=({(W+1)*64},1,1) lds={LDS_BYTES}\n"
    out += f""".amdgcn_target "amdgcn-amd-amdhsa--gfx950"
.text
.globl {NAME}_kernel
.p2align 8
.type {NAME}_kernel,@function
{NAME}_kernel:
"""
    out += "\n".join(e.lines) + "\n"
    out += f""".section .rodata,"a"
.p2align 6
.amdhsa_kernel {NAME}_kernel
  .amdhsa_next_free_vgpr {vEnd}
  .amdhsa_next_free_sgpr {100 if diag else sEnd}
  .amdhsa_accum_offset {acc_off}
  .amdhsa_group_segment_fixed_size 0
  .amdhsa_kernarg_size 72
  .amdhsa_user_sgpr_count 2
  .amdhsa_user_sgpr_kernarg_segment_ptr 1
  .amdhsa_system_sgpr_workgroup_id_x 1
.end_amdhsa_kernel
"""
    return out


if __name__ == "__main__":
    ap = argparse.ArgumentParser()
    ap.add_argument("-o", default="cdna_kernels/" + NAME + ".s")
    for k, t, d in (("ru", int, 4), ("w0", float, 2.0), ("i0", int, 2), ("rotm", int, 4), ("gain", float, 0.8), ("pu", int, 8),
                    ("dly", int, 20), ("wmin", float, 1.0), ("wmax", float, 3.0), ("tries", int, 3), ("nlead", int, 16),
                    ("touch", int, 1), ("poll", int, 6), ("vat", int, 0), ("x", str, ""), ("opol", str, "sc1"), ("nopen", int, 0), ("pk", int, 0), ("ph", int, 0), ("pm", int, 0), ("pair", int, 0), ("tm", int, 0)):
        ap.add_argument("--" + k, type=t, default=d)
    ap.add_argument("--diag", action="store_true")
    a = ap.parse_args()
    open(a.o, "w").write(gen(a.ru, a.w0, a.i0, "nt", a.diag, a.rotm, (" " + a.opol) if a.opol else "", a.gain, a.pu, a.dly, a.wmin, a.wmax,
                             a.tries, a.nlead, a.touch, a.poll, a.vat, a.x, a.nopen, a.pk, a.ph, a.pm, a.pair, a.tm))
```

```python
import math, argparse
from gen import Em, f2u, NAME, HEADER, NH, C, DH, ROWB, HEADB, KVB, SCALE_LOG2E, MASKRAW


def gen(RU=4, W0=2.0, I0=2, pol="nt", diag=False, rotm=4, opol=" sc1", gain=0.8, PU=8, dly=20, wmin=1.0, wmax=3.0,
        tries=3, nlead=16, touch=1, poll=6, vat=0, x="", nopen=0, pk=0, ph=0, pm=0, pair=0, tm=0):
    T, W, NWG = 16, 4, 256
    NT = NWG // T
    NR = T // 4
    NWV = T * W
    SPR = 1024 // NWV
    TOT = NR * SPR
    STEP = NWV * 3072 * (2 if pair else 1)
    JUMP = STEP + (NT - 1) * HEADB
    assert SPR % RU == 0 and PU % RU == 0
    pol = (" " + pol) if pol else ""
    NP = 2 * TOT // PU
    HINT_OFF = NH * T * 1024
    REFL = HINT_OFF + NP * 16 * 128
    ARR_OFF = REFL + 16 * 128
    DIAG_OFF = ARR_OFF + NT * 512
    WS_BYTES = DIAG_OFF + (NWG * 512 + NWG * W * 256 if diag else 0)
    LDS_FLAG = 0
    LDS_REF = 16
    LDS_OWN = 64
    LDS_Q = 512
    LDS_SC = 2048
    assert LDS_OWN + 4 * NP <= 256 and LDS_Q + NR * ROWB <= LDS_SC
    LDS_REC = LDS_SC + W * TOT * 256
    LDS_TREE = LDS_REC + NR * W * 1024
    LDS_BYTES = LDS_TREE + NR * 1024
    assert LDS_BYTES > 81920
    e = Em()
    c = lambda t: e.raw("    ; " + t)
    vOff, vT0, vT1, vM, vL, vSc, vAl, vLane, vStamp, vPh, vPl = 1, 2, 3, 4, 5, 6, 7, 8, 9, 10, 11
    vS = 12
    vX = 15
    vSc0, vLa16, vOutOff, vRec = 16, 17, 18, 19
    vS16, vHdr, vHm, vHl = 20, 21, 22, 23
    vO = 24
    vAcc = 28
    vLat, vZero = 52, 55
    vQ = 56
    vRing = 68
    vR = 56
    vB = vR + 64
    vEnd = max(vRing + 12 * RU, vB + 20)
    sKV = 24
    sAcc, sK, sPt, sTown = 28, 29, 30, 31
    sTm = 32
    sStart = 34
    sTeam, sMem, sWave, sOff, sIss, sCnt, sC, sTmp = 36, 37, 38, 39, 40, 41, 42, 43
    sPar = 44
    sPos, sBase = 46, 47
    sWs, sOut = 48, 52
    sT0 = 56
    sHead, sSlot, sLim, sArr, sStep, sJump, sOff0, sW = 64, 65, 66, 67, 68, 69, 70, 71
    sMx = 72
    sRem = 76
    sEnd = sRem + 20
    WFIX = int(round(W0 * 256))
    nl = [0]

    def advance(sw, odd_next=False):
        if pair and odd_next:
            e(f"s_add_u32 s{sIss}, s{sIss}, 1")
            e(f"s_add_u32 s{sOff}, s{sOff}, 3072")
            return
        e(f"s_add_u32 s{sIss}, s{sIss}, 1")
        e(f"s_and_b32 s{sTmp}, s{sIss}, {SPR-1}")
        e(f"s_cselect_b32 s{sTmp}, s{sStep}, s{sJump}")
        e(f"s_add_u32 s{sBase}, s{sBase}, s{sTmp}")
        if sw:
            e(f"s_cmp_eq_u32 s{sIss}, {TOT}")
            e(f"s_cselect_b32 s{sKV}, s8, s{sKV}")
            e(f"s_cselect_b32 s{sKV+1}, s9, s{sKV+1}")
            e(f"s_cselect_b32 s{sBase}, s{sOff0}, s{sBase}")
        if rotm:
            assert (TOT // (2 if pair else 1) * rotm) % NWV == 0
            e(f"s_add_u32 s{sPos}, s{sPos}, {rotm}")
            e(f"s_and_b32 s{sPos}, s{sPos}, {NWV-1}")
        e(f"s_mul_i32 s{sTmp}, s{sPos}, {6144 if pair else 3072}")
        e(f"s_add_u32 s{sOff}, s{sBase}, s{sTmp}")

    def issue(ru, sw):
        for n in range(3):
            r = vRing + 12 * ru + 4 * n
            e(f"buffer_load_dwordx4 v[{r}:{r+3}], v{vOff}, s[{sKV}:{sKV+3}], s{sOff} offen offset:{n*128}{pol}")
        advance(sw, ru % 2 == 0)

    KMAX = min(RU - 1, int(math.ceil(wmax)))
    def gate():
        k = nl[0]; nl[0] += 1
        e(f"s_add_u32 s{sAcc}, s{sAcc}, s{sW}")
        e(f"s_lshr_b32 s{sK}, s{sAcc}, 8")
        e(f"s_and_b32 s{sAcc}, s{sAcc}, 255")
        for lv in range(KMAX, 0, -1):
            if lv < wmax:
                e(f"s_cmp_gt_u32 s{sK}, {lv}")
                e(f"s_cbranch_scc1 L_go{k}")
            e(f"s_waitcnt vmcnt({3*(lv-1) if lv > 1 else 2})")
        e.label(f"L_go{k}")

    def stamp(k):
        if diag:
            e(f"s_memrealtime s[{sT0+4}:{sT0+5}]")
            e(f"s_waitcnt lgkmcnt(0)")
            e(f"v_writelane_b32 v{vStamp}, s{sT0+4}, {k}")

    def mk_ws():
        e(f"s_mov_b32 s{sWs}, s20")
        e(f"s_mov_b32 s{sWs+1}, s21")
        e(f"s_mov_b32 s{sWs+2}, {WS_BYTES}")
        e(f"s_mov_b32 s{sWs+3}, 0x00020000")

    FP = 'P' in x
    if FP: e(f"s_load_dwordx2 s[{sKV}:{sKV+1}], s[0:1], 8")
    NEAR = 'N' in x
    if NEAR: e(f"s_load_dwordx2 s[22:23], s[0:1], 0")
    e(f"s_cmp_ge_u32 s2, {NWG}")
    e(f"s_cbranch_scc1 L_end")
    if not FP: e(f"s_load_dwordx16 s[4:19], s[0:1], 0")
    if diag: e(f"s_memrealtime s[{sT0}:{sT0+1}]")
    e(f"v_lshrrev_b32 v{vT0}, 6, v0")
    e(f"v_and_b32 v{vLane}, 63, v0")
    e(f"v_readfirstlane_b32 s{sWave}, v{vT0}")
    e(f"v_lshrrev_b32 v{vT0}, 3, v{vLane}")
    e(f"v_and_b32 v{vS16}, 7, v{vLane}")
    e(f"v_mul_u32_u24 v{vOff}, {ROWB}, v{vT0}")
    e(f"v_lshlrev_b32 v{vS16}, 4, v{vS16}")
    e(f"v_add_u32 v{vOff}, v{vOff}, v{vS16}")
    if tm == 1:
        e(f"s_and_b32 s{sTeam}, s2, 7")
        e(f"s_lshr_b32 s{sTmp}, s2, 7")
        e(f"s_lshl_b32 s{sTeam}, s{sTeam}, 1")
        e(f"s_add_u32 s{sTeam}, s{sTeam}, s{sTmp}")
        e(f"s_bfe_u32 s{sMem}, s2, {(4 << 16) | 3}")
    elif tm == 2:
        e(f"s_bfe_u32 s{sTeam}, s2, {(2 << 16) | 1}")
        e(f"s_lshr_b32 s{sTmp}, s2, 6")
        e(f"s_lshl_b32 s{sTeam}, s{sTeam}, 2")
        e(f"s_add_u32 s{sTeam}, s{sTeam}, s{sTmp}")
        e(f"s_bfe_u32 s{sMem}, s2, {(3 << 16) | 3}")
        e(f"s_and_b32 s{sTmp}, s2, 1")
        e(f"s_lshl_b32 s{sTmp}, s{sTmp}, 3")
        e(f"s_add_u32 s{sMem}, s{sMem}, s{sTmp}")
    elif tm == 4:
        e(f"s_bfe_u32 s{sTeam}, s2, {(1 << 16) | 2}")
        e(f"s_lshr_b32 s{sTmp}, s2, 5")
        e(f"s_lshl_b32 s{sTeam}, s{sTeam}, 3")
        e(f"s_add_u32 s{sTeam}, s{sTeam}, s{sTmp}")
        e(f"s_bfe_u32 s{sMem}, s2, {(2 << 16) | 3}")
        e(f"s_and_b32 s{sTmp}, s2, 3")
        e(f"s_lshl_b32 s{sTmp}, s{sTmp}, 2")
        e(f"s_add_u32 s{sMem}, s{sMem}, s{sTmp}")
    else:
        e(f"s_lshr_b32 s{sTeam}, s2, 4")
        e(f"s_and_b32 s{sMem}, s2, {T-1}")
    e(f"s_mul_i32 s{sBase}, s{sTeam}, {HEADB}")
    if pm == 2:
        e(f"s_and_b32 s{sPos}, s{sMem}, 7")
        e(f"s_lshl_b32 s{sPos}, s{sPos}, 1")
        e(f"s_lshr_b32 s{sTmp}, s{sMem}, 3")
        e(f"s_add_u32 s{sPos}, s{sPos}, s{sTmp}")
        e(f"s_lshl_b32 s{sPos}, s{sPos}, 2")
        e(f"s_add_u32 s{sPos}, s{sPos}, s{sWave}")
    elif pm:
        e(f"s_lshl_b32 s{sPos}, s{sWave}, 4")
        e(f"s_add_u32 s{sPos}, s{sPos}, s{sMem}")
    else:
        e(f"s_lshl_b32 s{sPos}, s{sMem}, 2")
        e(f"s_add_u32 s{sPos}, s{sPos}, s{sWave}")
    e(f"s_mul_i32 s{sTmp}, s{sPos}, {6144 if pair else 3072}")
    e(f"s_add_u32 s{sOff}, s{sBase}, s{sTmp}")
    e(f"s_mov_b32 s{sOff0}, s{sBase}")
    e(f"s_mov_b32 s{sKV+2}, {KVB}")
    e(f"s_mov_b32 s{sKV+3}, 0x00020000")
    if FP:
        assert I0 == 2 and not pair
        e(f"s_cmp_eq_u32 s{sWave}, {W}")
        e(f"s_cbranch_scc1 L_helper")
        e(f"s_add_u32 s{sPos}, s{sPos}, {rotm}")
        e(f"s_and_b32 s{sPos}, s{sPos}, {NWV-1}")
        e(f"s_mul_i32 s{sTmp}, s{sPos}, 3072")
        e(f"s_add_u32 s{sBase}, s{sBase}, {STEP}")
        e(f"s_add_u32 s{sK}, s{sBase}, s{sTmp}")
        e(f"s_waitcnt lgkmcnt(0)")
        if diag: e(f"s_memrealtime s[{sT0+2}:{sT0+3}]")
        for u, so in ((0, sOff), (1, sK)):
            for n in range(3):
                r = vRing + 12 * u + 4 * n
                e(f"buffer_load_dwordx4 v[{r}:{r+3}], v{vOff}, s[{sKV}:{sKV+3}], s{so} offen offset:{n*128}{pol}")
        e(f"s_load_dwordx16 s[4:19], s[0:1], 0")
        e(f"s_mov_b32 s{sStep}, {STEP}")
        e(f"s_mov_b32 s{sJump}, {JUMP}")
        e(f"s_mov_b32 s{sIss}, 1")
        e(f"v_mov_b32 v{vZero}, 0")
        advance(False)
    else:
        e(f"s_mov_b32 s{sStep}, {STEP}")
        e(f"s_mov_b32 s{sJump}, {JUMP}")
        e(f"s_mov_b32 s{sIss}, 0")
        e(f"v_lshlrev_b32 v{vLa16}, 4, v{vLane}")
        e(f"v_mov_b32 v{vZero}, 0")
        e(f"s_cmp_eq_u32 s{sWave}, {W}")
        e(f"s_waitcnt lgkmcnt(0)")
        e(f"s_cbranch_scc1 L_helper")
        if diag: e(f"s_memrealtime s[{sT0+2}:{sT0+3}]")
        e(f"s_mov_b32 s{sKV}, s6")
        e(f"s_mov_b32 s{sKV+1}, s7")
        for u in range(I0):
            issue(u, False)
    e(f"s_load_dwordx2 s[20:21], s[0:1], 64")
    e(f"s_mov_b32 s{sW}, {WFIX}")
    e(f"s_lshl_b32 s{sAcc}, s{sWave}, 6")
    e(f"s_mov_b32 s{sPt}, 0")
    e(f"s_mul_i32 s{sTmp}, s{sWave}, {TOT*256}")
    e(f"s_add_u32 s{sTmp}, s{sTmp}, {LDS_SC}")
    e(f"v_lshlrev_b32 v{vSc}, 2, v{vLane}")
    e(f"v_add_u32 v{vSc}, s{sTmp}, v{vSc}")
    e(f"v_mov_b32 v{vM}, 0x{f2u(-1e30):08x}")
    if diag:
        e(f"v_mov_b32 v{vStamp}, 0")
        e(f"s_memrealtime s[{sT0+4}:{sT0+5}]")
        e(f"s_waitcnt lgkmcnt(0)")
        e(f"v_writelane_b32 v{vStamp}, s{sT0+2}, 61")
        e(f"v_writelane_b32 v{vStamp}, s{sT0+4}, 60")

    def setup_tail():
        e(f"s_mov_b32 s{sOut}, s16")
        e(f"s_mov_b32 s{sOut+1}, s17")
        e(f"s_mov_b32 s{sOut+2}, {NH*ROWB}")
        e(f"s_mov_b32 s{sOut+3}, 0x00020000")
        mk_ws()
        e(f"s_mul_i32 s{sHead}, s{sWave}, {NT}")
        e(f"s_add_u32 s{sHead}, s{sHead}, s{sTeam}")
        e(f"s_mul_i32 s{sRem}, s{sHead}, {T*1024}")
        for k in range(1, 4):
            e(f"s_add_u32 s{sRem+k}, s{sRem}, {k*4096}")
        e(f"s_lshl_b32 s{sTmp}, s{sMem}, 10")
        e(f"s_add_u32 s{sSlot}, s{sRem}, s{sTmp}")
        e(f"v_lshlrev_b32 v{vHdr}, 10, v{vLane}")
        e(f"s_lshl_b32 s{sArr}, s{sTeam}, 9")
        e(f"s_add_u32 s{sArr}, s{sArr}, {ARR_OFF}")
        e(f"s_lshl_b32 s{sTmp}, s{sWave}, 7")
        e(f"s_add_u32 s{sArr}, s{sArr}, s{sTmp}")
        e(f"s_mul_i32 s{sLim}, s{sHead}, {ROWB}")
        e(f"v_lshlrev_b32 v{vLa16}, 4, v{vLane}")
        e(f"v_lshrrev_b32 v{vOutOff}, 3, v{vLane}")
        e(f"v_lshl_add_u32 v{vOutOff}, v{vOutOff}, 1, v{vS16}")

    for u in range(I0, RU):
        e(f"s_waitcnt vmcnt(3)")
        if diag and u == I0 and 'B' not in x: stamp(62)
        issue(u, False)

    def helper1():
        e.label("L_helper")
        if FP:
            if not NEAR: e(f"s_load_dwordx16 s[4:19], s[0:1], 0")
            e(f"v_lshlrev_b32 v{vLa16}, 4, v{vLane}")
            e(f"v_mov_b32 v{vZero}, 0")
            if not NEAR: e(f"s_waitcnt lgkmcnt(0)")
        if not NEAR: e.nop(3)
        hb = vAcc
        e(f"s_mul_i32 s{sTmp}, s{sTeam}, {ROWB}")
        e(f"v_add_u32 v{vT1}, s{sTmp}, v{vLa16}")
        e(f"s_mov_b64 exec, 0xffffff")
        if NEAR: e(f"s_waitcnt lgkmcnt(0)")
        for r in range(NR):
            if r: e(f"v_add_u32 v{vT1}, {NT*ROWB}, v{vT1}")
            e(f"global_load_dwordx4 v[{hb+4*r}:{hb+4*r+3}], v{vT1}, s[{'22:23' if NEAR else '4:5'}]")
        e(f"s_mov_b64 exec, -1")
        if NEAR: e(f"s_load_dwordx16 s[4:19], s[0:1], 0")
        e(f"s_load_dwordx2 s[20:21], s[0:1], 64")
        e(f"s_memrealtime s[{sStart}:{sStart+1}]")
        e(f"v_lshlrev_b32 v{vT0}, 2, v{vLane}")
        e(f"ds_write_b32 v{vT0}, v{vZero}")
        e(f"s_mov_b32 s{sPar}, 0xaaaaaaaa")
        e(f"s_mov_b32 s{sPar+1}, 0xaaaaaaaa")
        e(f"s_mov_b64 exec, 0xffffff")
        e(f"s_waitcnt vmcnt(0)")
        for r in range(NR):
            e(f"ds_write_b128 v{vLa16}, v[{hb+4*r}:{hb+4*r+3}] offset:{LDS_Q + r*ROWB}")
        e(f"s_mov_b64 exec, -1")
        e(f"s_waitcnt lgkmcnt(0)")
        e(f"s_barrier")

    def qread(r):
        for n in range(3):
            e(f"ds_read_b128 v[{vQ+4*n}:{vQ+4*n+3}], v{vS16} offset:{LDS_Q + r*ROWB + n*128}")
    e(f"s_barrier")
    qread(0)
    e(f"s_waitcnt lgkmcnt(0)")
    if diag and 'B' in x: stamp(62)
    if NEAR:
        e(f"s_branch L_kentry")
        helper1()
        e(f"s_branch L_helper2")
        e.label("L_kentry")

    def control():
        k = nl[0]; nl[0] += 1
        e(f"s_memrealtime s[{sTm}:{sTm+1}]")
        e(f"ds_read_b96 v[{vLat}:{vLat+2}], v{vZero} offset:{LDS_REF}")
        e(f"s_add_u32 s{sPt}, s{sPt}, {RU}")
        e(f"s_and_b32 s{sTmp}, s{sCnt}, {PU-1}")
        e(f"s_xor_b32 s{sK}, s{sWave}, 1")
        e(f"s_or_b32 s{sTmp}, s{sTmp}, s{sK}")
        e(f"s_waitcnt lgkmcnt(0)")
        e(f"s_cbranch_scc1 L_nopt{k}")
        e(f"s_lshr_b32 s{sTmp}, s{sPt}, {int(math.log2(PU)) - 2}")
        e(f"s_or_b32 s{sK}, s{sTm}, 1")
        e(f"v_mov_b32 v{vT1}, s{sTmp}")
        e(f"v_mov_b32 v{vX}, s{sK}")
        e(f"ds_write_b32 v{vT1}, v{vX} offset:{LDS_OWN-4}")
        e.label(f"L_nopt{k}")
        e(f"v_readfirstlane_b32 s{sK}, v{vLat}")
        e(f"v_readfirstlane_b32 s{sTmp}, v{vLat+1}")
        e(f"v_readfirstlane_b32 s{sTown}, v{vLat+2}")
        e(f"s_cmp_eq_u32 s{sK}, 0")
        e(f"s_cbranch_scc1 L_noctl{k}")
        e(f"s_sub_i32 s{sK}, s{sPt}, s{sK}")
        e(f"s_sub_i32 s{sTmp}, s{sTm}, s{sTmp}")
        e(f"s_mul_i32 s{sTown}, s{sTown}, s{sK}")
        e(f"s_ashr_i32 s{sTown}, s{sTown}, 4")
        e(f"s_sub_i32 s{sTmp}, s{sTmp}, s{sTown}")
        e(f"s_max_i32 s{sTmp}, s{sTmp}, -1000")
        e(f"s_min_i32 s{sTmp}, s{sTmp}, 1000")
        e(f"s_mul_i32 s{sTmp}, s{sTmp}, {int(round(gain * 256 * 256 / 100))}")
        e(f"s_ashr_i32 s{sTmp}, s{sTmp}, 8")
        e(f"s_add_i32 s{sTmp}, s{sTmp}, {WFIX}")
        e(f"s_max_i32 s{sTmp}, s{sTmp}, {int(wmin*256)}")
        e(f"s_min_i32 s{sW}, s{sTmp}, {int(wmax*256)}")
        e.label(f"L_noctl{k}")

    def phase(name, total, unit, handlers, sw):
        e(f"s_mov_b32 s{sCnt}, 0")
        e.nop(3)
        e.raw(".p2align 6")
        e.label(f"L_{name}loop")
        for u in range(RU):
            e(f"s_waitcnt vmcnt({3*(RU-1)})")
            unit(u)
            gate()
            issue(u, sw)
        e(f"v_add_u32 v{vSc}, {RU*256}, v{vSc}")
        e(f"s_add_u32 s{sCnt}, s{sCnt}, {RU}")
        control()
        e(f"s_and_b32 s{sTmp}, s{sCnt}, {SPR-1}")
        e(f"s_cbranch_scc0 L_{name}round")
        if total % SPR:
            e(f"s_cmp_lg_u32 s{sCnt}, {total}")
            e(f"s_cbranch_scc1 L_{name}loop")
            e(f"s_branch L_{name}done")
        else:
            e(f"s_branch L_{name}loop")
        e.label(f"L_{name}round")
        hs = sorted(handlers)
        for bnd in hs[1:]:
            e(f"s_cmp_eq_u32 s{sCnt}, {bnd}")
            e(f"s_cbranch_scc1 L_{name}h{bnd}")
        if total % SPR == 0:
            e(f"s_cmp_eq_u32 s{sCnt}, {total}")
            e(f"s_cbranch_scc1 L_{name}done")
        for bnd in hs:
            e.label(f"L_{name}h{bnd}")
            e.nop(3)
            handlers[bnd]()
            e.nop(2)
            e(f"s_branch L_{name}loop")
        e.label(f"L_{name}done")
        e.nop(3)

    def kunit(u):
        r0 = vRing + 12 * u
        for j in range(4):
            for n in range(3):
                e(f"v_dot2_f32_bf16 v{vS+n}, v{r0+4*n+j}, v{vQ+4*n+j}, {'0' if j == 0 else 'v%d' % (vS+n)}")
        e(f"v_add_f32 v{vS}, v{vS}, v{vS+1}")
        e(f"v_add_f32 v{vS}, v{vS}, v{vS+2}")
        for dp in ("quad_perm:[1,0,3,2]", "quad_perm:[2,3,0,1]", "row_half_mirror"):
            e(f"v_add_f32_dpp v{vS}, v{vS}, v{vS} {dp} row_mask:0xf bank_mask:0xf")
        e(f"ds_write_b32 v{vSc}, v{vS} offset:{u*256}")
        e(f"v_max_f32 v{vM}, v{vM}, v{vS}")

    def kend(r):
        def f():
            stamp(r)
            if r + 1 < NR: qread(r + 1)
            e(f"v_max_f32_dpp v{vM}, v{vM}, v{vM} row_ror:8 row_mask:0xf bank_mask:0xf")
            e(f"v_mov_b32 v{vX}, v{vM}")
            e(f"v_permlane16_swap_b32 v{vM}, v{vX}")
            e(f"v_max_f32 v{vM}, v{vM}, v{vX}")
            e(f"v_mov_b32 v{vX}, v{vM}")
            e(f"v_permlane32_swap_b32 v{vM}, v{vX}")
            e(f"v_max_f32 v{vM}, v{vM}, v{vX}")
            e(f"v_readfirstlane_b32 s{sMx+r}, v{vM}")
            e(f"v_mov_b32 v{vM}, 0x{f2u(-1e30):08x}")
            e(f"s_waitcnt lgkmcnt(0)")
        return f

    phase("k", TOT, kunit, {SPR * (r + 1): kend(r) for r in range(NR - 1)}, True)
    kend(NR - 1)()

    def vunit(u):
        r0 = vRing + 12 * (u % RU)
        e(f"v_sub_f32 v{vPh}, v{vT0}, v{vM}")
        e(f"ds_read_b32 v{vT0}, v{vSc} offset:{(u+1)*256}")
        e(f"v_mul_f32 v{vPh}, s{sC}, v{vPh}")
        e(f"v_exp_f32 v{vPh}, v{vPh}")
        e(f"v_cvt_pk_bf16_f32 v{vPh}, 0, v{vPh}")
        e(f"v_lshrrev_b32 v{vPl}, 16, v{vPh}")
        e(f"v_add_f32 v{vL}, v{vL}, v{vPh}")

    def vdots(u):
        r0 = vRing + 12 * (u % RU)
        for n in range(3):
            for j in range(4):
                e(f"v_dot2c_f32_bf16 v{vAcc+8*n+2*j}, v{r0+4*n+j}, v{vPl}")
                e(f"v_dot2c_f32_bf16 v{vAcc+8*n+2*j+1}, v{r0+4*n+j}, v{vPh}")
        e(f"s_waitcnt lgkmcnt(0)")

    def l_reduce():
        e(f"v_add_f32_dpp v{vL}, v{vL}, v{vL} row_ror:8 row_mask:0xf bank_mask:0xf")
        e(f"v_mov_b32 v{vX}, v{vL}")
        e(f"v_permlane16_swap_b32 v{vL}, v{vX}")
        e(f"v_add_f32 v{vL}, v{vL}, v{vX}")
        e(f"v_mov_b32 v{vX}, v{vL}")
        e(f"v_permlane32_swap_b32 v{vL}, v{vX}")
        e(f"v_add_f32 v{vL}, v{vL}, v{vX}")
        e(f"v_cndmask_b32 v{vO+3}, v{vL}, v{vM}, s[{sPar}:{sPar+1}]")

    def acc_reduce():
        A = lambda n, ee: vAcc + 8 * n + ee
        for n in range(3):
            for ee in range(4):
                e(f"v_permlane32_swap_b32 v{A(n,ee)}, v{A(n,ee+4)}")
        for n in range(3):
            for ee in range(4):
                e(f"v_add_f32 v{A(n,ee)}, v{A(n,ee)}, v{A(n,ee+4)}")
        for n in range(3):
            for ee in range(2):
                e(f"v_permlane16_swap_b32 v{A(n,ee)}, v{A(n,ee+2)}")
        for n in range(3):
            for ee in range(2):
                e(f"v_add_f32 v{A(n,ee)}, v{A(n,ee)}, v{A(n,ee+2)}")
        for n in range(3):
            e(f"v_add_f32_dpp v{vO+n}, v{A(n,0)}, v{A(n,0)} row_ror:8 row_mask:0xf bank_mask:0x3")
        for n in range(3):
            e(f"v_add_f32_dpp v{vO+n}, v{A(n,1)}, v{A(n,1)} row_ror:8 row_mask:0xf bank_mask:0xc")
        e(f"ds_write_b128 v{vRec}, v[{vO}:{vO+3}]")

    def vbegin(r):
        e(f"v_mov_b32 v{vL}, 0")
        for k in range(24):
            e(f"v_mov_b32 v{vAcc+k}, 0")
        e(f"v_mov_b32 v{vM}, s{sMx+r}")

    def vend(r):
        def f():
            stamp(NR + r)
            l_reduce()
            acc_reduce()
            e(f"v_add_u32 v{vRec}, {W*1024}, v{vRec}")
            vbegin(r + 1)
        return f

    e(f"v_subrev_u32 v{vSc}, {TOT*256}, v{vSc}")
    e(f"ds_read_b32 v{vT0}, v{vSc}")
    e(f"v_lshlrev_b32 v{vRec}, 4, v0")
    e(f"v_add_u32 v{vRec}, {LDS_REC}, v{vRec}")
    e(f"s_mov_b32 s{sPar}, 0xaaaaaaaa")
    e(f"s_mov_b32 s{sPar+1}, 0xaaaaaaaa")
    e(f"s_mov_b32 s{sC}, 0x{f2u(SCALE_LOG2E):08x}")
    vbegin(0)
    e(f"s_waitcnt lgkmcnt(0)")
    phase("v", TOT - RU - (RU if nopen else 0), lambda u: (vunit(u), vdots(u)), {SPR * (r + 1): vend(r) for r in range(NR - 1)}, False)
    if nopen:
        for u in range(RU):
            e(f"s_waitcnt vmcnt({3*(RU-1)})")
            vunit(u); vdots(u)
            if u < RU - nopen: gate()
            issue(u, False)
        e(f"v_add_u32 v{vSc}, {RU*256}, v{vSc}")
    stamp(2 * NR - 1)
    setup_tail()
    for u in range(RU):
        vunit(u)
        if u == RU - 1:
            l_reduce()
            e(f"s_lshl_b32 s{sTmp}, s{sWave}, 12")
            e(f"s_add_u32 s{sTmp}, s{sTmp}, {LDS_REC}")
            e(f"v_add_u32 v{vT1}, s{sTmp}, v{vLa16}")
            e(f"s_lshl_b32 s{sTmp}, s{sWave}, 10")
            e(f"s_add_u32 s{sTmp}, s{sTmp}, {LDS_TREE}")
            e(f"v_add_u32 v{vSc}, s{sTmp}, v{vLa16}")
        e(f"s_waitcnt vmcnt({3*(RU-1-u)})")
        vdots(u)
    if diag:
        e(f"s_memrealtime s[{sT0+2}:{sT0+3}]")
        e(f"s_waitcnt lgkmcnt(0)")
        for j in range(4):
            e(f"v_mov_b32 v{vRing+j}, s{sT0+j}")
        e(f"s_lshl_b32 s{sTmp}, s2, 9")
        e(f"s_add_u32 s{sTmp}, s{sTmp}, {DIAG_OFF}")
        e(f"s_lshl_b32 s{sCnt}, s{sWave}, 4")
        e(f"s_add_u32 s{sTmp}, s{sTmp}, s{sCnt}")
        e(f"s_mov_b64 exec, 1")
        e(f"buffer_store_dwordx4 v[{vRing}:{vRing+3}], v{vZero}, s[{sWs}:{sWs+3}], s{sTmp} offen")
        e(f"s_mov_b64 exec, -1")
        e(f"s_mul_i32 s{sTmp}, s2, {W*256}")
        e(f"s_add_u32 s{sTmp}, s{sTmp}, {DIAG_OFF+NWG*512}")
        e(f"v_lshlrev_b32 v{vT0}, 2, v0")
        e(f"buffer_store_dword v{vStamp}, v{vT0}, s[{sWs}:{sWs+3}], s{sTmp} offen")
        e.nop(4)
    acc_reduce()
    e(f"s_mov_b32 s{sStep}, 0xfffff800")
    e(f"s_waitcnt lgkmcnt(0)")
    e(f"s_barrier")
    if diag: e(f"s_memrealtime s[{sT0}:{sT0+1}]")

    vMW = vS
    def combine(recs, out):
        n = len(recs)
        F = vAcc
        e(f"v_max_f32 v{vMW}, v{recs[0]+3}, v{recs[1]+3}")
        i = 2
        while i < n:
            if i + 1 < n:
                e(f"v_max3_f32 v{vMW}, v{vMW}, v{recs[i]+3}, v{recs[i+1]+3}"); i += 2
            else:
                e(f"v_max_f32 v{vMW}, v{vMW}, v{recs[i]+3}"); i += 1
        for i in range(n):
            e(f"v_sub_f32 v{F+i}, v{recs[i]+3}, v{vMW}")
        for i in range(n):
            e(f"v_mul_f32 v{F+i}, s{sC}, v{F+i}")
        for i in range(n):
            e(f"v_exp_f32 v{F+i}, v{F+i}")
        for i in range(n):
            e(f"v_mov_b32_dpp v{F+i}, v{F+i} quad_perm:[1,1,3,3] row_mask:0xf bank_mask:0xf")
        for j in range(4):
            e(f"v_mul_f32 v{out+j}, v{F}, v{recs[0]+j}")
        for i in range(1, n):
            for j in range(4):
                e(f"v_fmac_f32 v{out+j}, v{F+i}, v{recs[i]+j}")

    for w in range(W):
        e(f"ds_read_b128 v[{vB+4*w}:{vB+4*w+3}], v{vT1} offset:{w*1024}")
    e(f"ds_read_b128 v[{vB+16}:{vB+19}], v{vSc}")
    e(f"s_waitcnt lgkmcnt(0)")
    combine([vB + 4 * w for w in range(W + 1)], vO)
    e(f"v_cndmask_b32 v{vO+3}, v{vO+3}, v{vMW}, s[{sPar}:{sPar+1}]")
    if pk == 1:
        e(f"v_mul_u32_u24 v{vLa16}, 12, v{vLane}")
        e(f"v_lshlrev_b32 v{vT0}, 2, v{vLane}")
        e(f"buffer_store_dwordx3 v[{vO}:{vO+2}], v{vLa16}, s[{sWs}:{sWs+3}], s{sSlot} offen sc1")
        e(f"s_mov_b64 exec, 3")
        e(f"buffer_store_dword v{vO+3}, v{vT0}, s[{sWs}:{sWs+3}], s{sSlot} offen offset:768 sc1")
        e(f"s_mov_b64 exec, -1")
    elif pk == 2:
        e(f"v_lshrrev_b32 v{vB}, 21, v{vO+2}")
        e(f"v_bfe_u32 v{vB+1}, v{vO+2}, 10, 11")
        e(f"v_lshlrev_b32 v{vLa16}, 3, v{vLane}")
        e(f"v_and_or_b32 v{vB}, v{vO}, s{sStep}, v{vB}")
        e(f"v_and_or_b32 v{vB+1}, v{vO+1}, s{sStep}, v{vB+1}")
        e(f"v_lshlrev_b32 v{vT0}, 2, v{vLane}")
        e(f"buffer_store_dwordx2 v[{vB}:{vB+1}], v{vLa16}, s[{sWs}:{sWs+3}], s{sSlot} offen sc1")
        e(f"s_mov_b64 exec, 3")
        e(f"buffer_store_dword v{vO+3}, v{vT0}, s[{sWs}:{sWs+3}], s{sSlot} offen offset:768 sc1")
        e(f"s_mov_b64 exec, -1")
    else:
        e(f"buffer_store_dwordx4 v[{vO}:{vO+3}], v{vLa16}, s[{sWs}:{sWs+3}], s{sSlot} offen sc1")
    e(f"v_mov_b32 v{vX}, 1")
    if ph:
        e(f"s_mov_b64 exec, 1")
        e(f"s_waitcnt vmcnt(0)")
        if diag: e(f"s_memrealtime s[{sT0+2}:{sT0+3}]")
        e(f"buffer_atomic_add v{vX}, v{vZero}, s[{sWs}:{sWs+3}], s{sArr} offen sc0")
        if 'L' in x or 'M' in x:
            e(f"s_mov_b64 exec, -1")
            e(f"buffer_load_dwordx4 v[{vB}:{vB+3}], v{vLa16}, s[{sWs}:{sWs+3}], s{sSlot} offen{' sc1' if 'L' in x else ''}")
            e(f"s_waitcnt vmcnt(1)")
        else:
            e(f"s_waitcnt vmcnt(0)")
        e(f"v_readfirstlane_b32 s{sTmp}, v{vX}")
    else:
        e(f"s_cmp_lg_u32 s{sWave}, 0")
        e(f"s_waitcnt vmcnt(0)")
        e(f"s_barrier")
        if diag: e(f"s_memrealtime s[{sT0+2}:{sT0+3}]")
        e(f"s_cbranch_scc1 L_wait")
        if vat:
            e(f"s_mov_b64 exec, 1")
            e(f"buffer_atomic_add v{vX}, v{vZero}, s[{sWs}:{sWs+3}], s{sArr} offen sc0")
            e(f"s_waitcnt vmcnt(0)")
            e(f"ds_write_b32 v{vZero}, v{vX} offset:{LDS_FLAG}")
            e(f"v_readfirstlane_b32 s{sTmp}, v{vX}")
            e(f"s_mov_b64 exec, -1")
        else:
            e(f"s_atomic_add s{sTmp}, s[20:21], s{sArr} glc")
            e(f"s_waitcnt lgkmcnt(0)")
            e(f"v_mov_b32 v{vX}, s{sTmp}")
            e(f"ds_write_b32 v{vZero}, v{vX} offset:{LDS_FLAG}")
        e(f"s_waitcnt lgkmcnt(0)")
        e(f"s_barrier")
        e(f"s_branch L_got")
        e.label("L_wait")
        e(f"s_barrier")
        e(f"ds_read_b32 v{vX}, v{vZero} offset:{LDS_FLAG}")
        e(f"s_waitcnt lgkmcnt(0)")
        e(f"v_readfirstlane_b32 s{sTmp}, v{vX}")
    e.label("L_got")
    if diag:
        e(f"s_memrealtime s[96:97]")
        e(f"s_mov_b64 s[98:99], 0")
        e(f"s_mov_b64 s[100:101], 0")
    e(f"s_cmp_lg_u32 s{sTmp}, {T-1}")
    e(f"s_cbranch_scc1 L_fin")
    sF = sRem + 4
    e(f"s_mov_b64 exec, 0xffff")
    e(f"buffer_load_dword v{vHm}, v{vHdr}, s[{sWs}:{sWs+3}], s{sRem} offen offset:28 sc1")
    e(f"buffer_load_dword v{vHl}, v{vHdr}, s[{sWs}:{sWs+3}], s{sRem} offen offset:12 sc1")
    e(f"s_mov_b64 exec, -1")
    for m in range(T):
        e(f"buffer_load_dwordx3 v[{vR+4*m}:{vR+4*m+2}], v{vLa16}, s[{sWs}:{sWs+3}], s{sRem+m//4} offen offset:{(m%4)*1024} sc1")
    e(f"s_waitcnt vmcnt({T+1})")
    e(f"v_max_f32_dpp v{vMW}, v{vHm}, v{vHm} row_ror:8 row_mask:0xf bank_mask:0xf")
    for rr in (4, 2, 1):
        e(f"v_max_f32_dpp v{vMW}, v{vMW}, v{vMW} row_ror:{rr} row_mask:0xf bank_mask:0xf")
    e(f"v_sub_f32 v{vHm}, v{vHm}, v{vMW}")
    e(f"v_mul_f32 v{vHm}, s{sC}, v{vHm}")
    e(f"v_exp_f32 v{vHm}, v{vHm}")
    e(f"s_waitcnt vmcnt({T})")
    e(f"v_mul_f32 v{vHl}, v{vHl}, v{vHm}")
    rs = [8, 4, 2, 1]
    for m in range(T):
        e(f"v_readlane_b32 s{sF+m}, v{vHm}, {m}")
        if m % 3 == 1 and rs:
            e(f"v_add_f32_dpp v{vHl}, v{vHl}, v{vHl} row_ror:{rs.pop(0)} row_mask:0xf bank_mask:0xf")
    e(f"v_rcp_f32 v{vHl}, v{vHl}")
    for m in range(T):
        if m % 4 == 0:
            e(f"s_waitcnt vmcnt({T - (m + 4)})")
            if diag and m == 12: e(f"s_memrealtime s[98:99]")
        for j in range(3):
            e(f"v_{'mul' if m == 0 else 'fmac'}_f32 v{vO+j}, s{sF+m}, v{vR+4*m+j}")
        if m == 0: e(f"v_readfirstlane_b32 s{sTmp}, v{vHl}")
    for j in range(3):
        e(f"v_mul_f32 v{vO+j}, s{sTmp}, v{vO+j}")
    for j in range(3):
        e(f"v_cvt_pk_bf16_f32 v{vO+j}, v{vO+j}, v{vO+j}")
    for j in range(3):
        e(f"buffer_store_short v{vO+j}, v{vOutOff}, s[{sOut}:{sOut+3}], s{sLim} offen offset:{j*128}{opol}")
    if diag: e(f"s_memrealtime s[100:101]")
    e.label("L_fin")
    if diag:
        e(f"s_cmp_lg_u32 s{sWave}, 1")
        e(f"s_cbranch_scc1 L_end")
        e(f"s_waitcnt vmcnt(0)")
        e(f"s_memrealtime s[{sT0+4}:{sT0+5}]")
        e(f"s_getreg_b32 s{sT0+6}, hwreg(HW_REG_XCC_ID)")
        e(f"s_getreg_b32 s{sT0+7}, hwreg(HW_REG_HW_ID)")
        e(f"s_waitcnt lgkmcnt(0)")
        for j in range(8):
            e(f"v_mov_b32 v{vR+j}, s{sT0+j}")
        e(f"s_lshl_b32 s{sTmp}, s2, 9")
        e(f"s_add_u32 s{sTmp}, s{sTmp}, {DIAG_OFF+256}")
        e(f"s_mov_b64 exec, 1")
        e(f"buffer_store_dwordx4 v[{vR}:{vR+3}], v{vZero}, s[{sWs}:{sWs+3}], s{sTmp} offen")
        e(f"buffer_store_dwordx4 v[{vR+4}:{vR+7}], v{vZero}, s[{sWs}:{sWs+3}], s{sTmp} offen offset:16")
        for j in range(3):
            e(f"v_mov_b32 v{vR+8+j}, s{96+2*j}")
        e(f"buffer_store_dwordx4 v[{vR+8}:{vR+11}], v{vZero}, s[{sWs}:{sWs+3}], s{sTmp} offen offset:32")
    e("s_endpgm")

    if NEAR:
        e.label("L_helper2")
    else:
        helper1()
    mk_ws()
    e(f"v_mov_b32 v{vO}, 0")
    e(f"v_mov_b32 v{vO+1}, 0")
    e(f"v_mov_b32 v{vO+2}, 0")
    e(f"v_mov_b32 v{vM}, 0x{f2u(-1e30):08x}")
    e(f"v_cndmask_b32 v{vO+3}, v{vO}, v{vM}, s[{sPar}:{sPar+1}]")
    e(f"v_add_u32 v{vRec}, {LDS_TREE}, v{vLa16}")
    e(f"s_cmp_eq_u32 s{sMem}, 0")
    e(f"s_cbranch_scc1 L_tree")
    for r in range(NR):
        e(f"ds_write_b128 v{vRec}, v[{vO}:{vO+3}] offset:{r*1024}")
    e(f"s_branch L_treedone")
    e.label("L_tree")
    e(f"v_lshrrev_b32 v{vOutOff}, 3, v{vLane}")
    e(f"v_lshl_add_u32 v{vOutOff}, v{vOutOff}, 1, v{vS16}")
    e(f"s_lshl_b32 s{sArr}, s{sTeam}, 9")
    e(f"s_add_u32 s{sArr}, s{sArr}, {ARR_OFF}")
    e(f"v_lshlrev_b32 v{vT0}, 7, v{vLane}")
    e(f"v_mov_b32 v{vPh}, 0")
    e(f"s_mov_b64 exec, 15")
    e(f"buffer_atomic_swap v{vPh}, v{vT0}, s[{sWs}:{sWs+3}], s{sArr} offen sc0")
    e(f"s_mov_b64 exec, -1")
    e(f"s_mul_i32 s{sTmp}, s{sTeam}, {ROWB}")
    e(f"v_add_u32 v{vT1}, s{sTmp}, v{vOutOff}")
    e(f"v_add_u32 v{vAl}, s{sTmp}, v{vS16}")
    hb = 56
    vEnd = max(vEnd, hb + 16 * NR + 12)
    hq = hb + 16 * NR
    for r in range(NR):
        b = hb + 16 * r
        e(f"v_add_u32 v{vT0}, {r*NT*ROWB}, v{vAl}")
        for n in range(3):
            e(f"global_load_dwordx4 v[{b+4*n}:{b+4*n+3}], v{vT0}, s[10:11] offset:{n*128}")
        e(f"v_add_u32 v{vT0}, {r*NT*ROWB}, v{vT1}")
        for n in range(3):
            e(f"global_load_ushort v{b+12+n}, v{vT0}, s[12:13] offset:{n*128}")
        e(f"s_add_u32 s{sTmp}, s{sTeam}, {r*NT}")
        e(f"s_lshr_b32 s{sTmp}, s{sTmp}, 5")
        e(f"s_lshl_b32 s{sTmp}, s{sTmp}, 1")
        e(f"v_mov_b32 v{vT0}, s{sTmp}")
        e(f"global_load_ushort v{b+15}, v{vT0}, s[14:15]")
    e(f"v_mov_b32 v{vX}, 0x{f2u(MASKRAW):08x}")
    e(f"s_lshl_b32 s{sArr}, s{sTeam}, 4")
    e(f"v_mov_b32 v{vT0}, s{sArr}")
    e(f"v_mov_b32 v{vPl}, 1")
    e(f"s_waitcnt vmcnt(0)")
    e(f"s_mov_b64 exec, 1")
    e(f"global_atomic_add v{vT0}, v{vPl}, s[18:19]")
    e(f"s_mov_b64 exec, -1")
    for r in range(NR):
        b = hb + 16 * r
        for n in range(3):
            e(f"ds_read_b128 v[{hq+4*n}:{hq+4*n+3}], v{vS16} offset:{LDS_Q + r*ROWB + n*128}")
        e(f"s_waitcnt lgkmcnt(0)")
        for j in range(4):
            for n in range(3):
                e(f"v_dot2_f32_bf16 v{vS+n}, v{b+4*n+j}, v{hq+4*n+j}, {'0' if j == 0 else 'v%d' % (vS+n)}")
        for n in range(4):
            e(f"v_lshlrev_b32 v{b+12+n}, 16, v{b+12+n}")
        e(f"v_add_f32 v{vS}, v{vS}, v{vS+1}")
        e(f"v_add_f32 v{vS}, v{vS}, v{vS+2}")
        for dp in ("quad_perm:[1,0,3,2]", "quad_perm:[2,3,0,1]", "row_half_mirror"):
            e(f"v_add_f32_dpp v{vS}, v{vS}, v{vS} {dp} row_mask:0xf bank_mask:0xf")
        e(f"v_sub_f32 v{b+15}, 1.0, v{b+15}")
        e(f"v_fma_f32 v{vS}, v{b+15}, v{vX}, v{vS}")
        e(f"v_cndmask_b32 v{b+15}, 1.0, v{vS}, s[{sPar}:{sPar+1}]")
        e(f"ds_write_b128 v{vRec}, v[{b+12}:{b+15}] offset:{r*1024}")
    e.label("L_treedone")
    LASTP = (2 * TOT - RU) // PU - 1
    sPub, sLead, sRefl, sTry, sR1, sR2 = sCnt, sIss, sStep, sJump, sBase, sPos
    e(f"s_mov_b32 s{sPt}, 0")
    e(f"s_getreg_b32 s{sRefl}, hwreg(HW_REG_XCC_ID)")
    e(f"s_and_b32 s{sRefl}, s{sRefl}, 15")
    e(f"s_lshl_b32 s{sRefl}, s{sRefl}, 7")
    e(f"s_add_u32 s{sRefl}, s{sRefl}, {REFL}")
    e(f"v_lshlrev_b32 v{vHdr}, 7, v{vLane}")
    e(f"s_lshr_b32 s{sK}, s2, 4")
    e(f"s_and_b32 s{sTmp}, s2, 15")
    e(f"s_cmp_eq_u32 s{sK}, s{sTmp}")
    e(f"s_cselect_b32 s{sPub}, 1, 0")
    e(f"s_cmp_lt_u32 s{sK}, {nlead}")
    e(f"s_cselect_b32 s{sLead}, s{sPub}, 0")
    e(f"s_lshl_b32 s{sTmp}, s{sK}, 7")
    e(f"v_mov_b32 v{vHl}, s{sTmp}")
    e(f"s_mov_b32 s{sOff}, {HINT_OFF}")
    e(f"s_mov_b32 s{sSlot}, 100000")
    e(f"s_mov_b64 exec, 1")
    e(f"s_waitcnt lgkmcnt(0)")
    e.label("L_hp")
    e(f"s_lshl_b32 s{sTmp}, s{sPt}, 2")
    e(f"v_mov_b32 v{vT1}, s{sTmp}")
    e.label("L_hwait")
    e(f"s_sleep {poll}")
    e(f"s_cmp_lg_u32 s{sLead}, 0")
    e(f"s_cbranch_scc1 L_hnoref")
    e(f"s_cmp_lt_u32 s{sPt}, 2")
    e(f"s_cbranch_scc1 L_hnoref")
    e(f"buffer_load_dwordx3 v[{vLat}:{vLat+2}], v{vZero}, s[{sWs}:{sWs+3}], s{sRefl} offen sc1")
    e(f"s_waitcnt vmcnt(0)")
    e(f"v_readfirstlane_b32 s{sTmp}, v{vLat+1}")
    e(f"s_sub_u32 s{sTmp}, s{sTmp}, s{sStart}")
    e(f"s_cmp_lt_u32 s{sTmp}, s{sSlot}")
    e(f"s_cbranch_scc0 L_hnoref")
    e(f"ds_write_b96 v{vZero}, v[{vLat}:{vLat+2}] offset:{LDS_REF}")
    e.label("L_hnoref")
    e(f"ds_read_b32 v{vX}, v{vT1} offset:{LDS_OWN}")
    e(f"s_waitcnt lgkmcnt(0)")
    e(f"v_readfirstlane_b32 s{sTown}, v{vX}")
    e(f"s_cmp_eq_u32 s{sTown}, 0")
    e(f"s_cbranch_scc1 L_hwait")
    e(f"s_cmp_eq_u32 s{sPub}, 0")
    e(f"s_cbranch_scc1 L_hnext")
    e(f"buffer_store_dword v{vX}, v{vHl}, s[{sWs}:{sWs+3}], s{sOff} offen sc1")
    if 'C' in x:
        e(f"s_and_b32 s{sTmp}, s{sPt}, 7")
        e(f"s_cmp_lg_u32 s{sTmp}, 5")
        e(f"s_cbranch_scc1 L_nocode")
        e(f"s_getpc_b64 s[{sMx}:{sMx+1}]")
        e.label("L_pc")
        e(f"s_sub_u32 s{sMx}, s{sMx}, L_pc-L_kdone")
        e(f"s_subb_u32 s{sMx+1}, s{sMx+1}, 0")
        e(f"s_mov_b64 exec, 0x3ffffffffff") if False else None
        e(f"s_mov_b32 exec_lo, -1")
        e(f"s_mov_b32 exec_hi, 0x7ff")
        e(f"global_load_dword v{vAl}, v{vHdr}, s[{sMx}:{sMx+1}]")
        e(f"s_mov_b64 exec, 1")
        e.label("L_nocode")
    e(f"s_cmp_eq_u32 s{sLead}, 0")
    e(f"s_cbranch_scc1 L_hnext")
    e(f"s_mov_b64 exec, 0xffff")
    e(f"s_mov_b32 s{sTry}, {tries}")
    e.label("L_hgather")
    e(f"s_sleep {dly}")
    e(f"buffer_load_dword v{vHm}, v{vHdr}, s[{sWs}:{sWs+3}], s{sOff} offen sc1")
    e(f"s_sub_u32 s{sTry}, s{sTry}, 1")
    e(f"s_waitcnt vmcnt(0)")
    e(f"v_subrev_u32 v{vHm}, s{sStart}, v{vHm}")
    e(f"v_cmp_le_u32 vcc, s{sSlot}, v{vHm}")
    e(f"s_cbranch_vccz L_hall")
    e(f"s_cmp_lg_u32 s{sTry}, 0")
    e(f"s_cbranch_scc1 L_hgather")
    e(f"s_sub_u32 s{sK}, s{sTown}, s{sStart}")
    e(f"s_add_u32 s{sK}, s{sK}, 250")
    e(f"v_mov_b32 v{vT0}, s{sK}")
    e(f"v_cndmask_b32 v{vHm}, v{vHm}, v{vT0}, vcc")
    e.label("L_hall")
    e.nop(2)
    for dp in ("quad_perm:[1,0,3,2]", "quad_perm:[2,3,0,1]", "row_half_mirror", "row_mirror"):
        e(f"v_add_u32_dpp v{vHm}, v{vHm}, v{vHm} {dp} row_mask:0xf bank_mask:0xf")
    e(f"v_lshrrev_b32 v{vHm}, 4, v{vHm}")
    e(f"v_add_u32 v{vLat+1}, s{sStart}, v{vHm}")
    e(f"s_mov_b64 exec, 1")
    e(f"v_readfirstlane_b32 s{sTown}, v{vLat+1}")
    e(f"s_add_u32 s{sTmp}, s{sPt}, 1")
    e(f"s_mul_i32 s{sTmp}, s{sTmp}, {PU}")
    e(f"v_mov_b32 v{vLat}, s{sTmp}")
    e(f"s_sub_u32 s{sK}, s{sTown}, s{sR1}")
    e(f"s_lshl_b32 s{sK}, s{sK}, 1")
    e(f"s_sub_u32 s{sTmp}, s{sTown}, s{sR2}")
    e(f"s_cmp_eq_u32 s{sPt}, 1")
    e(f"s_cselect_b32 s{sTmp}, s{sK}, s{sTmp}")
    if 2 * PU > 16: e(f"s_lshr_b32 s{sTmp}, s{sTmp}, {int(math.log2(2 * PU)) - 4}")
    if 2 * PU < 16: e(f"s_lshl_b32 s{sTmp}, s{sTmp}, {4 - int(math.log2(2 * PU))}")
    e(f"v_mov_b32 v{vLat+2}, s{sTmp}")
    e(f"s_mov_b32 s{sR2}, s{sR1}")
    e(f"s_mov_b32 s{sR1}, s{sTown}")
    e(f"s_cmp_eq_u32 s{sPt}, 0")
    e(f"s_cbranch_scc1 L_hnext")
    e(f"buffer_store_dwordx3 v[{vLat}:{vLat+2}], v{vZero}, s[{sWs}:{sWs+3}], s{sRefl} offen")
    e(f"ds_write_b96 v{vZero}, v[{vLat}:{vLat+2}] offset:{LDS_REF}")
    e.label("L_hnext")
    e(f"s_add_u32 s{sOff}, s{sOff}, {16*128}")
    e(f"s_add_u32 s{sPt}, s{sPt}, 1")
    e(f"s_cmp_lt_u32 s{sPt}, {LASTP}")
    e(f"s_cbranch_scc1 L_hp")
    if touch:
        e(f"global_load_dword v{vAl}, v{vZero}, s[16:17]")
    e(f"s_lshl_b32 s{sArr}, s{sTeam}, 4")
    e(f"s_load_dword s{sLim}, s[18:19], s{sArr}")
    e.label("L_rdy")
    e(f"s_waitcnt lgkmcnt(0)")
    e(f"s_cmp_lg_u32 s{sLim}, 0")
    e(f"s_cbranch_scc1 L_rdyok")
    e(f"s_sleep 16")
    e(f"s_atomic_add s{sLim}, s[18:19], s{sArr} glc")
    e(f"s_branch L_rdy")
    e.label("L_rdyok")
    if 'S' in x:
        e.label("L_hold")
        e(f"s_memrealtime s[{sTm}:{sTm+1}]")
        e(f"s_waitcnt lgkmcnt(0)")
        e(f"s_sub_u32 s{sTmp}, s{sTm}, s{sStart}")
        e(f"s_cmp_lt_u32 s{sTmp}, 7500")
        e(f"s_cbranch_scc1 L_hold")
    e(f"s_barrier")
    e.label("L_end")
    e("s_endpgm")

    acc_off = (vEnd + 3) // 4 * 4
    assert vEnd <= 256 and sEnd <= 96
    out = HEADER
    out += f"; params: v11 v4 HW=1 RU={RU} W0={W0} I0={I0} rotm={rotm} gain={gain} PU={PU} dly={dly} wmin={wmin} wmax={wmax} nlead={nlead} {'diag' if diag else ''} off={DIAG_OFF}\n"
    out += f"; @launch grid=({NWG},1,1) block=({(W+1)*64},1,1) lds={LDS_BYTES}\n"
    out += f""".amdgcn_target "amdgcn-amd-amdhsa--gfx950"
.text
.globl {NAME}_kernel
.p2align 8
.type {NAME}_kernel,@function
{NAME}_kernel:
"""
    out += "\n".join(e.lines) + "\n"
    out += f""".section .rodata,"a"
.p2align 6
.amdhsa_kernel {NAME}_kernel
  .amdhsa_next_free_vgpr {vEnd}
  .amdhsa_next_free_sgpr {102 if diag else sEnd}
  .amdhsa_accum_offset {acc_off}
  .amdhsa_group_segment_fixed_size 0
  .amdhsa_kernarg_size 72
  .amdhsa_user_sgpr_count 2
  .amdhsa_user_sgpr_kernarg_segment_ptr 1
  .amdhsa_system_sgpr_workgroup_id_x 1
.end_amdhsa_kernel
"""
    return out


if __name__ == "__main__":
    ap = argparse.ArgumentParser()
    ap.add_argument("-o", default="cdna_kernels/" + NAME + ".s")
    for k, t, d in (("ru", int, 4), ("w0", float, 2.0), ("i0", int, 2), ("rotm", int, 4), ("gain", float, 0.8), ("pu", int, 8),
                    ("dly", int, 20), ("wmin", float, 1.0), ("wmax", float, 3.0), ("tries", int, 3), ("nlead", int, 16),
                    ("touch", int, 1), ("poll", int, 6), ("vat", int, 0), ("x", str, ""), ("opol", str, "sc1"), ("nopen", int, 0), ("pk", int, 0), ("ph", int, 0), ("pm", int, 0), ("pair", int, 0), ("tm", int, 0)):
        ap.add_argument("--" + k, type=t, default=d)
    ap.add_argument("--diag", action="store_true")
    a = ap.parse_args()
    open(a.o, "w").write(gen(a.ru, a.w0, a.i0, "nt", a.diag, a.rotm, (" " + a.opol) if a.opol else "", a.gain, a.pu, a.dly, a.wmin, a.wmax,
                             a.tries, a.nlead, a.touch, a.poll, a.vat, a.x, a.nopen, a.pk, a.ph, a.pm, a.pair, a.tm))
```

```python
import math, argparse
from gen import Em, f2u, NAME, HEADER, NH, C, DH, ROWB, HEADB, KVB, SCALE_LOG2E, MASKRAW

DOC = """; Design (all shapes hard-coded; 402 MB of K/V are read exactly once, the kernel is HBM bound):
;    Split softmax: wave -> workgroup (LDS) -> team (d_ws records {acc, l, max}), rescaled to the true
"""


def gen(RU=4, W0=2.0, I0=2, pol="nt", diag=False, rotm=4, opol=" sc1", gain=0.8, PU=8, dly=20, wmin=1.0, wmax=3.0,
        tries=3, nlead=16, touch=1, poll=6, vat=0, x="", nopen=0, pk=0, ph=0, pm=0, pair=0, tm=0, ek=1):
    T, W, NWG = 16, 4, 256
    NT = NWG // T
    NR = T // 4
    NWV = T * W
    SPR = 1024 // NWV
    TOT = NR * SPR
    STEP = NWV * 3072 * (2 if pair else 1)
    FRONT = STEP
    STEP *= ek
    JUMP = STEP + (NT // ek - 1) * HEADB
    SPRA = SPR // ek
    assert SPR % RU == 0 and PU % RU == 0
    pol = (" " + pol) if pol else ""
    NP = 2 * TOT // PU
    HINT_OFF = NH * T * 1024
    REFL = HINT_OFF + NP * 16 * 128
    ARR_OFF = REFL + 16 * 128
    DIAG_OFF = ARR_OFF + NT * 512
    WS_BYTES = DIAG_OFF + (NWG * 512 + NWG * W * 256 if diag else 0)
    LDS_FLAG = 0
    LDS_REF = 16
    LDS_OWN = 64
    LDS_Q = 512
    LDS_SC = 2048
    assert LDS_OWN + 4 * NP <= 256 and LDS_Q + NR * ROWB <= LDS_SC
    LDS_REC = LDS_SC + W * TOT * 256
    LDS_TREE = LDS_REC + NR * W * 1024
    LDS_BYTES = LDS_TREE + NR * 1024
    assert LDS_BYTES > 81920
    e = Em()
    c = lambda t: e.raw("    ; " + t)
    vOff, vT0, vT1, vM, vL, vSc, vAl, vLane, vStamp, vPh, vPl = 1, 2, 3, 4, 5, 6, 7, 8, 9, 10, 11
    vS = 12
    vX = 15
    vSc0, vLa16, vOutOff, vRec = 16, 17, 18, 19
    vS16, vHdr, vHm, vHl = 20, 21, 22, 23
    vO = 24
    vAcc = 28
    vLat, vZero = 52, 55
    vQ = 56
    vRing = 68
    vR = 56
    vB = vR + 64
    vEnd = max(vRing + 12 * RU, vB + 20)
    sKV = 24
    sAcc, sK, sPt, sTown = 28, 29, 30, 31
    sTm = 32
    sStart = 34
    sTeam, sMem, sWave, sOff, sIss, sCnt, sC, sTmp = 36, 37, 38, 39, 40, 41, 42, 43
    sPar = 44
    sPos, sBase = 46, 47
    sWs, sOut = 48, 52
    sT0 = 56
    sHead, sSlot, sLim, sArr, sStep, sJump, sOff0, sW = 64, 65, 66, 67, 68, 69, 70, 71
    sMx = 72
    sRem = 76
    sEnd = sRem + 20
    WFIX = int(round(W0 * 256))
    nl = [0]

    def advance(sw, odd_next=False):
        if pair and odd_next:
            e(f"s_add_u32 s{sIss}, s{sIss}, 1")
            e(f"s_add_u32 s{sOff}, s{sOff}, 3072")
            return
        e(f"s_add_u32 s{sIss}, s{sIss}, 1")
        e(f"s_and_b32 s{sTmp}, s{sIss}, {SPRA-1}")
        e(f"s_cselect_b32 s{sTmp}, s{sStep}, s{sJump}")
        e(f"s_add_u32 s{sBase}, s{sBase}, s{sTmp}")
        if sw:
            e(f"s_cmp_eq_u32 s{sIss}, {TOT}")
            e(f"s_cselect_b32 s{sKV}, s8, s{sKV}")
            e(f"s_cselect_b32 s{sKV+1}, s9, s{sKV+1}")
            e(f"s_cselect_b32 s{sBase}, s{sOff0}, s{sBase}")
        if rotm:
            assert (TOT // (2 if pair else 1) * rotm) % NWV == 0
            e(f"s_add_u32 s{sPos}, s{sPos}, {rotm}")
            e(f"s_and_b32 s{sPos}, s{sPos}, {NWV-1}")
        e(f"s_mul_i32 s{sTmp}, s{sPos}, {6144 if pair else 3072}")
        e(f"s_add_u32 s{sOff}, s{sBase}, s{sTmp}")

    def issue(ru, sw):
        for n in range(3):
            r = vRing + 12 * ru + 4 * n
            e(f"buffer_load_dwordx4 v[{r}:{r+3}], v{vOff}, s[{sKV}:{sKV+3}], s{sOff} offen offset:{n*128}{pol}")
        advance(sw, ru % 2 == 0)

    KMAX = min(RU - 1, int(math.ceil(wmax)))
    def gate():
        k = nl[0]; nl[0] += 1
        e(f"s_add_u32 s{sAcc}, s{sAcc}, s{sW}")
        e(f"s_lshr_b32 s{sK}, s{sAcc}, 8")
        e(f"s_and_b32 s{sAcc}, s{sAcc}, 255")
        for lv in range(KMAX, 0, -1):
            if lv < wmax:
                e(f"s_cmp_gt_u32 s{sK}, {lv}")
                e(f"s_cbranch_scc1 L_go{k}")
            e(f"s_waitcnt vmcnt({3*(lv-1) if lv > 1 else 2})")
        e.label(f"L_go{k}")

    def stamp(k):
        if diag:
            e(f"s_memrealtime s[{sT0+4}:{sT0+5}]")
            e(f"s_waitcnt lgkmcnt(0)")
            e(f"v_writelane_b32 v{vStamp}, s{sT0+4}, {k}")

    def mk_ws():
        e(f"s_mov_b32 s{sWs}, s20")
        e(f"s_mov_b32 s{sWs+1}, s21")
        e(f"s_mov_b32 s{sWs+2}, {WS_BYTES}")
        e(f"s_mov_b32 s{sWs+3}, 0x00020000")

    c("---- prologue: first two units go out as soon as the K pointer is there")
    FP = 'P' in x
    if FP: e(f"s_load_dwordx2 s[{sKV}:{sKV+1}], s[0:1], 8")
    H0 = 'H' in x
    NEAR = 'N' in x or H0
    if NEAR: e(f"s_load_dwordx2 s[22:23], s[0:1], 0")
    e(f"s_cmp_ge_u32 s2, {NWG}")
    e(f"s_cbranch_scc1 L_end")
    if not FP: e(f"s_load_dwordx16 s[4:19], s[0:1], 0")
    if diag: e(f"s_memrealtime s[{sT0}:{sT0+1}]")
    e(f"v_lshrrev_b32 v{vT0}, 6, v0")
    e(f"v_and_b32 v{vLane}, 63, v0")
    e(f"v_readfirstlane_b32 s{sWave}, v{vT0}")
    def lanes():
        e(f"v_lshrrev_b32 v{vT0}, 3, v{vLane}")
        e(f"v_and_b32 v{vS16}, 7, v{vLane}")
        e(f"v_mul_u32_u24 v{vOff}, {ROWB}, v{vT0}")
        e(f"v_lshlrev_b32 v{vS16}, 4, v{vS16}")
        e(f"v_add_u32 v{vOff}, v{vOff}, v{vS16}")
    if not H0: lanes()
    if tm == 1:
        e(f"s_and_b32 s{sTeam}, s2, 7")
        e(f"s_lshr_b32 s{sTmp}, s2, 7")
        e(f"s_lshl_b32 s{sTeam}, s{sTeam}, 1")
        e(f"s_add_u32 s{sTeam}, s{sTeam}, s{sTmp}")
        e(f"s_bfe_u32 s{sMem}, s2, {(4 << 16) | 3}")
    elif tm == 2:
        e(f"s_bfe_u32 s{sTeam}, s2, {(2 << 16) | 1}")
        e(f"s_lshr_b32 s{sTmp}, s2, 6")
        e(f"s_lshl_b32 s{sTeam}, s{sTeam}, 2")
        e(f"s_add_u32 s{sTeam}, s{sTeam}, s{sTmp}")
        e(f"s_bfe_u32 s{sMem}, s2, {(3 << 16) | 3}")
        e(f"s_and_b32 s{sTmp}, s2, 1")
        e(f"s_lshl_b32 s{sTmp}, s{sTmp}, 3")
        e(f"s_add_u32 s{sMem}, s{sMem}, s{sTmp}")
    elif tm == 4:
        e(f"s_bfe_u32 s{sTeam}, s2, {(1 << 16) | 2}")
        e(f"s_lshr_b32 s{sTmp}, s2, 5")
        e(f"s_lshl_b32 s{sTeam}, s{sTeam}, 3")
        e(f"s_add_u32 s{sTeam}, s{sTeam}, s{sTmp}")
        e(f"s_bfe_u32 s{sMem}, s2, {(2 << 16) | 3}")
        e(f"s_and_b32 s{sTmp}, s2, 3")
        e(f"s_lshl_b32 s{sTmp}, s{sTmp}, 2")
        e(f"s_add_u32 s{sMem}, s{sMem}, s{sTmp}")
    else:
        e(f"s_lshr_b32 s{sTeam}, s2, 4")
        e(f"s_and_b32 s{sMem}, s2, {T-1}")
    if H0:
        e(f"s_sub_u32 s{sWave}, s{sWave}, 1")
        e(f"s_cbranch_scc0 L_stream")
        e(f"v_lshlrev_b32 v{vLa16}, 4, v{vLane}")
        e(f"s_mul_i32 s{sTmp}, s{sTeam}, {ROWB}")
        e(f"v_add_u32 v{vT1}, s{sTmp}, v{vLa16}")
        e(f"s_mov_b64 exec, 0xffffff")
        e(f"s_waitcnt lgkmcnt(0)")
        for r in range(NR):
            if r: e(f"v_add_u32 v{vT1}, {NT*ROWB}, v{vT1}")
            e(f"global_load_dwordx4 v[{vAcc+4*r}:{vAcc+4*r+3}], v{vT1}, s[22:23]")
        e(f"s_branch L_helper")
        e.label("L_stream")
        lanes()
        e(f"v_subrev_u32 v0, 64, v0")
    if ek > 1:
        e(f"s_lshr_b32 s{sTmp}, s{sTeam}, {int(math.log2(ek))}")
        e(f"s_mul_i32 s{sBase}, s{sTmp}, {HEADB}")
        e(f"s_and_b32 s{sTmp}, s{sTeam}, {ek-1}")
        e(f"s_mul_i32 s{sTmp}, s{sTmp}, {FRONT}")
        e(f"s_add_u32 s{sBase}, s{sBase}, s{sTmp}")
    else:
        e(f"s_mul_i32 s{sBase}, s{sTeam}, {HEADB}")
    if pm == 2:
        e(f"s_and_b32 s{sPos}, s{sMem}, 7")
        e(f"s_lshl_b32 s{sPos}, s{sPos}, 1")
        e(f"s_lshr_b32 s{sTmp}, s{sMem}, 3")
        e(f"s_add_u32 s{sPos}, s{sPos}, s{sTmp}")
        e(f"s_lshl_b32 s{sPos}, s{sPos}, 2")
        e(f"s_add_u32 s{sPos}, s{sPos}, s{sWave}")
    elif pm:
        e(f"s_lshl_b32 s{sPos}, s{sWave}, 4")
        e(f"s_add_u32 s{sPos}, s{sPos}, s{sMem}")
    else:
        e(f"s_lshl_b32 s{sPos}, s{sMem}, 2")
        e(f"s_add_u32 s{sPos}, s{sPos}, s{sWave}")
    e(f"s_mul_i32 s{sTmp}, s{sPos}, {6144 if pair else 3072}")
    e(f"s_add_u32 s{sOff}, s{sBase}, s{sTmp}")
    e(f"s_mov_b32 s{sOff0}, s{sBase}")
    e(f"s_mov_b32 s{sKV+2}, {KVB}")
    e(f"s_mov_b32 s{sKV+3}, 0x00020000")
    if FP:
        assert I0 == 2 and not pair
        if not H0:
            e(f"s_cmp_eq_u32 s{sWave}, {W}")
            e(f"s_cbranch_scc1 L_helper")
        e(f"s_add_u32 s{sPos}, s{sPos}, {rotm}")
        e(f"s_and_b32 s{sPos}, s{sPos}, {NWV-1}")
        e(f"s_mul_i32 s{sTmp}, s{sPos}, 3072")
        e(f"s_add_u32 s{sBase}, s{sBase}, {STEP}")
        e(f"s_add_u32 s{sK}, s{sBase}, s{sTmp}")
        e(f"s_waitcnt lgkmcnt(0)")
        if diag: e(f"s_memrealtime s[{sT0+2}:{sT0+3}]")
        for u, so in ((0, sOff), (1, sK)):
            for n in range(3):
                r = vRing + 12 * u + 4 * n
                e(f"buffer_load_dwordx4 v[{r}:{r+3}], v{vOff}, s[{sKV}:{sKV+3}], s{so} offen offset:{n*128}{pol}")
        e(f"s_load_dwordx16 s[4:19], s[0:1], 0")
        e(f"s_mov_b32 s{sStep}, {STEP}")
        e(f"s_mov_b32 s{sJump}, {JUMP}")
        e(f"s_mov_b32 s{sIss}, 1")
        e(f"v_mov_b32 v{vZero}, 0")
        advance(False)
    else:
        e(f"s_mov_b32 s{sStep}, {STEP}")
        e(f"s_mov_b32 s{sJump}, {JUMP}")
        e(f"s_mov_b32 s{sIss}, 0")
        e(f"v_lshlrev_b32 v{vLa16}, 4, v{vLane}")
        e(f"v_mov_b32 v{vZero}, 0")
        e(f"s_cmp_eq_u32 s{sWave}, {W}")
        e(f"s_waitcnt lgkmcnt(0)")
        e(f"s_cbranch_scc1 L_helper")
        if diag: e(f"s_memrealtime s[{sT0+2}:{sT0+3}]")
        e(f"s_mov_b32 s{sKV}, s6")
        e(f"s_mov_b32 s{sKV+1}, s7")
        for u in range(I0):
            issue(u, False)
    e(f"s_load_dwordx2 s[20:21], s[0:1], 64")
    e(f"s_mov_b32 s{sW}, {WFIX}")
    e(f"s_lshl_b32 s{sAcc}, s{sWave}, 6")
    e(f"s_mov_b32 s{sPt}, 0")
    e(f"s_mul_i32 s{sTmp}, s{sWave}, {TOT*256}")
    e(f"s_add_u32 s{sTmp}, s{sTmp}, {LDS_SC}")
    e(f"v_lshlrev_b32 v{vSc}, 2, v{vLane}")
    e(f"v_add_u32 v{vSc}, s{sTmp}, v{vSc}")
    e(f"v_mov_b32 v{vM}, 0x{f2u(-1e30):08x}")
    if diag:
        e(f"v_mov_b32 v{vStamp}, 0")
        e(f"s_memrealtime s[{sT0+4}:{sT0+5}]")
        e(f"s_waitcnt lgkmcnt(0)")
        e(f"v_writelane_b32 v{vStamp}, s{sT0+2}, 61")
        e(f"v_writelane_b32 v{vStamp}, s{sT0+4}, 60")

    def setup_tail():
        e(f"s_mov_b32 s{sOut}, s16")
        e(f"s_mov_b32 s{sOut+1}, s17")
        e(f"s_mov_b32 s{sOut+2}, {NH*ROWB}")
        e(f"s_mov_b32 s{sOut+3}, 0x00020000")
        mk_ws()
        e(f"s_mul_i32 s{sHead}, s{sWave}, {NT}")
        e(f"s_add_u32 s{sHead}, s{sHead}, s{sTeam}")
        e(f"s_mul_i32 s{sRem}, s{sHead}, {T*1024}")
        for k in range(1, 4):
            e(f"s_add_u32 s{sRem+k}, s{sRem}, {k*4096}")
        e(f"s_lshl_b32 s{sTmp}, s{sMem}, 10")
        e(f"s_add_u32 s{sSlot}, s{sRem}, s{sTmp}")
        e(f"v_lshlrev_b32 v{vHdr}, 10, v{vLane}")
        e(f"s_lshl_b32 s{sArr}, s{sTeam}, 9")
        e(f"s_add_u32 s{sArr}, s{sArr}, {ARR_OFF}")
        e(f"s_lshl_b32 s{sTmp}, s{sWave}, 7")
        e(f"s_add_u32 s{sArr}, s{sArr}, s{sTmp}")
        e(f"s_mul_i32 s{sLim}, s{sHead}, {ROWB}")
        e(f"v_lshlrev_b32 v{vLa16}, 4, v{vLane}")
        e(f"v_lshrrev_b32 v{vOutOff}, 3, v{vLane}")
        e(f"v_lshl_add_u32 v{vOutOff}, v{vOutOff}, 1, v{vS16}")

    for u in range(I0, RU):
        if ('E' in x and u == I0) or ('F' in x and u == I0 + 1):
            e(f"s_barrier")
            if diag and 'B' in x: stamp(62)
        e(f"s_waitcnt vmcnt(3)")
        if diag and u == I0 and 'B' not in x: stamp(62)
        issue(u, False)

    def helper1():
        e.label("L_helper")
        if FP and not H0:
            if not NEAR: e(f"s_load_dwordx16 s[4:19], s[0:1], 0")
            e(f"v_lshlrev_b32 v{vLa16}, 4, v{vLane}")
            e(f"v_mov_b32 v{vZero}, 0")
            if not NEAR: e(f"s_waitcnt lgkmcnt(0)")
        if not NEAR: e.nop(3)
        hb = vAcc
        if H0:
            e(f"s_mov_b64 exec, -1")
            e(f"v_mov_b32 v{vZero}, 0")
            lanes()
        if not H0:
            e(f"s_mul_i32 s{sTmp}, s{sTeam}, {ROWB}")
            e(f"v_add_u32 v{vT1}, s{sTmp}, v{vLa16}")
            e(f"s_mov_b64 exec, 0xffffff")
            if NEAR: e(f"s_waitcnt lgkmcnt(0)")
        for r in range(NR if not H0 else 0):
            if r: e(f"v_add_u32 v{vT1}, {NT*ROWB}, v{vT1}")
            e(f"global_load_dwordx4 v[{hb+4*r}:{hb+4*r+3}], v{vT1}, s[{'22:23' if NEAR else '4:5'}]")
        e(f"s_mov_b64 exec, -1")
        if NEAR: e(f"s_load_dwordx16 s[4:19], s[0:1], 0")
        e(f"s_load_dwordx2 s[20:21], s[0:1], 64")
        e(f"s_memrealtime s[{sStart}:{sStart+1}]")
        e(f"v_lshlrev_b32 v{vT0}, 2, v{vLane}")
        e(f"ds_write_b32 v{vT0}, v{vZero}")
        e(f"s_mov_b32 s{sPar}, 0xaaaaaaaa")
        e(f"s_mov_b32 s{sPar+1}, 0xaaaaaaaa")
        e(f"s_mov_b64 exec, 0xffffff")
        e(f"s_waitcnt vmcnt(0)")
        for r in range(NR):
            e(f"ds_write_b128 v{vLa16}, v[{hb+4*r}:{hb+4*r+3}] offset:{LDS_Q + r*ROWB}")
        e(f"s_mov_b64 exec, -1")
        e(f"s_waitcnt lgkmcnt(0)")
        e(f"s_barrier")

    def qread(r):
        for n in range(3):
            e(f"ds_read_b128 v[{vQ+4*n}:{vQ+4*n+3}], v{vS16} offset:{LDS_Q + r*ROWB + n*128}")
    if 'E' not in x and 'F' not in x: e(f"s_barrier")
    qread(0)
    e(f"s_waitcnt lgkmcnt(0)")
    if diag and 'B' in x and 'E' not in x and 'F' not in x: stamp(62)
    if NEAR and not H0:
        e(f"s_branch L_kentry")
        helper1()
        e(f"s_branch L_helper2")
        e.label("L_kentry")

    def control():
        k = nl[0]; nl[0] += 1
        c("window = W0 + gain * (my lag behind the mean front)")
        e(f"s_memrealtime s[{sTm}:{sTm+1}]")
        e(f"ds_read_b96 v[{vLat}:{vLat+2}], v{vZero} offset:{LDS_REF}")
        e(f"s_add_u32 s{sPt}, s{sPt}, {RU}")
        e(f"s_and_b32 s{sTmp}, s{sCnt}, {PU-1}")
        e(f"s_xor_b32 s{sK}, s{sWave}, 1")
        e(f"s_or_b32 s{sTmp}, s{sTmp}, s{sK}")
        e(f"s_waitcnt lgkmcnt(0)")
        e(f"s_cbranch_scc1 L_nopt{k}")
        e(f"s_lshr_b32 s{sTmp}, s{sPt}, {int(math.log2(PU)) - 2}")
        e(f"s_or_b32 s{sK}, s{sTm}, 1")
        e(f"v_mov_b32 v{vT1}, s{sTmp}")
        e(f"v_mov_b32 v{vX}, s{sK}")
        e(f"ds_write_b32 v{vT1}, v{vX} offset:{LDS_OWN-4}")
        e.label(f"L_nopt{k}")
        e(f"v_readfirstlane_b32 s{sK}, v{vLat}")
        e(f"v_readfirstlane_b32 s{sTmp}, v{vLat+1}")
        e(f"v_readfirstlane_b32 s{sTown}, v{vLat+2}")
        e(f"s_cmp_eq_u32 s{sK}, 0")
        e(f"s_cbranch_scc1 L_noctl{k}")
        e(f"s_sub_i32 s{sK}, s{sPt}, s{sK}")
        e(f"s_sub_i32 s{sTmp}, s{sTm}, s{sTmp}")
        e(f"s_mul_i32 s{sTown}, s{sTown}, s{sK}")
        e(f"s_ashr_i32 s{sTown}, s{sTown}, 4")
        e(f"s_sub_i32 s{sTmp}, s{sTmp}, s{sTown}")
        e(f"s_max_i32 s{sTmp}, s{sTmp}, -1000")
        e(f"s_min_i32 s{sTmp}, s{sTmp}, 1000")
        e(f"s_mul_i32 s{sTmp}, s{sTmp}, {int(round(gain * 256 * 256 / 100))}")
        e(f"s_ashr_i32 s{sTmp}, s{sTmp}, 8")
        e(f"s_add_i32 s{sTmp}, s{sTmp}, {WFIX}")
        e(f"s_max_i32 s{sTmp}, s{sTmp}, {int(wmin*256)}")
        e(f"s_min_i32 s{sW}, s{sTmp}, {int(wmax*256)}")
        e.label(f"L_noctl{k}")

    def phase(name, total, unit, handlers, sw):
        e(f"s_mov_b32 s{sCnt}, 0")
        e.nop(3)
        e.raw(".p2align 6")
        e.label(f"L_{name}loop")
        for u in range(RU):
            e(f"s_waitcnt vmcnt({3*(RU-1)})")
            unit(u)
            gate()
            issue(u, sw)
        e(f"v_add_u32 v{vSc}, {RU*256}, v{vSc}")
        e(f"s_add_u32 s{sCnt}, s{sCnt}, {RU}")
        control()
        e(f"s_and_b32 s{sTmp}, s{sCnt}, {SPR-1}")
        e(f"s_cbranch_scc0 L_{name}round")
        if total % SPR:
            e(f"s_cmp_lg_u32 s{sCnt}, {total}")
            e(f"s_cbranch_scc1 L_{name}loop")
            e(f"s_branch L_{name}done")
        else:
            e(f"s_branch L_{name}loop")
        e.label(f"L_{name}round")
        hs = sorted(handlers)
        for bnd in hs[1:]:
            e(f"s_cmp_eq_u32 s{sCnt}, {bnd}")
            e(f"s_cbranch_scc1 L_{name}h{bnd}")
        if total % SPR == 0:
            e(f"s_cmp_eq_u32 s{sCnt}, {total}")
            e(f"s_cbranch_scc1 L_{name}done")
        for bnd in hs:
            e.label(f"L_{name}h{bnd}")
            e.nop(3)
            handlers[bnd]()
            e.nop(2)
            e(f"s_branch L_{name}loop")
        e.label(f"L_{name}done")
        e.nop(3)

    def kunit(u):
        r0 = vRing + 12 * u
        for j in range(4):
            for n in range(3):
                e(f"v_dot2_f32_bf16 v{vS+n}, v{r0+4*n+j}, v{vQ+4*n+j}, {'0' if j == 0 else 'v%d' % (vS+n)}")
        e(f"v_add_f32 v{vS}, v{vS}, v{vS+1}")
        e(f"v_add_f32 v{vS}, v{vS}, v{vS+2}")
        for dp in ("quad_perm:[1,0,3,2]", "quad_perm:[2,3,0,1]", "row_half_mirror"):
            e(f"v_add_f32_dpp v{vS}, v{vS}, v{vS} {dp} row_mask:0xf bank_mask:0xf")
        e(f"ds_write_b32 v{vSc}, v{vS} offset:{u*256}")
        e(f"v_max_f32 v{vM}, v{vM}, v{vS}")

    def kend(r):
        def f():
            stamp(r)
            if r + 1 < NR: qread(r + 1)
            e(f"v_max_f32_dpp v{vM}, v{vM}, v{vM} row_ror:8 row_mask:0xf bank_mask:0xf")
            e(f"v_mov_b32 v{vX}, v{vM}")
            e(f"v_permlane16_swap_b32 v{vM}, v{vX}")
            e(f"v_max_f32 v{vM}, v{vM}, v{vX}")
            e(f"v_mov_b32 v{vX}, v{vM}")
            e(f"v_permlane32_swap_b32 v{vM}, v{vX}")
            e(f"v_max_f32 v{vM}, v{vM}, v{vX}")
            e(f"v_readfirstlane_b32 s{sMx+r}, v{vM}")
            e(f"v_mov_b32 v{vM}, 0x{f2u(-1e30):08x}")
            e(f"s_waitcnt lgkmcnt(0)")
        return f

    c("---- K phase: wait unit, dot products, score -> LDS, gate, issue unit + 4")
    phase("k", TOT, kunit, {SPR * (r + 1): kend(r) for r in range(NR - 1)}, True)
    kend(NR - 1)()

    def vunit(u):
        r0 = vRing + 12 * (u % RU)
        e(f"v_sub_f32 v{vPh}, v{vT0}, v{vM}")
        e(f"ds_read_b32 v{vT0}, v{vSc} offset:{(u+1)*256}")
        e(f"v_mul_f32 v{vPh}, s{sC}, v{vPh}")
        e(f"v_exp_f32 v{vPh}, v{vPh}")
        e(f"v_cvt_pk_bf16_f32 v{vPh}, 0, v{vPh}")
        e(f"v_lshrrev_b32 v{vPl}, 16, v{vPh}")
        e(f"v_add_f32 v{vL}, v{vL}, v{vPh}")

    def vdots(u):
        r0 = vRing + 12 * (u % RU)
        for n in range(3):
            for j in range(4):
                e(f"v_dot2c_f32_bf16 v{vAcc+8*n+2*j}, v{r0+4*n+j}, v{vPl}")
                e(f"v_dot2c_f32_bf16 v{vAcc+8*n+2*j+1}, v{r0+4*n+j}, v{vPh}")
        e(f"s_waitcnt lgkmcnt(0)")

    def l_reduce():
        e(f"v_add_f32_dpp v{vL}, v{vL}, v{vL} row_ror:8 row_mask:0xf bank_mask:0xf")
        e(f"v_mov_b32 v{vX}, v{vL}")
        e(f"v_permlane16_swap_b32 v{vL}, v{vX}")
        e(f"v_add_f32 v{vL}, v{vL}, v{vX}")
        e(f"v_mov_b32 v{vX}, v{vL}")
        e(f"v_permlane32_swap_b32 v{vL}, v{vX}")
        e(f"v_add_f32 v{vL}, v{vL}, v{vX}")
        e(f"v_cndmask_b32 v{vO+3}, v{vL}, v{vM}, s[{sPar}:{sPar+1}]")

    def acc_reduce():
        A = lambda n, ee: vAcc + 8 * n + ee
        for n in range(3):
            for ee in range(4):
                e(f"v_permlane32_swap_b32 v{A(n,ee)}, v{A(n,ee+4)}")
        for n in range(3):
            for ee in range(4):
                e(f"v_add_f32 v{A(n,ee)}, v{A(n,ee)}, v{A(n,ee+4)}")
        for n in range(3):
            for ee in range(2):
                e(f"v_permlane16_swap_b32 v{A(n,ee)}, v{A(n,ee+2)}")
        for n in range(3):
            for ee in range(2):
                e(f"v_add_f32 v{A(n,ee)}, v{A(n,ee)}, v{A(n,ee+2)}")
        for n in range(3):
            e(f"v_add_f32_dpp v{vO+n}, v{A(n,0)}, v{A(n,0)} row_ror:8 row_mask:0xf bank_mask:0x3")
        for n in range(3):
            e(f"v_add_f32_dpp v{vO+n}, v{A(n,1)}, v{A(n,1)} row_ror:8 row_mask:0xf bank_mask:0xc")
        e(f"ds_write_b128 v{vRec}, v[{vO}:{vO+3}]")

    def vbegin(r):
        e(f"v_mov_b32 v{vL}, 0")
        for k in range(24):
            e(f"v_mov_b32 v{vAcc+k}, 0")
        e(f"v_mov_b32 v{vM}, s{sMx+r}")

    def vend(r):
        def f():
            stamp(NR + r)
            l_reduce()
            acc_reduce()
            e(f"v_add_u32 v{vRec}, {W*1024}, v{vRec}")
            vbegin(r + 1)
        return f

    c("---- V phase")
    e(f"v_subrev_u32 v{vSc}, {TOT*256}, v{vSc}")
    e(f"ds_read_b32 v{vT0}, v{vSc}")
    e(f"v_lshlrev_b32 v{vRec}, 4, v0")
    e(f"v_add_u32 v{vRec}, {LDS_REC}, v{vRec}")
    e(f"s_mov_b32 s{sPar}, 0xaaaaaaaa")
    e(f"s_mov_b32 s{sPar+1}, 0xaaaaaaaa")
    e(f"s_mov_b32 s{sC}, 0x{f2u(SCALE_LOG2E):08x}")
    vbegin(0)
    e(f"s_waitcnt lgkmcnt(0)")
    phase("v", TOT - RU - (RU if nopen else 0), lambda u: (vunit(u), vdots(u)), {SPR * (r + 1): vend(r) for r in range(NR - 1)}, False)
    if nopen:
        for u in range(RU):
            e(f"s_waitcnt vmcnt({3*(RU-1)})")
            vunit(u); vdots(u)
            if u < RU - nopen: gate()
            issue(u, False)
        e(f"v_add_u32 v{vSc}, {RU*256}, v{vSc}")
    c("---- drain the ring, then merge: wave -> workgroup -> team")
    stamp(2 * NR - 1)
    setup_tail()
    for u in range(RU):
        vunit(u)
        if u == RU - 1:
            l_reduce()
            e(f"s_lshl_b32 s{sTmp}, s{sWave}, 12")
            e(f"s_add_u32 s{sTmp}, s{sTmp}, {LDS_REC}")
            e(f"v_add_u32 v{vT1}, s{sTmp}, v{vLa16}")
            e(f"s_lshl_b32 s{sTmp}, s{sWave}, 10")
            e(f"s_add_u32 s{sTmp}, s{sTmp}, {LDS_TREE}")
            e(f"v_add_u32 v{vSc}, s{sTmp}, v{vLa16}")
        e(f"s_waitcnt vmcnt({3*(RU-1-u)})")
        vdots(u)
    if diag:
        e(f"s_memrealtime s[{sT0+2}:{sT0+3}]")
        e(f"s_waitcnt lgkmcnt(0)")
        for j in range(4):
            e(f"v_mov_b32 v{vRing+j}, s{sT0+j}")
        e(f"s_lshl_b32 s{sTmp}, s2, 9")
        e(f"s_add_u32 s{sTmp}, s{sTmp}, {DIAG_OFF}")
        e(f"s_lshl_b32 s{sCnt}, s{sWave}, 4")
        e(f"s_add_u32 s{sTmp}, s{sTmp}, s{sCnt}")
        e(f"s_mov_b64 exec, 1")
        e(f"buffer_store_dwordx4 v[{vRing}:{vRing+3}], v{vZero}, s[{sWs}:{sWs+3}], s{sTmp} offen")
        e(f"s_mov_b64 exec, -1")
        e(f"s_mul_i32 s{sTmp}, s2, {W*256}")
        e(f"s_add_u32 s{sTmp}, s{sTmp}, {DIAG_OFF+NWG*512}")
        e(f"v_lshlrev_b32 v{vT0}, 2, v0")
        e(f"buffer_store_dword v{vStamp}, v{vT0}, s[{sWs}:{sWs+3}], s{sTmp} offen")
        e.nop(4)
    acc_reduce()
    e(f"s_mov_b32 s{sStep}, 0xfffff800")
    e(f"s_waitcnt lgkmcnt(0)")
    e(f"s_barrier")
    if diag: e(f"s_memrealtime s[{sT0}:{sT0+1}]")

    vMW = vS
    def combine(recs, out):
        n = len(recs)
        F = vAcc
        e(f"v_max_f32 v{vMW}, v{recs[0]+3}, v{recs[1]+3}")
        i = 2
        while i < n:
            if i + 1 < n:
                e(f"v_max3_f32 v{vMW}, v{vMW}, v{recs[i]+3}, v{recs[i+1]+3}"); i += 2
            else:
                e(f"v_max_f32 v{vMW}, v{vMW}, v{recs[i]+3}"); i += 1
        for i in range(n):
            e(f"v_sub_f32 v{F+i}, v{recs[i]+3}, v{vMW}")
        for i in range(n):
            e(f"v_mul_f32 v{F+i}, s{sC}, v{F+i}")
        for i in range(n):
            e(f"v_exp_f32 v{F+i}, v{F+i}")
        for i in range(n):
            e(f"v_mov_b32_dpp v{F+i}, v{F+i} quad_perm:[1,1,3,3] row_mask:0xf bank_mask:0xf")
        for j in range(4):
            e(f"v_mul_f32 v{out+j}, v{F}, v{recs[0]+j}")
        for i in range(1, n):
            for j in range(4):
                e(f"v_fmac_f32 v{out+j}, v{F+i}, v{recs[i]+j}")

    for w in range(W):
        e(f"ds_read_b128 v[{vB+4*w}:{vB+4*w+3}], v{vT1} offset:{w*1024}")
    e(f"ds_read_b128 v[{vB+16}:{vB+19}], v{vSc}")
    e(f"s_waitcnt lgkmcnt(0)")
    combine([vB + 4 * w for w in range(W + 1)], vO)
    e(f"v_cndmask_b32 v{vO+3}, v{vO+3}, v{vMW}, s[{sPar}:{sPar+1}]")
    if pk == 1:
        e(f"v_mul_u32_u24 v{vLa16}, 12, v{vLane}")
        e(f"v_lshlrev_b32 v{vT0}, 2, v{vLane}")
        e(f"buffer_store_dwordx3 v[{vO}:{vO+2}], v{vLa16}, s[{sWs}:{sWs+3}], s{sSlot} offen sc1")
        e(f"s_mov_b64 exec, 3")
        e(f"buffer_store_dword v{vO+3}, v{vT0}, s[{sWs}:{sWs+3}], s{sSlot} offen offset:768 sc1")
        e(f"s_mov_b64 exec, -1")
    elif pk == 2:
        e(f"v_lshrrev_b32 v{vB}, 21, v{vO+2}")
        e(f"v_bfe_u32 v{vB+1}, v{vO+2}, 10, 11")
        e(f"v_lshlrev_b32 v{vLa16}, 3, v{vLane}")
        e(f"v_and_or_b32 v{vB}, v{vO}, s{sStep}, v{vB}")
        e(f"v_and_or_b32 v{vB+1}, v{vO+1}, s{sStep}, v{vB+1}")
        e(f"v_lshlrev_b32 v{vT0}, 2, v{vLane}")
        e(f"buffer_store_dwordx2 v[{vB}:{vB+1}], v{vLa16}, s[{sWs}:{sWs+3}], s{sSlot} offen sc1")
        e(f"s_mov_b64 exec, 3")
        e(f"buffer_store_dword v{vO+3}, v{vT0}, s[{sWs}:{sWs+3}], s{sSlot} offen offset:768 sc1")
        e(f"s_mov_b64 exec, -1")
    else:
        e(f"buffer_store_dwordx4 v[{vO}:{vO+3}], v{vLa16}, s[{sWs}:{sWs+3}], s{sSlot} offen sc1")
    e(f"v_mov_b32 v{vX}, 1")
    if ph:
        e(f"s_mov_b64 exec, 1")
        e(f"s_waitcnt vmcnt(0)")
        if diag: e(f"s_memrealtime s[{sT0+2}:{sT0+3}]")
        e(f"buffer_atomic_add v{vX}, v{vZero}, s[{sWs}:{sWs+3}], s{sArr} offen sc0")
        if 'L' in x or 'M' in x:
            e(f"s_mov_b64 exec, -1")
            e(f"buffer_load_dwordx4 v[{vB}:{vB+3}], v{vLa16}, s[{sWs}:{sWs+3}], s{sSlot} offen{' sc1' if 'L' in x else ''}")
            e(f"s_waitcnt vmcnt(1)")
        else:
            e(f"s_waitcnt vmcnt(0)")
        e(f"v_readfirstlane_b32 s{sTmp}, v{vX}")
    else:
        e(f"s_cmp_lg_u32 s{sWave}, 0")
        e(f"s_waitcnt vmcnt(0)")
        e(f"s_barrier")
        if diag: e(f"s_memrealtime s[{sT0+2}:{sT0+3}]")
        e(f"s_cbranch_scc1 L_wait")
        if vat:
            e(f"s_mov_b64 exec, 1")
            e(f"buffer_atomic_add v{vX}, v{vZero}, s[{sWs}:{sWs+3}], s{sArr} offen sc0")
            e(f"s_waitcnt vmcnt(0)")
            e(f"ds_write_b32 v{vZero}, v{vX} offset:{LDS_FLAG}")
            e(f"v_readfirstlane_b32 s{sTmp}, v{vX}")
            e(f"s_mov_b64 exec, -1")
        else:
            e(f"s_atomic_add s{sTmp}, s[20:21], s{sArr} glc")
            e(f"s_waitcnt lgkmcnt(0)")
            e(f"v_mov_b32 v{vX}, s{sTmp}")
            e(f"ds_write_b32 v{vZero}, v{vX} offset:{LDS_FLAG}")
        e(f"s_waitcnt lgkmcnt(0)")
        e(f"s_barrier")
        e(f"s_branch L_got")
        e.label("L_wait")
        e(f"s_barrier")
        e(f"ds_read_b32 v{vX}, v{vZero} offset:{LDS_FLAG}")
        e(f"s_waitcnt lgkmcnt(0)")
        e(f"v_readfirstlane_b32 s{sTmp}, v{vX}")
    e.label("L_got")
    if diag:
        e(f"s_memrealtime s[96:97]")
        e(f"s_mov_b64 s[98:99], 0")
        e(f"s_mov_b64 s[100:101], 0")
    e(f"s_cmp_lg_u32 s{sTmp}, {T-1}")
    e(f"s_cbranch_scc1 L_fin")
    sF = sRem + 4
    e(f"s_mov_b64 exec, 0xffff")
    e(f"buffer_load_dword v{vHm}, v{vHdr}, s[{sWs}:{sWs+3}], s{sRem} offen offset:28 sc1")
    e(f"buffer_load_dword v{vHl}, v{vHdr}, s[{sWs}:{sWs+3}], s{sRem} offen offset:12 sc1")
    e(f"s_mov_b64 exec, -1")
    for m in range(T):
        e(f"buffer_load_dwordx3 v[{vR+4*m}:{vR+4*m+2}], v{vLa16}, s[{sWs}:{sWs+3}], s{sRem+m//4} offen offset:{(m%4)*1024} sc1")
    e(f"s_waitcnt vmcnt({T+1})")
    e(f"v_max_f32_dpp v{vMW}, v{vHm}, v{vHm} row_ror:8 row_mask:0xf bank_mask:0xf")
    for rr in (4, 2, 1):
        e(f"v_max_f32_dpp v{vMW}, v{vMW}, v{vMW} row_ror:{rr} row_mask:0xf bank_mask:0xf")
    e(f"v_sub_f32 v{vHm}, v{vHm}, v{vMW}")
    e(f"v_mul_f32 v{vHm}, s{sC}, v{vHm}")
    e(f"v_exp_f32 v{vHm}, v{vHm}")
    e(f"s_waitcnt vmcnt({T})")
    e(f"v_mul_f32 v{vHl}, v{vHl}, v{vHm}")
    rs = [8, 4, 2, 1]
    for m in range(T):
        e(f"v_readlane_b32 s{sF+m}, v{vHm}, {m}")
        if m % 3 == 1 and rs:
            e(f"v_add_f32_dpp v{vHl}, v{vHl}, v{vHl} row_ror:{rs.pop(0)} row_mask:0xf bank_mask:0xf")
    e(f"v_rcp_f32 v{vHl}, v{vHl}")
    for m in range(T):
        if m % 4 == 0:
            e(f"s_waitcnt vmcnt({T - (m + 4)})")
            if diag and m == 12: e(f"s_memrealtime s[98:99]")
        for j in range(3):
            e(f"v_{'mul' if m == 0 else 'fmac'}_f32 v{vO+j}, s{sF+m}, v{vR+4*m+j}")
        if m == 0: e(f"v_readfirstlane_b32 s{sTmp}, v{vHl}")
    for j in range(3):
        e(f"v_mul_f32 v{vO+j}, s{sTmp}, v{vO+j}")
    for j in range(3):
        e(f"v_cvt_pk_bf16_f32 v{vO+j}, v{vO+j}, v{vO+j}")
    for j in range(3):
        e(f"buffer_store_short v{vO+j}, v{vOutOff}, s[{sOut}:{sOut+3}], s{sLim} offen offset:{j*128}{opol}")
    if diag: e(f"s_memrealtime s[100:101]")
    e.label("L_fin")
    if diag:
        e(f"s_cmp_lg_u32 s{sWave}, 1")
        e(f"s_cbranch_scc1 L_end")
        e(f"s_waitcnt vmcnt(0)")
        e(f"s_memrealtime s[{sT0+4}:{sT0+5}]")
        e(f"s_getreg_b32 s{sT0+6}, hwreg(HW_REG_XCC_ID)")
        e(f"s_getreg_b32 s{sT0+7}, hwreg(HW_REG_HW_ID)")
        e(f"s_waitcnt lgkmcnt(0)")
        for j in range(8):
            e(f"v_mov_b32 v{vR+j}, s{sT0+j}")
        e(f"s_lshl_b32 s{sTmp}, s2, 9")
        e(f"s_add_u32 s{sTmp}, s{sTmp}, {DIAG_OFF+256}")
        e(f"s_mov_b64 exec, 1")
        e(f"buffer_store_dwordx4 v[{vR}:{vR+3}], v{vZero}, s[{sWs}:{sWs+3}], s{sTmp} offen")
        e(f"buffer_store_dwordx4 v[{vR+4}:{vR+7}], v{vZero}, s[{sWs}:{sWs+3}], s{sTmp} offen offset:16")
        for j in range(3):
            e(f"v_mov_b32 v{vR+8+j}, s{96+2*j}")
        e(f"buffer_store_dwordx4 v[{vR+8}:{vR+11}], v{vZero}, s[{sWs}:{sWs+3}], s{sTmp} offen offset:32")
    e("s_endpgm")

    c("---- helper wave: q -> LDS, tree-token records, arrival counters, progress hints")
    if NEAR and not H0:
        e.label("L_helper2")
    else:
        helper1()
    mk_ws()
    e(f"v_mov_b32 v{vO}, 0")
    e(f"v_mov_b32 v{vO+1}, 0")
    e(f"v_mov_b32 v{vO+2}, 0")
    e(f"v_mov_b32 v{vM}, 0x{f2u(-1e30):08x}")
    e(f"v_cndmask_b32 v{vO+3}, v{vO}, v{vM}, s[{sPar}:{sPar+1}]")
    e(f"v_add_u32 v{vRec}, {LDS_TREE}, v{vLa16}")
    e(f"s_cmp_eq_u32 s{sMem}, 0")
    e(f"s_cbranch_scc1 L_tree")
    for r in range(NR):
        e(f"ds_write_b128 v{vRec}, v[{vO}:{vO+3}] offset:{r*1024}")
    e(f"s_branch L_treedone")
    e.label("L_tree")
    e(f"v_lshrrev_b32 v{vOutOff}, 3, v{vLane}")
    e(f"v_lshl_add_u32 v{vOutOff}, v{vOutOff}, 1, v{vS16}")
    e(f"s_lshl_b32 s{sArr}, s{sTeam}, 9")
    e(f"s_add_u32 s{sArr}, s{sArr}, {ARR_OFF}")
    e(f"v_lshlrev_b32 v{vT0}, 7, v{vLane}")
    e(f"v_mov_b32 v{vPh}, 0")
    e(f"s_mov_b64 exec, 15")
    e(f"buffer_atomic_swap v{vPh}, v{vT0}, s[{sWs}:{sWs+3}], s{sArr} offen sc0")
    e(f"s_mov_b64 exec, -1")
    e(f"s_mul_i32 s{sTmp}, s{sTeam}, {ROWB}")
    e(f"v_add_u32 v{vT1}, s{sTmp}, v{vOutOff}")
    e(f"v_add_u32 v{vAl}, s{sTmp}, v{vS16}")
    hb = 56
    vEnd = max(vEnd, hb + 16 * NR + 12)
    hq = hb + 16 * NR
    for r in range(NR):
        b = hb + 16 * r
        e(f"v_add_u32 v{vT0}, {r*NT*ROWB}, v{vAl}")
        for n in range(3):
            e(f"global_load_dwordx4 v[{b+4*n}:{b+4*n+3}], v{vT0}, s[10:11] offset:{n*128}")
        e(f"v_add_u32 v{vT0}, {r*NT*ROWB}, v{vT1}")
        for n in range(3):
            e(f"global_load_ushort v{b+12+n}, v{vT0}, s[12:13] offset:{n*128}")
        e(f"s_add_u32 s{sTmp}, s{sTeam}, {r*NT}")
        e(f"s_lshr_b32 s{sTmp}, s{sTmp}, 5")
        e(f"s_lshl_b32 s{sTmp}, s{sTmp}, 1")
        e(f"v_mov_b32 v{vT0}, s{sTmp}")
        e(f"global_load_ushort v{b+15}, v{vT0}, s[14:15]")
    e(f"v_mov_b32 v{vX}, 0x{f2u(MASKRAW):08x}")
    e(f"s_lshl_b32 s{sArr}, s{sTeam}, 4")
    e(f"v_mov_b32 v{vT0}, s{sArr}")
    e(f"v_mov_b32 v{vPl}, 1")
    e(f"s_waitcnt vmcnt(0)")
    e(f"s_mov_b64 exec, 1")
    e(f"global_atomic_add v{vT0}, v{vPl}, s[18:19]")
    e(f"s_mov_b64 exec, -1")
    for r in range(NR):
        b = hb + 16 * r
        for n in range(3):
            e(f"ds_read_b128 v[{hq+4*n}:{hq+4*n+3}], v{vS16} offset:{LDS_Q + r*ROWB + n*128}")
        e(f"s_waitcnt lgkmcnt(0)")
        for j in range(4):
            for n in range(3):
                e(f"v_dot2_f32_bf16 v{vS+n}, v{b+4*n+j}, v{hq+4*n+j}, {'0' if j == 0 else 'v%d' % (vS+n)}")
        for n in range(4):
            e(f"v_lshlrev_b32 v{b+12+n}, 16, v{b+12+n}")
        e(f"v_add_f32 v{vS}, v{vS}, v{vS+1}")
        e(f"v_add_f32 v{vS}, v{vS}, v{vS+2}")
        for dp in ("quad_perm:[1,0,3,2]", "quad_perm:[2,3,0,1]", "row_half_mirror"):
            e(f"v_add_f32_dpp v{vS}, v{vS}, v{vS} {dp} row_mask:0xf bank_mask:0xf")
        e(f"v_sub_f32 v{b+15}, 1.0, v{b+15}")
        e(f"v_fma_f32 v{vS}, v{b+15}, v{vX}, v{vS}")
        e(f"v_cndmask_b32 v{b+15}, 1.0, v{vS}, s[{sPar}:{sPar+1}]")
        e(f"ds_write_b128 v{vRec}, v[{b+12}:{b+15}] offset:{r*1024}")
    e.label("L_treedone")
    c("progress hints: publishers store the time wave 1 passed each 8-unit mark; they gather all 16 stamps and leave (units, mean time, slope) in their XCD's line")
    LASTP = (2 * TOT - RU) // PU - 1
    sPub, sLead, sRefl, sTry, sR1, sR2 = sCnt, sIss, sStep, sJump, sBase, sPos
    e(f"s_mov_b32 s{sPt}, 0")
    e(f"s_getreg_b32 s{sRefl}, hwreg(HW_REG_XCC_ID)")
    e(f"s_and_b32 s{sRefl}, s{sRefl}, 15")
    e(f"s_lshl_b32 s{sRefl}, s{sRefl}, 7")
    e(f"s_add_u32 s{sRefl}, s{sRefl}, {REFL}")
    e(f"v_lshlrev_b32 v{vHdr}, 7, v{vLane}")
    e(f"s_lshr_b32 s{sK}, s2, 4")
    e(f"s_and_b32 s{sTmp}, s2, 15")
    e(f"s_cmp_eq_u32 s{sK}, s{sTmp}")
    e(f"s_cselect_b32 s{sPub}, 1, 0")
    e(f"s_cmp_lt_u32 s{sK}, {nlead}")
    e(f"s_cselect_b32 s{sLead}, s{sPub}, 0")
    e(f"s_lshl_b32 s{sTmp}, s{sK}, 7")
    e(f"v_mov_b32 v{vHl}, s{sTmp}")
    e(f"s_mov_b32 s{sOff}, {HINT_OFF}")
    e(f"s_movk_i32 s{sSlot}, 16384")
    e(f"s_mov_b64 exec, 1")
    e(f"s_waitcnt lgkmcnt(0)")
    e.label("L_hp")
    e(f"s_lshl_b32 s{sTmp}, s{sPt}, 2")
    e(f"v_mov_b32 v{vT1}, s{sTmp}")
    e.label("L_hwait")
    e(f"s_sleep {poll}")
    e(f"s_cmp_lg_u32 s{sLead}, 0")
    e(f"s_cbranch_scc1 L_hnoref")
    e(f"s_cmp_lt_u32 s{sPt}, 2")
    e(f"s_cbranch_scc1 L_hnoref")
    e(f"buffer_load_dwordx3 v[{vLat}:{vLat+2}], v{vZero}, s[{sWs}:{sWs+3}], s{sRefl} offen sc1")
    e(f"s_waitcnt vmcnt(0)")
    e(f"v_readfirstlane_b32 s{sTmp}, v{vLat+1}")
    e(f"v_readfirstlane_b32 s{sK}, v{vLat}")
    e(f"s_sub_u32 s{sTmp}, s{sTmp}, s{sStart}")
    e(f"s_cmp_lt_u32 s{sTmp}, s{sSlot}")
    e(f"s_cbranch_scc0 L_hnoref")
    e(f"s_cmp_le_u32 s{sK}, {2*TOT}")
    e(f"s_cbranch_scc0 L_hnoref")
    e(f"ds_write_b96 v{vZero}, v[{vLat}:{vLat+2}] offset:{LDS_REF}")
    e.label("L_hnoref")
    e(f"ds_read_b32 v{vX}, v{vT1} offset:{LDS_OWN}")
    e(f"s_waitcnt lgkmcnt(0)")
    e(f"v_readfirstlane_b32 s{sTown}, v{vX}")
    e(f"s_cmp_eq_u32 s{sTown}, 0")
    e(f"s_cbranch_scc1 L_hwait")
    e(f"s_cmp_eq_u32 s{sPub}, 0")
    e(f"s_cbranch_scc1 L_hnext")
    e(f"buffer_store_dword v{vX}, v{vHl}, s[{sWs}:{sWs+3}], s{sOff} offen sc1")
    if 'C' in x:
        e(f"s_and_b32 s{sTmp}, s{sPt}, 7")
        e(f"s_cmp_lg_u32 s{sTmp}, 5")
        e(f"s_cbranch_scc1 L_nocode")
        e(f"s_getpc_b64 s[{sMx}:{sMx+1}]")
        e.label("L_pc")
        e(f"s_sub_u32 s{sMx}, s{sMx}, L_pc-L_kdone")
        e(f"s_subb_u32 s{sMx+1}, s{sMx+1}, 0")
        e(f"s_mov_b64 exec, 0x3ffffffffff") if False else None
        e(f"s_mov_b32 exec_lo, -1")
        e(f"s_mov_b32 exec_hi, 0x7ff")
        e(f"global_load_dword v{vAl}, v{vHdr}, s[{sMx}:{sMx+1}]")
        e(f"s_mov_b64 exec, 1")
        e.label("L_nocode")
    e(f"s_cmp_eq_u32 s{sLead}, 0")
    e(f"s_cbranch_scc1 L_hnext")
    e(f"s_mov_b64 exec, 0xffff")
    e(f"s_mov_b32 s{sTry}, {tries}")
    e.label("L_hgather")
    e(f"s_sleep {dly}")
    e(f"buffer_load_dword v{vHm}, v{vHdr}, s[{sWs}:{sWs+3}], s{sOff} offen sc1")
    e(f"s_sub_u32 s{sTry}, s{sTry}, 1")
    e(f"s_waitcnt vmcnt(0)")
    e(f"v_subrev_u32 v{vHm}, s{sStart}, v{vHm}")
    e(f"v_cmp_le_u32 vcc, s{sSlot}, v{vHm}")
    e(f"s_cbranch_vccz L_hall")
    e(f"s_cmp_lg_u32 s{sTry}, 0")
    e(f"s_cbranch_scc1 L_hgather")
    e(f"s_sub_u32 s{sK}, s{sTown}, s{sStart}")
    e(f"s_add_u32 s{sK}, s{sK}, 250")
    e(f"v_mov_b32 v{vT0}, s{sK}")
    e(f"v_cndmask_b32 v{vHm}, v{vHm}, v{vT0}, vcc")
    e.label("L_hall")
    e.nop(2)
    for dp in ("quad_perm:[1,0,3,2]", "quad_perm:[2,3,0,1]", "row_half_mirror", "row_mirror"):
        e(f"v_add_u32_dpp v{vHm}, v{vHm}, v{vHm} {dp} row_mask:0xf bank_mask:0xf")
    e(f"v_lshrrev_b32 v{vHm}, 4, v{vHm}")
    e(f"v_add_u32 v{vLat+1}, s{sStart}, v{vHm}")
    e(f"s_mov_b64 exec, 1")
    e(f"v_readfirstlane_b32 s{sTown}, v{vLat+1}")
    e(f"s_add_u32 s{sTmp}, s{sPt}, 1")
    e(f"s_mul_i32 s{sTmp}, s{sTmp}, {PU}")
    e(f"v_mov_b32 v{vLat}, s{sTmp}")
    e(f"s_sub_u32 s{sK}, s{sTown}, s{sR1}")
    e(f"s_lshl_b32 s{sK}, s{sK}, 1")
    e(f"s_sub_u32 s{sTmp}, s{sTown}, s{sR2}")
    e(f"s_cmp_eq_u32 s{sPt}, 1")
    e(f"s_cselect_b32 s{sTmp}, s{sK}, s{sTmp}")
    if 2 * PU > 16: e(f"s_lshr_b32 s{sTmp}, s{sTmp}, {int(math.log2(2 * PU)) - 4}")
    if 2 * PU < 16: e(f"s_lshl_b32 s{sTmp}, s{sTmp}, {4 - int(math.log2(2 * PU))}")
    e(f"v_mov_b32 v{vLat+2}, s{sTmp}")
    e(f"s_mov_b32 s{sR2}, s{sR1}")
    e(f"s_mov_b32 s{sR1}, s{sTown}")
    e(f"s_cmp_eq_u32 s{sPt}, 0")
    e(f"s_cbranch_scc1 L_hnext")
    e(f"buffer_store_dwordx3 v[{vLat}:{vLat+2}], v{vZero}, s[{sWs}:{sWs+3}], s{sRefl} offen")
    e(f"ds_write_b96 v{vZero}, v[{vLat}:{vLat+2}] offset:{LDS_REF}")
    e.label("L_hnext")
    e(f"s_add_u32 s{sOff}, s{sOff}, {16*128}")
    e(f"s_add_u32 s{sPt}, s{sPt}, 1")
    e(f"s_cmp_lt_u32 s{sPt}, {LASTP}")
    e(f"s_cbranch_scc1 L_hp")
    if touch:
        e(f"global_load_dword v{vAl}, v{vZero}, s[16:17]")
    c("the team's arrival counters must be zeroed before this workgroup may arrive")
    e(f"s_lshl_b32 s{sArr}, s{sTeam}, 4")
    e(f"s_load_dword s{sLim}, s[18:19], s{sArr}")
    e.label("L_rdy")
    e(f"s_waitcnt lgkmcnt(0)")
    e(f"s_cmp_lg_u32 s{sLim}, 0")
    e(f"s_cbranch_scc1 L_rdyok")
    e(f"s_sleep 16")
    e(f"s_atomic_add s{sLim}, s[18:19], s{sArr} glc")
    e(f"s_branch L_rdy")
    e.label("L_rdyok")
    if 'S' in x:
        e.label("L_hold")
        e(f"s_memrealtime s[{sTm}:{sTm+1}]")
        e(f"s_waitcnt lgkmcnt(0)")
        e(f"s_sub_u32 s{sTmp}, s{sTm}, s{sStart}")
        e(f"s_cmp_lt_u32 s{sTmp}, 7500")
        e(f"s_cbranch_scc1 L_hold")
    e(f"s_barrier")
    e.label("L_end")
    e("s_endpgm")

    acc_off = (vEnd + 3) // 4 * 4
    assert vEnd <= 256 and sEnd <= 96
    out = HEADER
    out += f"; params: v11 v4 HW=1 RU={RU} W0={W0} I0={I0} rotm={rotm} gain={gain} PU={PU} dly={dly} wmin={wmin} wmax={wmax} nlead={nlead} {'diag' if diag else ''} off={DIAG_OFF}\n"
    if 'D' in x: out += DOC
    out += f"; @launch grid=({NWG},1,1) block=({(W+1)*64},1,1) lds={LDS_BYTES}\n"
    out += f""".amdgcn_target "amdgcn-amd-amdhsa--gfx950"
.text
.globl {NAME}_kernel
.p2align 8
.type {NAME}_kernel,@function
{NAME}_kernel:
"""
    out += "\n".join(e.lines) + "\n"
    out += f""".section .rodata,"a"
.p2align 6
.amdhsa_kernel {NAME}_kernel
  .amdhsa_next_free_vgpr {vEnd}
  .amdhsa_next_free_sgpr {102 if diag else sEnd}
  .amdhsa_accum_offset {acc_off}
  .amdhsa_group_segment_fixed_size 0
  .amdhsa_kernarg_size 72
  .amdhsa_user_sgpr_count 2
  .amdhsa_user_sgpr_kernarg_segment_ptr 1
  .amdhsa_system_sgpr_workgroup_id_x 1
.end_amdhsa_kernel
"""
    return out


if __name__ == "__main__":
    ap = argparse.ArgumentParser()
    ap.add_argument("-o", default="cdna_kernels/" + NAME + ".s")
    for k, t, d in (("ru", int, 4), ("w0", float, 2.0), ("i0", int, 2), ("rotm", int, 4), ("gain", float, 0.8), ("pu", int, 8),
                    ("dly", int, 20), ("wmin", float, 1.0), ("wmax", float, 3.0), ("tries", int, 3), ("nlead", int, 16),
                    ("touch", int, 1), ("poll", int, 6), ("vat", int, 0), ("x", str, ""), ("opol", str, "sc1"), ("nopen", int, 0), ("pk", int, 0), ("ph", int, 0), ("pm", int, 0), ("pair", int, 0), ("tm", int, 0), ("ek", int, 1)):
        ap.add_argument("--" + k, type=t, default=d)
    ap.add_argument("--diag", action="store_true")
    a = ap.parse_args()
    open(a.o, "w").write(gen(a.ru, a.w0, a.i0, "nt", a.diag, a.rotm, (" " + a.opol) if a.opol else "", a.gain, a.pu, a.dly, a.wmin, a.wmax,
                             a.tries, a.nlead, a.touch, a.poll, a.vat, a.x, a.nopen, a.pk, a.ph, a.pm, a.pair, a.tm, a.ek))
```

```python
import math, argparse
from gen import Em, f2u, NAME, HEADER, NH, C, DH, ROWB, HEADB, KVB, SCALE_LOG2E, MASKRAW

DOC = """; Design (all shapes hard-coded; 402 MB of K/V are read exactly once, the kernel is HBM bound):
;    Split softmax: wave -> workgroup (LDS) -> team (d_ws records {acc, l, max}), rescaled to the true
"""


def gen(RU=4, W0=2.0, I0=2, pol="nt", diag=False, rotm=4, opol=" sc1", gain=0.8, PU=8, dly=20, wmin=1.0, wmax=3.0,
        tries=3, nlead=16, touch=1, poll=6, vat=0, x="", nopen=0, pk=0, ph=0, pm=0, pair=0, tm=0, ek=1):
    T, W, NWG = 16, 4, 256
    NT = NWG // T
    NR = T // 4
    NWV = T * W
    SPR = 1024 // NWV
    TOT = NR * SPR
    STEP = NWV * 3072 * (2 if pair else 1)
    FRONT = STEP
    STEP *= ek
    JUMP = STEP + (NT // ek - 1) * HEADB
    SPRA = SPR // ek
    assert SPR % RU == 0 and PU % RU == 0
    pol = (" " + pol) if pol else ""
    NP = 2 * TOT // PU
    HINT_OFF = NH * T * 1024
    REFL = HINT_OFF + NP * 16 * 128
    ARR_OFF = REFL + 16 * 128
    DIAG_OFF = ARR_OFF + NT * 512
    WS_BYTES = DIAG_OFF + (NWG * 512 + NWG * W * 256 if diag else 0)
    LDS_FLAG = 0
    LDS_REF = 16
    LDS_OWN = 64
    LDS_Q = 512
    LDS_SC = 2048
    assert LDS_OWN + 4 * NP <= 256 and LDS_Q + NR * ROWB <= LDS_SC
    LDS_REC = LDS_SC + W * TOT * 256
    LDS_TREE = LDS_REC + NR * W * 1024
    LDS_BYTES = LDS_TREE + NR * 1024
    assert LDS_BYTES > 81920
    e = Em()
    c = lambda t: e.raw("    ; " + t)
    vOff, vT0, vT1, vM, vL, vSc, vAl, vLane, vStamp, vPh, vPl = 1, 2, 3, 4, 5, 6, 7, 8, 9, 10, 11
    vS = 12
    vX = 15
    vSc0, vLa16, vOutOff, vRec = 16, 17, 18, 19
    vS16, vHdr, vHm, vHl = 20, 21, 22, 23
    vO = 24
    vAcc = 28
    vLat, vZero = 52, 55
    vQ = 56
    vRing = 68
    vR = 56
    vB = vR + 64
    vEnd = max(vRing + 12 * RU, vB + 20)
    sKV = 24
    sAcc, sK, sPt, sTown = 28, 29, 30, 31
    sTm = 32
    sStart = 34
    sTeam, sMem, sWave, sOff, sIss, sCnt, sC, sTmp = 36, 37, 38, 39, 40, 41, 42, 43
    sPar = 44
    sPos, sBase = 46, 47
    sWs, sOut = 48, 52
    sT0 = 56
    sHead, sSlot, sLim, sArr, sStep, sJump, sOff0, sW = 64, 65, 66, 67, 68, 69, 70, 71
    sMx = 72
    sRem = 76
    sEnd = sRem + 20
    WFIX = int(round(W0 * 256))
    nl = [0]

    def advance(sw, odd_next=False):
        if pair and odd_next:
            e(f"s_add_u32 s{sIss}, s{sIss}, 1")
            e(f"s_add_u32 s{sOff}, s{sOff}, 3072")
            return
        e(f"s_add_u32 s{sIss}, s{sIss}, 1")
        e(f"s_and_b32 s{sTmp}, s{sIss}, {SPRA-1}")
        e(f"s_cselect_b32 s{sTmp}, s{sStep}, s{sJump}")
        e(f"s_add_u32 s{sBase}, s{sBase}, s{sTmp}")
        if sw:
            e(f"s_cmp_eq_u32 s{sIss}, {TOT}")
            e(f"s_cselect_b32 s{sKV}, s8, s{sKV}")
            e(f"s_cselect_b32 s{sKV+1}, s9, s{sKV+1}")
            e(f"s_cselect_b32 s{sBase}, s{sOff0}, s{sBase}")
        if rotm:
            assert (TOT // (2 if pair else 1) * rotm) % NWV == 0
            e(f"s_add_u32 s{sPos}, s{sPos}, {rotm}")
            e(f"s_and_b32 s{sPos}, s{sPos}, {NWV-1}")
        e(f"s_mul_i32 s{sTmp}, s{sPos}, {6144 if pair else 3072}")
        e(f"s_add_u32 s{sOff}, s{sBase}, s{sTmp}")

    def issue(ru, sw):
        for n in range(3):
            r = vRing + 12 * ru + 4 * n
            e(f"buffer_load_dwordx4 v[{r}:{r+3}], v{vOff}, s[{sKV}:{sKV+3}], s{sOff} offen offset:{n*128}{pol}")
        advance(sw, ru % 2 == 0)

    KMAX = min(RU - 1, int(math.ceil(wmax)))
    def gate():
        k = nl[0]; nl[0] += 1
        e(f"s_add_u32 s{sAcc}, s{sAcc}, s{sW}")
        e(f"s_lshr_b32 s{sK}, s{sAcc}, 8")
        e(f"s_and_b32 s{sAcc}, s{sAcc}, 255")
        for lv in range(KMAX, 0, -1):
            if lv < wmax:
                e(f"s_cmp_gt_u32 s{sK}, {lv}")
                e(f"s_cbranch_scc1 L_go{k}")
            e(f"s_waitcnt vmcnt({3*(lv-1) if lv > 1 else 2})")
        e.label(f"L_go{k}")

    def stamp(k):
        if diag:
            e(f"s_memrealtime s[{sT0+4}:{sT0+5}]")
            e(f"s_waitcnt lgkmcnt(0)")
            e(f"v_writelane_b32 v{vStamp}, s{sT0+4}, {k}")

    def mk_ws():
        e(f"s_mov_b32 s{sWs}, s20")
        e(f"s_mov_b32 s{sWs+1}, s21")
        e(f"s_mov_b32 s{sWs+2}, {WS_BYTES}")
        e(f"s_mov_b32 s{sWs+3}, 0x00020000")

    c("---- prologue: first two units go out as soon as the K pointer is there")
    FP = 'P' in x
    if FP: e(f"s_load_dwordx2 s[{sKV}:{sKV+1}], s[0:1], 8")
    H0 = 'H' in x
    NEAR = 'N' in x or H0
    if NEAR: e(f"s_load_dwordx2 s[22:23], s[0:1], 0")
    e(f"s_cmp_ge_u32 s2, {NWG}")
    e(f"s_cbranch_scc1 L_end")
    if not FP: e(f"s_load_dwordx16 s[4:19], s[0:1], 0")
    if diag: e(f"s_memrealtime s[{sT0}:{sT0+1}]")
    e(f"v_lshrrev_b32 v{vT0}, 6, v0")
    e(f"v_and_b32 v{vLane}, 63, v0")
    e(f"v_readfirstlane_b32 s{sWave}, v{vT0}")
    def lanes():
        e(f"v_lshrrev_b32 v{vT0}, 3, v{vLane}")
        e(f"v_and_b32 v{vS16}, 7, v{vLane}")
        e(f"v_mul_u32_u24 v{vOff}, {ROWB}, v{vT0}")
        e(f"v_lshlrev_b32 v{vS16}, 4, v{vS16}")
        e(f"v_add_u32 v{vOff}, v{vOff}, v{vS16}")
    if not H0: lanes()
    if tm == 1:
        e(f"s_and_b32 s{sTeam}, s2, 7")
        e(f"s_lshr_b32 s{sTmp}, s2, 7")
        e(f"s_lshl_b32 s{sTeam}, s{sTeam}, 1")
        e(f"s_add_u32 s{sTeam}, s{sTeam}, s{sTmp}")
        e(f"s_bfe_u32 s{sMem}, s2, {(4 << 16) | 3}")
    elif tm == 2:
        e(f"s_bfe_u32 s{sTeam}, s2, {(2 << 16) | 1}")
        e(f"s_lshr_b32 s{sTmp}, s2, 6")
        e(f"s_lshl_b32 s{sTeam}, s{sTeam}, 2")
        e(f"s_add_u32 s{sTeam}, s{sTeam}, s{sTmp}")
        e(f"s_bfe_u32 s{sMem}, s2, {(3 << 16) | 3}")
        e(f"s_and_b32 s{sTmp}, s2, 1")
        e(f"s_lshl_b32 s{sTmp}, s{sTmp}, 3")
        e(f"s_add_u32 s{sMem}, s{sMem}, s{sTmp}")
    elif tm == 4:
        e(f"s_bfe_u32 s{sTeam}, s2, {(1 << 16) | 2}")
        e(f"s_lshr_b32 s{sTmp}, s2, 5")
        e(f"s_lshl_b32 s{sTeam}, s{sTeam}, 3")
        e(f"s_add_u32 s{sTeam}, s{sTeam}, s{sTmp}")
        e(f"s_bfe_u32 s{sMem}, s2, {(2 << 16) | 3}")
        e(f"s_and_b32 s{sTmp}, s2, 3")
        e(f"s_lshl_b32 s{sTmp}, s{sTmp}, 2")
        e(f"s_add_u32 s{sMem}, s{sMem}, s{sTmp}")
    else:
        e(f"s_lshr_b32 s{sTeam}, s2, 4")
        e(f"s_and_b32 s{sMem}, s2, {T-1}")
    if H0:
        e(f"s_sub_u32 s{sWave}, s{sWave}, 1")
        e(f"s_cbranch_scc0 L_stream")
        e(f"v_lshlrev_b32 v{vLa16}, 4, v{vLane}")
        e(f"s_mul_i32 s{sTmp}, s{sTeam}, {ROWB}")
        e(f"v_add_u32 v{vT1}, s{sTmp}, v{vLa16}")
        e(f"s_mov_b64 exec, 0xffffff")
        e(f"s_waitcnt lgkmcnt(0)")
        for r in range(NR):
            if r: e(f"v_add_u32 v{vT1}, {NT*ROWB}, v{vT1}")
            e(f"global_load_dwordx4 v[{vAcc+4*r}:{vAcc+4*r+3}], v{vT1}, s[22:23]")
        e(f"s_branch L_helper")
        e.label("L_stream")
        lanes()
        e(f"v_subrev_u32 v0, 64, v0")
    if ek > 1:
        e(f"s_lshr_b32 s{sTmp}, s{sTeam}, {int(math.log2(ek))}")
        e(f"s_mul_i32 s{sBase}, s{sTmp}, {HEADB}")
        e(f"s_and_b32 s{sTmp}, s{sTeam}, {ek-1}")
        e(f"s_mul_i32 s{sTmp}, s{sTmp}, {FRONT}")
        e(f"s_add_u32 s{sBase}, s{sBase}, s{sTmp}")
    else:
        e(f"s_mul_i32 s{sBase}, s{sTeam}, {HEADB}")
    if pm == 2:
        e(f"s_and_b32 s{sPos}, s{sMem}, 7")
        e(f"s_lshl_b32 s{sPos}, s{sPos}, 1")
        e(f"s_lshr_b32 s{sTmp}, s{sMem}, 3")
        e(f"s_add_u32 s{sPos}, s{sPos}, s{sTmp}")
        e(f"s_lshl_b32 s{sPos}, s{sPos}, 2")
        e(f"s_add_u32 s{sPos}, s{sPos}, s{sWave}")
    elif pm:
        e(f"s_lshl_b32 s{sPos}, s{sWave}, 4")
        e(f"s_add_u32 s{sPos}, s{sPos}, s{sMem}")
    else:
        e(f"s_lshl_b32 s{sPos}, s{sMem}, 2")
        e(f"s_add_u32 s{sPos}, s{sPos}, s{sWave}")
    e(f"s_mul_i32 s{sTmp}, s{sPos}, {6144 if pair else 3072}")
    e(f"s_add_u32 s{sOff}, s{sBase}, s{sTmp}")
    e(f"s_mov_b32 s{sOff0}, s{sBase}")
    e(f"s_mov_b32 s{sKV+2}, {KVB}")
    e(f"s_mov_b32 s{sKV+3}, 0x00020000")
    if FP:
        assert I0 == 2 and not pair
        if not H0:
            e(f"s_cmp_eq_u32 s{sWave}, {W}")
            e(f"s_cbranch_scc1 L_helper")
        e(f"s_add_u32 s{sPos}, s{sPos}, {rotm}")
        e(f"s_and_b32 s{sPos}, s{sPos}, {NWV-1}")
        e(f"s_mul_i32 s{sTmp}, s{sPos}, 3072")
        e(f"s_add_u32 s{sBase}, s{sBase}, {STEP}")
        e(f"s_add_u32 s{sK}, s{sBase}, s{sTmp}")
        e(f"s_waitcnt lgkmcnt(0)")
        if diag: e(f"s_memrealtime s[{sT0+2}:{sT0+3}]")
        for u, so in ((0, sOff), (1, sK)):
            for n in range(3):
                r = vRing + 12 * u + 4 * n
                e(f"buffer_load_dwordx4 v[{r}:{r+3}], v{vOff}, s[{sKV}:{sKV+3}], s{so} offen offset:{n*128}{pol}")
        e(f"s_load_dwordx16 s[4:19], s[0:1], 0")
        e(f"s_mov_b32 s{sStep}, {STEP}")
        e(f"s_mov_b32 s{sJump}, {JUMP}")
        e(f"s_mov_b32 s{sIss}, 1")
        e(f"v_mov_b32 v{vZero}, 0")
        advance(False)
    else:
        e(f"s_mov_b32 s{sStep}, {STEP}")
        e(f"s_mov_b32 s{sJump}, {JUMP}")
        e(f"s_mov_b32 s{sIss}, 0")
        e(f"v_lshlrev_b32 v{vLa16}, 4, v{vLane}")
        e(f"v_mov_b32 v{vZero}, 0")
        e(f"s_cmp_eq_u32 s{sWave}, {W}")
        e(f"s_waitcnt lgkmcnt(0)")
        e(f"s_cbranch_scc1 L_helper")
        if diag: e(f"s_memrealtime s[{sT0+2}:{sT0+3}]")
        e(f"s_mov_b32 s{sKV}, s6")
        e(f"s_mov_b32 s{sKV+1}, s7")
        for u in range(I0):
            issue(u, False)
    e(f"s_load_dwordx2 s[20:21], s[0:1], 64")
    e(f"s_mov_b32 s{sW}, {WFIX}")
    e(f"s_lshl_b32 s{sAcc}, s{sWave}, 6")
    e(f"s_mov_b32 s{sPt}, 0")
    e(f"s_mul_i32 s{sTmp}, s{sWave}, {TOT*256}")
    e(f"s_add_u32 s{sTmp}, s{sTmp}, {LDS_SC}")
    e(f"v_lshlrev_b32 v{vSc}, 2, v{vLane}")
    e(f"v_add_u32 v{vSc}, s{sTmp}, v{vSc}")
    e(f"v_mov_b32 v{vM}, 0x{f2u(-1e30):08x}")
    if diag:
        e(f"v_mov_b32 v{vStamp}, 0")
        e(f"s_memrealtime s[{sT0+4}:{sT0+5}]")
        e(f"s_waitcnt lgkmcnt(0)")
        e(f"v_writelane_b32 v{vStamp}, s{sT0+2}, 61")
        e(f"v_writelane_b32 v{vStamp}, s{sT0+4}, 60")

    def setup_tail():
        e(f"s_mov_b32 s{sOut}, s16")
        e(f"s_mov_b32 s{sOut+1}, s17")
        e(f"s_mov_b32 s{sOut+2}, {NH*ROWB}")
        e(f"s_mov_b32 s{sOut+3}, 0x00020000")
        mk_ws()
        e(f"s_mul_i32 s{sHead}, s{sWave}, {NT}")
        e(f"s_add_u32 s{sHead}, s{sHead}, s{sTeam}")
        e(f"s_mul_i32 s{sRem}, s{sHead}, {T*1024}")
        for k in range(1, 4):
            e(f"s_add_u32 s{sRem+k}, s{sRem}, {k*4096}")
        e(f"s_lshl_b32 s{sTmp}, s{sMem}, 10")
        e(f"s_add_u32 s{sSlot}, s{sRem}, s{sTmp}")
        e(f"v_lshlrev_b32 v{vHdr}, 10, v{vLane}")
        e(f"s_lshl_b32 s{sArr}, s{sTeam}, 9")
        e(f"s_add_u32 s{sArr}, s{sArr}, {ARR_OFF}")
        e(f"s_lshl_b32 s{sTmp}, s{sWave}, 7")
        e(f"s_add_u32 s{sArr}, s{sArr}, s{sTmp}")
        e(f"s_mul_i32 s{sLim}, s{sHead}, {ROWB}")
        e(f"v_lshlrev_b32 v{vLa16}, 4, v{vLane}")
        e(f"v_lshrrev_b32 v{vOutOff}, 3, v{vLane}")
        e(f"v_lshl_add_u32 v{vOutOff}, v{vOutOff}, 1, v{vS16}")

    for u in range(I0, RU):
        if ('E' in x and u == I0) or ('F' in x and u == I0 + 1):
            e(f"s_barrier")
            if diag and 'B' in x: stamp(62)
        e(f"s_waitcnt vmcnt(3)")
        if diag and u == I0 and 'B' not in x: stamp(62)
        issue(u, False)

    def helper1():
        e.label("L_helper")
        if FP and not H0:
            if not NEAR: e(f"s_load_dwordx16 s[4:19], s[0:1], 0")
            e(f"v_lshlrev_b32 v{vLa16}, 4, v{vLane}")
            e(f"v_mov_b32 v{vZero}, 0")
            if not NEAR: e(f"s_waitcnt lgkmcnt(0)")
        if not NEAR: e.nop(3)
        hb = vAcc
        if H0:
            e(f"s_mov_b64 exec, -1")
            e(f"v_mov_b32 v{vZero}, 0")
            lanes()
        if not H0:
            e(f"s_mul_i32 s{sTmp}, s{sTeam}, {ROWB}")
            e(f"v_add_u32 v{vT1}, s{sTmp}, v{vLa16}")
            e(f"s_mov_b64 exec, 0xffffff")
            if NEAR: e(f"s_waitcnt lgkmcnt(0)")
        for r in range(NR if not H0 else 0):
            if r: e(f"v_add_u32 v{vT1}, {NT*ROWB}, v{vT1}")
            e(f"global_load_dwordx4 v[{hb+4*r}:{hb+4*r+3}], v{vT1}, s[{'22:23' if NEAR else '4:5'}]")
        e(f"s_mov_b64 exec, -1")
        if NEAR: e(f"s_load_dwordx16 s[4:19], s[0:1], 0")
        e(f"s_load_dwordx2 s[20:21], s[0:1], 64")
        e(f"s_memrealtime s[{sStart}:{sStart+1}]")
        e(f"v_lshlrev_b32 v{vT0}, 2, v{vLane}")
        e(f"ds_write_b32 v{vT0}, v{vZero}")
        e(f"s_mov_b32 s{sPar}, 0xaaaaaaaa")
        e(f"s_mov_b32 s{sPar+1}, 0xaaaaaaaa")
        e(f"s_mov_b64 exec, 0xffffff")
        e(f"s_waitcnt vmcnt(0)")
        for r in range(NR):
            e(f"ds_write_b128 v{vLa16}, v[{hb+4*r}:{hb+4*r+3}] offset:{LDS_Q + r*ROWB}")
        e(f"s_mov_b64 exec, -1")
        e(f"s_waitcnt lgkmcnt(0)")
        e(f"s_barrier")

    def qread(r):
        for n in range(3):
            e(f"ds_read_b128 v[{vQ+4*n}:{vQ+4*n+3}], v{vS16} offset:{LDS_Q + r*ROWB + n*128}")
    if 'E' not in x and 'F' not in x: e(f"s_barrier")
    qread(0)
    e(f"s_waitcnt lgkmcnt(0)")
    if diag and 'B' in x and 'E' not in x and 'F' not in x: stamp(62)
    if NEAR and not H0:
        e(f"s_branch L_kentry")
        helper1()
        e(f"s_branch L_helper2")
        e.label("L_kentry")

    def control():
        k = nl[0]; nl[0] += 1
        c("window = W0 + gain * (my lag behind the mean front)")
        e(f"s_memrealtime s[{sTm}:{sTm+1}]")
        e(f"ds_read_b96 v[{vLat}:{vLat+2}], v{vZero} offset:{LDS_REF}")
        e(f"s_add_u32 s{sPt}, s{sPt}, {RU}")
        e(f"s_and_b32 s{sTmp}, s{sCnt}, {PU-1}")
        e(f"s_xor_b32 s{sK}, s{sWave}, 1")
        e(f"s_or_b32 s{sTmp}, s{sTmp}, s{sK}")
        e(f"s_waitcnt lgkmcnt(0)")
        e(f"s_cbranch_scc1 L_nopt{k}")
        e(f"s_lshr_b32 s{sTmp}, s{sPt}, {int(math.log2(PU)) - 2}")
        e(f"s_or_b32 s{sK}, s{sTm}, 1")
        e(f"v_mov_b32 v{vT1}, s{sTmp}")
        e(f"v_mov_b32 v{vX}, s{sK}")
        e(f"ds_write_b32 v{vT1}, v{vX} offset:{LDS_OWN-4}")
        e.label(f"L_nopt{k}")
        e(f"v_readfirstlane_b32 s{sK}, v{vLat}")
        e(f"v_readfirstlane_b32 s{sTmp}, v{vLat+1}")
        e(f"v_readfirstlane_b32 s{sTown}, v{vLat+2}")
        e(f"s_cmp_eq_u32 s{sK}, 0")
        e(f"s_cbranch_scc1 L_noctl{k}")
        e(f"s_sub_i32 s{sK}, s{sPt}, s{sK}")
        e(f"s_sub_i32 s{sTmp}, s{sTm}, s{sTmp}")
        e(f"s_mul_i32 s{sTown}, s{sTown}, s{sK}")
        e(f"s_ashr_i32 s{sTown}, s{sTown}, 4")
        e(f"s_sub_i32 s{sTmp}, s{sTmp}, s{sTown}")
        e(f"s_max_i32 s{sTmp}, s{sTmp}, -1000")
        e(f"s_min_i32 s{sTmp}, s{sTmp}, 1000")
        e(f"s_mul_i32 s{sTmp}, s{sTmp}, {int(round(gain * 256 * 256 / 100))}")
        e(f"s_ashr_i32 s{sTmp}, s{sTmp}, 8")
        e(f"s_add_i32 s{sTmp}, s{sTmp}, {WFIX}")
        e(f"s_max_i32 s{sTmp}, s{sTmp}, {int(wmin*256)}")
        e(f"s_min_i32 s{sW}, s{sTmp}, {int(wmax*256)}")
        e.label(f"L_noctl{k}")

    def phase(name, total, unit, handlers, sw):
        e(f"s_mov_b32 s{sCnt}, 0")
        e.nop(3)
        e.raw(".p2align 6")
        e.label(f"L_{name}loop")
        for u in range(RU):
            e(f"s_waitcnt vmcnt({3*(RU-1)})")
            unit(u)
            gate()
            issue(u, sw)
        e(f"v_add_u32 v{vSc}, {RU*256}, v{vSc}")
        e(f"s_add_u32 s{sCnt}, s{sCnt}, {RU}")
        control()
        e(f"s_and_b32 s{sTmp}, s{sCnt}, {SPR-1}")
        e(f"s_cbranch_scc0 L_{name}round")
        if total % SPR:
            e(f"s_cmp_lg_u32 s{sCnt}, {total}")
            e(f"s_cbranch_scc1 L_{name}loop")
            e(f"s_branch L_{name}done")
        else:
            e(f"s_branch L_{name}loop")
        e.label(f"L_{name}round")
        hs = sorted(handlers)
        for bnd in hs[1:]:
            e(f"s_cmp_eq_u32 s{sCnt}, {bnd}")
            e(f"s_cbranch_scc1 L_{name}h{bnd}")
        if total % SPR == 0:
            e(f"s_cmp_eq_u32 s{sCnt}, {total}")
            e(f"s_cbranch_scc1 L_{name}done")
        for bnd in hs:
            e.label(f"L_{name}h{bnd}")
            e.nop(3)
            handlers[bnd]()
            e.nop(2)
            e(f"s_branch L_{name}loop")
        e.label(f"L_{name}done")
        e.nop(3)

    def kunit(u):
        r0 = vRing + 12 * u
        for j in range(4):
            for n in range(3):
                e(f"v_dot2_f32_bf16 v{vS+n}, v{r0+4*n+j}, v{vQ+4*n+j}, {'0' if j == 0 else 'v%d' % (vS+n)}")
        e(f"v_add_f32 v{vS}, v{vS}, v{vS+1}")
        e(f"v_add_f32 v{vS}, v{vS}, v{vS+2}")
        for dp in ("quad_perm:[1,0,3,2]", "quad_perm:[2,3,0,1]", "row_half_mirror"):
            e(f"v_add_f32_dpp v{vS}, v{vS}, v{vS} {dp} row_mask:0xf bank_mask:0xf")
        e(f"ds_write_b32 v{vSc}, v{vS} offset:{u*256}")
        e(f"v_max_f32 v{vM}, v{vM}, v{vS}")

    def kend(r):
        def f():
            stamp(r)
            if r + 1 < NR: qread(r + 1)
            e(f"v_max_f32_dpp v{vM}, v{vM}, v{vM} row_ror:8 row_mask:0xf bank_mask:0xf")
            e(f"v_mov_b32 v{vX}, v{vM}")
            e(f"v_permlane16_swap_b32 v{vM}, v{vX}")
            e(f"v_max_f32 v{vM}, v{vM}, v{vX}")
            e(f"v_mov_b32 v{vX}, v{vM}")
            e(f"v_permlane32_swap_b32 v{vM}, v{vX}")
            e(f"v_max_f32 v{vM}, v{vM}, v{vX}")
            e(f"v_readfirstlane_b32 s{sMx+r}, v{vM}")
            e(f"v_mov_b32 v{vM}, 0x{f2u(-1e30):08x}")
            e(f"s_waitcnt lgkmcnt(0)")
        return f

    c("---- K phase: wait unit, dot products, score -> LDS, gate, issue unit + 4")
    phase("k", TOT, kunit, {SPR * (r + 1): kend(r) for r in range(NR - 1)}, True)
    kend(NR - 1)()

    def vunit(u):
        r0 = vRing + 12 * (u % RU)
        e(f"v_sub_f32 v{vPh}, v{vT0}, v{vM}")
        e(f"ds_read_b32 v{vT0}, v{vSc} offset:{(u+1)*256}")
        e(f"v_mul_f32 v{vPh}, s{sC}, v{vPh}")
        e(f"v_exp_f32 v{vPh}, v{vPh}")
        e(f"v_cvt_pk_bf16_f32 v{vPh}, 0, v{vPh}")
        e(f"v_lshrrev_b32 v{vPl}, 16, v{vPh}")
        e(f"v_add_f32 v{vL}, v{vL}, v{vPh}")

    def vdots(u):
        r0 = vRing + 12 * (u % RU)
        for n in range(3):
            for j in range(4):
                e(f"v_dot2c_f32_bf16 v{vAcc+8*n+2*j}, v{r0+4*n+j}, v{vPl}")
                e(f"v_dot2c_f32_bf16 v{vAcc+8*n+2*j+1}, v{r0+4*n+j}, v{vPh}")
        e(f"s_waitcnt lgkmcnt(0)")

    def l_reduce():
        e(f"v_add_f32_dpp v{vL}, v{vL}, v{vL} row_ror:8 row_mask:0xf bank_mask:0xf")
        e(f"v_mov_b32 v{vX}, v{vL}")
        e(f"v_permlane16_swap_b32 v{vL}, v{vX}")
        e(f"v_add_f32 v{vL}, v{vL}, v{vX}")
        e(f"v_mov_b32 v{vX}, v{vL}")
        e(f"v_permlane32_swap_b32 v{vL}, v{vX}")
        e(f"v_add_f32 v{vL}, v{vL}, v{vX}")
        e(f"v_cndmask_b32 v{vO+3}, v{vL}, v{vM}, s[{sPar}:{sPar+1}]")

    def acc_reduce():
        A = lambda n, ee: vAcc + 8 * n + ee
        for n in range(3):
            for ee in range(4):
                e(f"v_permlane32_swap_b32 v{A(n,ee)}, v{A(n,ee+4)}")
        for n in range(3):
            for ee in range(4):
                e(f"v_add_f32 v{A(n,ee)}, v{A(n,ee)}, v{A(n,ee+4)}")
        for n in range(3):
            for ee in range(2):
                e(f"v_permlane16_swap_b32 v{A(n,ee)}, v{A(n,ee+2)}")
        for n in range(3):
            for ee in range(2):
                e(f"v_add_f32 v{A(n,ee)}, v{A(n,ee)}, v{A(n,ee+2)}")
        for n in range(3):
            e(f"v_add_f32_dpp v{vO+n}, v{A(n,0)}, v{A(n,0)} row_ror:8 row_mask:0xf bank_mask:0x3")
        for n in range(3):
            e(f"v_add_f32_dpp v{vO+n}, v{A(n,1)}, v{A(n,1)} row_ror:8 row_mask:0xf bank_mask:0xc")
        e(f"ds_write_b128 v{vRec}, v[{vO}:{vO+3}]")

    def vbegin(r):
        e(f"v_mov_b32 v{vL}, 0")
        for k in range(24):
            e(f"v_mov_b32 v{vAcc+k}, 0")
        e(f"v_mov_b32 v{vM}, s{sMx+r}")

    def vend(r):
        def f():
            stamp(NR + r)
            l_reduce()
            acc_reduce()
            e(f"v_add_u32 v{vRec}, {W*1024}, v{vRec}")
            vbegin(r + 1)
        return f

    c("---- V phase")
    e(f"v_subrev_u32 v{vSc}, {TOT*256}, v{vSc}")
    e(f"ds_read_b32 v{vT0}, v{vSc}")
    e(f"v_lshlrev_b32 v{vRec}, 4, v0")
    e(f"v_add_u32 v{vRec}, {LDS_REC}, v{vRec}")
    e(f"s_mov_b32 s{sPar}, 0xaaaaaaaa")
    e(f"s_mov_b32 s{sPar+1}, 0xaaaaaaaa")
    e(f"s_mov_b32 s{sC}, 0x{f2u(SCALE_LOG2E):08x}")
    vbegin(0)
    e(f"s_waitcnt lgkmcnt(0)")
    phase("v", TOT - RU - (RU if nopen else 0), lambda u: (vunit(u), vdots(u)), {SPR * (r + 1): vend(r) for r in range(NR - 1)}, False)
    if nopen:
        for u in range(RU):
            e(f"s_waitcnt vmcnt({3*(RU-1)})")
            vunit(u); vdots(u)
            if u < RU - nopen: gate()
            issue(u, False)
        e(f"v_add_u32 v{vSc}, {RU*256}, v{vSc}")
    c("---- drain the ring, then merge: wave -> workgroup -> team")
    stamp(2 * NR - 1)
    setup_tail()
    for u in range(RU):
        vunit(u)
        if u == RU - 1:
            l_reduce()
            e(f"s_lshl_b32 s{sTmp}, s{sWave}, 12")
            e(f"s_add_u32 s{sTmp}, s{sTmp}, {LDS_REC}")
            e(f"v_add_u32 v{vT1}, s{sTmp}, v{vLa16}")
            e(f"s_lshl_b32 s{sTmp}, s{sWave}, 10")
            e(f"s_add_u32 s{sTmp}, s{sTmp}, {LDS_TREE}")
            e(f"v_add_u32 v{vSc}, s{sTmp}, v{vLa16}")
        e(f"s_waitcnt vmcnt({3*(RU-1-u)})")
        vdots(u)
    if diag:
        e(f"s_memrealtime s[{sT0+2}:{sT0+3}]")
        e(f"s_waitcnt lgkmcnt(0)")
        for j in range(4):
            e(f"v_mov_b32 v{vRing+j}, s{sT0+j}")
        e(f"s_lshl_b32 s{sTmp}, s2, 9")
        e(f"s_add_u32 s{sTmp}, s{sTmp}, {DIAG_OFF}")
        e(f"s_lshl_b32 s{sCnt}, s{sWave}, 4")
        e(f"s_add_u32 s{sTmp}, s{sTmp}, s{sCnt}")
        e(f"s_mov_b64 exec, 1")
        e(f"buffer_store_dwordx4 v[{vRing}:{vRing+3}], v{vZero}, s[{sWs}:{sWs+3}], s{sTmp} offen")
        e(f"s_mov_b64 exec, -1")
        e(f"s_mul_i32 s{sTmp}, s2, {W*256}")
        e(f"s_add_u32 s{sTmp}, s{sTmp}, {DIAG_OFF+NWG*512}")
        e(f"v_lshlrev_b32 v{vT0}, 2, v0")
        e(f"buffer_store_dword v{vStamp}, v{vT0}, s[{sWs}:{sWs+3}], s{sTmp} offen")
        e.nop(4)
    acc_reduce()
    e(f"s_mov_b32 s{sStep}, 0xfffff800")
    e(f"s_waitcnt lgkmcnt(0)")
    e(f"s_barrier")
    if diag: e(f"s_memrealtime s[{sT0}:{sT0+1}]")

    vMW = vS
    def combine(recs, out):
        n = len(recs)
        F = vAcc
        e(f"v_max_f32 v{vMW}, v{recs[0]+3}, v{recs[1]+3}")
        i = 2
        while i < n:
            if i + 1 < n:
                e(f"v_max3_f32 v{vMW}, v{vMW}, v{recs[i]+3}, v{recs[i+1]+3}"); i += 2
            else:
                e(f"v_max_f32 v{vMW}, v{vMW}, v{recs[i]+3}"); i += 1
        for i in range(n):
            e(f"v_sub_f32 v{F+i}, v{recs[i]+3}, v{vMW}")
        for i in range(n):
            e(f"v_mul_f32 v{F+i}, s{sC}, v{F+i}")
        for i in range(n):
            e(f"v_exp_f32 v{F+i}, v{F+i}")
        for i in range(n):
            e(f"v_mov_b32_dpp v{F+i}, v{F+i} quad_perm:[1,1,3,3] row_mask:0xf bank_mask:0xf")
        for j in range(4):
            e(f"v_mul_f32 v{out+j}, v{F}, v{recs[0]+j}")
        for i in range(1, n):
            for j in range(4):
                e(f"v_fmac_f32 v{out+j}, v{F+i}, v{recs[i]+j}")

    for w in range(W):
        e(f"ds_read_b128 v[{vB+4*w}:{vB+4*w+3}], v{vT1} offset:{w*1024}")
    e(f"ds_read_b128 v[{vB+16}:{vB+19}], v{vSc}")
    e(f"s_waitcnt lgkmcnt(0)")
    combine([vB + 4 * w for w in range(W + 1)], vO)
    e(f"v_cndmask_b32 v{vO+3}, v{vO+3}, v{vMW}, s[{sPar}:{sPar+1}]")
    if pk == 1:
        e(f"v_mul_u32_u24 v{vLa16}, 12, v{vLane}")
        e(f"v_lshlrev_b32 v{vT0}, 2, v{vLane}")
        e(f"buffer_store_dwordx3 v[{vO}:{vO+2}], v{vLa16}, s[{sWs}:{sWs+3}], s{sSlot} offen sc1")
        e(f"s_mov_b64 exec, 3")
        e(f"buffer_store_dword v{vO+3}, v{vT0}, s[{sWs}:{sWs+3}], s{sSlot} offen offset:768 sc1")
        e(f"s_mov_b64 exec, -1")
    elif pk == 2:
        e(f"v_lshrrev_b32 v{vB}, 21, v{vO+2}")
        e(f"v_bfe_u32 v{vB+1}, v{vO+2}, 10, 11")
        e(f"v_lshlrev_b32 v{vLa16}, 3, v{vLane}")
        e(f"v_and_or_b32 v{vB}, v{vO}, s{sStep}, v{vB}")
        e(f"v_and_or_b32 v{vB+1}, v{vO+1}, s{sStep}, v{vB+1}")
        e(f"v_lshlrev_b32 v{vT0}, 2, v{vLane}")
        e(f"buffer_store_dwordx2 v[{vB}:{vB+1}], v{vLa16}, s[{sWs}:{sWs+3}], s{sSlot} offen sc1")
        e(f"s_mov_b64 exec, 3")
        e(f"buffer_store_dword v{vO+3}, v{vT0}, s[{sWs}:{sWs+3}], s{sSlot} offen offset:768 sc1")
        e(f"s_mov_b64 exec, -1")
    else:
        e(f"buffer_store_dwordx4 v[{vO}:{vO+3}], v{vLa16}, s[{sWs}:{sWs+3}], s{sSlot} offen sc1")
    e(f"v_mov_b32 v{vX}, 1")
    if ph:
        e(f"s_mov_b64 exec, 1")
        e(f"s_waitcnt vmcnt(0)")
        if diag: e(f"s_memrealtime s[{sT0+2}:{sT0+3}]")
        e(f"buffer_atomic_add v{vX}, v{vZero}, s[{sWs}:{sWs+3}], s{sArr} offen sc0")
        if 'L' in x or 'M' in x:
            e(f"s_mov_b64 exec, -1")
            e(f"buffer_load_dwordx4 v[{vB}:{vB+3}], v{vLa16}, s[{sWs}:{sWs+3}], s{sSlot} offen{' sc1' if 'L' in x else ''}")
            e(f"s_waitcnt vmcnt(1)")
        else:
            e(f"s_waitcnt vmcnt(0)")
        e(f"v_readfirstlane_b32 s{sTmp}, v{vX}")
    else:
        e(f"s_cmp_lg_u32 s{sWave}, 0")
        e(f"s_waitcnt vmcnt(0)")
        e(f"s_barrier")
        if diag: e(f"s_memrealtime s[{sT0+2}:{sT0+3}]")
        e(f"s_cbranch_scc1 L_wait")
        if vat:
            e(f"s_mov_b64 exec, 1")
            e(f"buffer_atomic_add v{vX}, v{vZero}, s[{sWs}:{sWs+3}], s{sArr} offen sc0")
            e(f"s_waitcnt vmcnt(0)")
            e(f"ds_write_b32 v{vZero}, v{vX} offset:{LDS_FLAG}")
            e(f"v_readfirstlane_b32 s{sTmp}, v{vX}")
            e(f"s_mov_b64 exec, -1")
        else:
            e(f"s_atomic_add s{sTmp}, s[20:21], s{sArr} glc")
            e(f"s_waitcnt lgkmcnt(0)")
            e(f"v_mov_b32 v{vX}, s{sTmp}")
            e(f"ds_write_b32 v{vZero}, v{vX} offset:{LDS_FLAG}")
        e(f"s_waitcnt lgkmcnt(0)")
        e(f"s_barrier")
        e(f"s_branch L_got")
        e.label("L_wait")
        e(f"s_barrier")
        e(f"ds_read_b32 v{vX}, v{vZero} offset:{LDS_FLAG}")
        e(f"s_waitcnt lgkmcnt(0)")
        e(f"v_readfirstlane_b32 s{sTmp}, v{vX}")
    e.label("L_got")
    if diag:
        e(f"s_memrealtime s[96:97]")
        e(f"s_mov_b64 s[98:99], 0")
        e(f"s_mov_b64 s[100:101], 0")
    e(f"s_cmp_lg_u32 s{sTmp}, {T-1}")
    e(f"s_cbranch_scc1 L_fin")
    sF = sRem + 4
    e(f"s_mov_b64 exec, 0xffff")
    e(f"buffer_load_dword v{vHm}, v{vHdr}, s[{sWs}:{sWs+3}], s{sRem} offen offset:28 sc1")
    e(f"buffer_load_dword v{vHl}, v{vHdr}, s[{sWs}:{sWs+3}], s{sRem} offen offset:12 sc1")
    e(f"s_mov_b64 exec, -1")
    for m in range(T):
        e(f"buffer_load_dwordx3 v[{vR+4*m}:{vR+4*m+2}], v{vLa16}, s[{sWs}:{sWs+3}], s{sRem+m//4} offen offset:{(m%4)*1024} sc1")
    e(f"s_waitcnt vmcnt({T+1})")
    e(f"v_max_f32_dpp v{vMW}, v{vHm}, v{vHm} row_ror:8 row_mask:0xf bank_mask:0xf")
    for rr in (4, 2, 1):
        e(f"v_max_f32_dpp v{vMW}, v{vMW}, v{vMW} row_ror:{rr} row_mask:0xf bank_mask:0xf")
    e(f"v_sub_f32 v{vHm}, v{vHm}, v{vMW}")
    e(f"v_mul_f32 v{vHm}, s{sC}, v{vHm}")
    e(f"v_exp_f32 v{vHm}, v{vHm}")
    e(f"s_waitcnt vmcnt({T})")
    e(f"v_mul_f32 v{vHl}, v{vHl}, v{vHm}")
    rs = [8, 4, 2, 1]
    for m in range(T):
        e(f"v_readlane_b32 s{sF+m}, v{vHm}, {m}")
        if m % 3 == 1 and rs:
            e(f"v_add_f32_dpp v{vHl}, v{vHl}, v{vHl} row_ror:{rs.pop(0)} row_mask:0xf bank_mask:0xf")
    e(f"v_rcp_f32 v{vHl}, v{vHl}")
    for m in range(T):
        if m % 4 == 0:
            e(f"s_waitcnt vmcnt({T - (m + 4)})")
            if diag and m == 12: e(f"s_memrealtime s[98:99]")
        for j in range(3):
            e(f"v_{'mul' if m == 0 else 'fmac'}_f32 v{vO+j}, s{sF+m}, v{vR+4*m+j}")
        if m == 0: e(f"v_readfirstlane_b32 s{sTmp}, v{vHl}")
    for j in range(3):
        e(f"v_mul_f32 v{vO+j}, s{sTmp}, v{vO+j}")
    for j in range(3):
        e(f"v_cvt_pk_bf16_f32 v{vO+j}, v{vO+j}, v{vO+j}")
    for j in range(3):
        e(f"buffer_store_short v{vO+j}, v{vOutOff}, s[{sOut}:{sOut+3}], s{sLim} offen offset:{j*128}{opol}")
    if diag: e(f"s_memrealtime s[100:101]")
    e.label("L_fin")
    if diag:
        e(f"s_cmp_lg_u32 s{sWave}, 1")
        e(f"s_cbranch_scc1 L_end")
        e(f"s_waitcnt vmcnt(0)")
        e(f"s_memrealtime s[{sT0+4}:{sT0+5}]")
        e(f"s_getreg_b32 s{sT0+6}, hwreg(HW_REG_XCC_ID)")
        e(f"s_getreg_b32 s{sT0+7}, hwreg(HW_REG_HW_ID)")
        e(f"s_waitcnt lgkmcnt(0)")
        for j in range(8):
            e(f"v_mov_b32 v{vR+j}, s{sT0+j}")
        e(f"s_lshl_b32 s{sTmp}, s2, 9")
        e(f"s_add_u32 s{sTmp}, s{sTmp}, {DIAG_OFF+256}")
        e(f"s_mov_b64 exec, 1")
        e(f"buffer_store_dwordx4 v[{vR}:{vR+3}], v{vZero}, s[{sWs}:{sWs+3}], s{sTmp} offen")
        e(f"buffer_store_dwordx4 v[{vR+4}:{vR+7}], v{vZero}, s[{sWs}:{sWs+3}], s{sTmp} offen offset:16")
        for j in range(3):
            e(f"v_mov_b32 v{vR+8+j}, s{96+2*j}")
        e(f"buffer_store_dwordx4 v[{vR+8}:{vR+11}], v{vZero}, s[{sWs}:{sWs+3}], s{sTmp} offen offset:32")
    e("s_endpgm")

    c("---- helper wave: q -> LDS, tree-token records, arrival counters, progress hints")
    if NEAR and not H0:
        e.label("L_helper2")
    else:
        helper1()
    mk_ws()
    e(f"v_mov_b32 v{vO}, 0")
    e(f"v_mov_b32 v{vO+1}, 0")
    e(f"v_mov_b32 v{vO+2}, 0")
    e(f"v_mov_b32 v{vM}, 0x{f2u(-1e30):08x}")
    e(f"v_cndmask_b32 v{vO+3}, v{vO}, v{vM}, s[{sPar}:{sPar+1}]")
    e(f"v_add_u32 v{vRec}, {LDS_TREE}, v{vLa16}")
    e(f"s_cmp_eq_u32 s{sMem}, 0")
    e(f"s_cbranch_scc1 L_tree")
    for r in range(NR):
        e(f"ds_write_b128 v{vRec}, v[{vO}:{vO+3}] offset:{r*1024}")
    e(f"s_branch L_treedone")
    e.label("L_tree")
    e(f"v_lshrrev_b32 v{vOutOff}, 3, v{vLane}")
    e(f"v_lshl_add_u32 v{vOutOff}, v{vOutOff}, 1, v{vS16}")
    e(f"s_lshl_b32 s{sArr}, s{sTeam}, 9")
    e(f"s_add_u32 s{sArr}, s{sArr}, {ARR_OFF}")
    e(f"v_lshlrev_b32 v{vT0}, 7, v{vLane}")
    e(f"v_mov_b32 v{vPh}, 0")
    e(f"s_mov_b64 exec, 15")
    e(f"buffer_atomic_swap v{vPh}, v{vT0}, s[{sWs}:{sWs+3}], s{sArr} offen sc0")
    e(f"s_mov_b64 exec, -1")
    e(f"s_mul_i32 s{sTmp}, s{sTeam}, {ROWB}")
    e(f"v_add_u32 v{vT1}, s{sTmp}, v{vOutOff}")
    e(f"v_add_u32 v{vAl}, s{sTmp}, v{vS16}")
    hb = 56
    vEnd = max(vEnd, hb + 16 * NR + 12)
    hq = hb + 16 * NR
    for r in range(NR):
        b = hb + 16 * r
        e(f"v_add_u32 v{vT0}, {r*NT*ROWB}, v{vAl}")
        for n in range(3):
            e(f"global_load_dwordx4 v[{b+4*n}:{b+4*n+3}], v{vT0}, s[10:11] offset:{n*128}")
        e(f"v_add_u32 v{vT0}, {r*NT*ROWB}, v{vT1}")
        for n in range(3):
            e(f"global_load_ushort v{b+12+n}, v{vT0}, s[12:13] offset:{n*128}")
        e(f"s_add_u32 s{sTmp}, s{sTeam}, {r*NT}")
        e(f"s_lshr_b32 s{sTmp}, s{sTmp}, 5")
        e(f"s_lshl_b32 s{sTmp}, s{sTmp}, 1")
        e(f"v_mov_b32 v{vT0}, s{sTmp}")
        e(f"global_load_ushort v{b+15}, v{vT0}, s[14:15]")
    e(f"v_mov_b32 v{vX}, 0x{f2u(MASKRAW):08x}")
    e(f"s_lshl_b32 s{sArr}, s{sTeam}, 4")
    e(f"v_mov_b32 v{vT0}, s{sArr}")
    e(f"v_mov_b32 v{vPl}, 1")
    e(f"s_waitcnt vmcnt(0)")
    e(f"s_mov_b64 exec, 1")
    e(f"global_atomic_add v{vT0}, v{vPl}, s[18:19]")
    e(f"s_mov_b64 exec, -1")
    for r in range(NR):
        b = hb + 16 * r
        for n in range(3):
            e(f"ds_read_b128 v[{hq+4*n}:{hq+4*n+3}], v{vS16} offset:{LDS_Q + r*ROWB + n*128}")
        e(f"s_waitcnt lgkmcnt(0)")
        for j in range(4):
            for n in range(3):
                e(f"v_dot2_f32_bf16 v{vS+n}, v{b+4*n+j}, v{hq+4*n+j}, {'0' if j == 0 else 'v%d' % (vS+n)}")
        for n in range(4):
            e(f"v_lshlrev_b32 v{b+12+n}, 16, v{b+12+n}")
        e(f"v_add_f32 v{vS}, v{vS}, v{vS+1}")
        e(f"v_add_f32 v{vS}, v{vS}, v{vS+2}")
        for dp in ("quad_perm:[1,0,3,2]", "quad_perm:[2,3,0,1]", "row_half_mirror"):
            e(f"v_add_f32_dpp v{vS}, v{vS}, v{vS} {dp} row_mask:0xf bank_mask:0xf")
        e(f"v_sub_f32 v{b+15}, 1.0, v{b+15}")
        e(f"v_fma_f32 v{vS}, v{b+15}, v{vX}, v{vS}")
        e(f"v_cndmask_b32 v{b+15}, 1.0, v{vS}, s[{sPar}:{sPar+1}]")
        e(f"ds_write_b128 v{vRec}, v[{b+12}:{b+15}] offset:{r*1024}")
    e.label("L_treedone")
    c("progress hints: publishers store the time wave 1 passed each 8-unit mark; they gather all 16 stamps and leave (units, mean time, slope) in their XCD's line")
    LASTP = (2 * TOT - RU) // PU - 1
    sPub, sLead, sRefl, sTry, sR1, sR2 = sCnt, sIss, sStep, sJump, sBase, sPos
    e(f"s_mov_b32 s{sPt}, 0")
    e(f"s_getreg_b32 s{sRefl}, hwreg(HW_REG_XCC_ID)")
    e(f"s_and_b32 s{sRefl}, s{sRefl}, 15")
    e(f"s_lshl_b32 s{sRefl}, s{sRefl}, 7")
    e(f"s_add_u32 s{sRefl}, s{sRefl}, {REFL}")
    e(f"v_lshlrev_b32 v{vHdr}, 7, v{vLane}")
    e(f"s_lshr_b32 s{sK}, s2, 4")
    e(f"s_and_b32 s{sTmp}, s2, 15")
    e(f"s_cmp_eq_u32 s{sK}, s{sTmp}")
    e(f"s_cselect_b32 s{sPub}, 1, 0")
    e(f"s_cmp_lt_u32 s{sK}, {nlead}")
    e(f"s_cselect_b32 s{sLead}, s{sPub}, 0")
    e(f"s_lshl_b32 s{sTmp}, s{sK}, 7")
    e(f"v_mov_b32 v{vHl}, s{sTmp}")
    e(f"s_mov_b32 s{sOff}, {HINT_OFF}")
    e(f"s_movk_i32 s{sSlot}, 16384")
    e(f"s_mov_b64 exec, 1")
    e(f"s_waitcnt lgkmcnt(0)")
    e.label("L_hp")
    e(f"s_lshl_b32 s{sTmp}, s{sPt}, 2")
    e(f"v_mov_b32 v{vT1}, s{sTmp}")
    e.label("L_hwait")
    e(f"s_sleep {poll}")
    e(f"s_cmp_lg_u32 s{sLead}, 0")
    e(f"s_cbranch_scc1 L_hnoref")
    e(f"s_cmp_lt_u32 s{sPt}, 2")
    e(f"s_cbranch_scc1 L_hnoref")
    e(f"buffer_load_dwordx3 v[{vLat}:{vLat+2}], v{vZero}, s[{sWs}:{sWs+3}], s{sRefl} offen sc1")
    e(f"s_waitcnt vmcnt(0)")
    e(f"v_readfirstlane_b32 s{sTmp}, v{vLat+1}")
    e(f"v_readfirstlane_b32 s{sK}, v{vLat}")
    e(f"s_sub_u32 s{sTmp}, s{sTmp}, s{sStart}")
    e(f"s_cmp_lt_u32 s{sTmp}, s{sSlot}")
    e(f"s_cbranch_scc0 L_hnoref")
    e(f"s_cmp_le_u32 s{sK}, {2*TOT}")
    e(f"s_cbranch_scc0 L_hnoref")
    e(f"ds_write_b96 v{vZero}, v[{vLat}:{vLat+2}] offset:{LDS_REF}")
    e.label("L_hnoref")
    e(f"ds_read_b32 v{vX}, v{vT1} offset:{LDS_OWN}")
    e(f"s_waitcnt lgkmcnt(0)")
    e(f"v_readfirstlane_b32 s{sTown}, v{vX}")
    e(f"s_cmp_eq_u32 s{sTown}, 0")
    e(f"s_cbranch_scc1 L_hwait")
    e(f"s_cmp_eq_u32 s{sPub}, 0")
    e(f"s_cbranch_scc1 L_hnext")
    e(f"buffer_store_dword v{vX}, v{vHl}, s[{sWs}:{sWs+3}], s{sOff} offen sc1")
    if 'C' in x:
        e(f"s_and_b32 s{sTmp}, s{sPt}, 7")
        e(f"s_cmp_lg_u32 s{sTmp}, 5")
        e(f"s_cbranch_scc1 L_nocode")
        e(f"s_getpc_b64 s[{sMx}:{sMx+1}]")
        e.label("L_pc")
        e(f"s_sub_u32 s{sMx}, s{sMx}, L_pc-L_kdone")
        e(f"s_subb_u32 s{sMx+1}, s{sMx+1}, 0")
        e(f"s_mov_b64 exec, 0x3ffffffffff") if False else None
        e(f"s_mov_b32 exec_lo, -1")
        e(f"s_mov_b32 exec_hi, 0x7ff")
        e(f"global_load_dword v{vAl}, v{vHdr}, s[{sMx}:{sMx+1}]")
        e(f"s_mov_b64 exec, 1")
        e.label("L_nocode")
    e(f"s_cmp_eq_u32 s{sLead}, 0")
    e(f"s_cbranch_scc1 L_hnext")
    e(f"s_mov_b64 exec, 0xffff")
    e(f"s_mov_b32 s{sTry}, {tries}")
    e.label("L_hgather")
    e(f"s_sleep {dly}")
    e(f"buffer_load_dword v{vHm}, v{vHdr}, s[{sWs}:{sWs+3}], s{sOff} offen sc1")
    e(f"s_sub_u32 s{sTry}, s{sTry}, 1")
    e(f"s_waitcnt vmcnt(0)")
    e(f"v_subrev_u32 v{vHm}, s{sStart}, v{vHm}")
    e(f"v_cmp_le_u32 vcc, s{sSlot}, v{vHm}")
    e(f"s_cbranch_vccz L_hall")
    e(f"s_cmp_lg_u32 s{sTry}, 0")
    e(f"s_cbranch_scc1 L_hgather")
    e(f"s_sub_u32 s{sK}, s{sTown}, s{sStart}")
    e(f"s_add_u32 s{sK}, s{sK}, 250")
    e(f"v_mov_b32 v{vT0}, s{sK}")
    e(f"v_cndmask_b32 v{vHm}, v{vHm}, v{vT0}, vcc")
    e.label("L_hall")
    e.nop(2)
    for dp in ("quad_perm:[1,0,3,2]", "quad_perm:[2,3,0,1]", "row_half_mirror", "row_mirror"):
        e(f"v_add_u32_dpp v{vHm}, v{vHm}, v{vHm} {dp} row_mask:0xf bank_mask:0xf")
    e(f"v_lshrrev_b32 v{vHm}, 4, v{vHm}")
    e(f"v_add_u32 v{vLat+1}, s{sStart}, v{vHm}")
    e(f"s_mov_b64 exec, 1")
    e(f"v_readfirstlane_b32 s{sTown}, v{vLat+1}")
    e(f"s_add_u32 s{sTmp}, s{sPt}, 1")
    e(f"s_mul_i32 s{sTmp}, s{sTmp}, {PU}")
    e(f"v_mov_b32 v{vLat}, s{sTmp}")
    e(f"s_sub_u32 s{sK}, s{sTown}, s{sR1}")
    e(f"s_lshl_b32 s{sK}, s{sK}, 1")
    e(f"s_sub_u32 s{sTmp}, s{sTown}, s{sR2}")
    e(f"s_cmp_eq_u32 s{sPt}, 1")
    e(f"s_cselect_b32 s{sTmp}, s{sK}, s{sTmp}")
    if 'Y' in x:
        e(f"s_cselect_b32 s{sHead}, s{sTmp}, s{sHead}")
        e(f"s_lshr_b32 s{sK}, s{sHead}, 4")
        e(f"s_add_u32 s{sK}, s{sK}, s{sHead}")
        e(f"s_min_u32 s{sTmp}, s{sTmp}, s{sK}")
        e(f"s_mov_b32 s{sHead}, s{sTmp}")
    if 2 * PU > 16: e(f"s_lshr_b32 s{sTmp}, s{sTmp}, {int(math.log2(2 * PU)) - 4}")
    if 2 * PU < 16: e(f"s_lshl_b32 s{sTmp}, s{sTmp}, {4 - int(math.log2(2 * PU))}")
    e(f"v_mov_b32 v{vLat+2}, s{sTmp}")
    e(f"s_mov_b32 s{sR2}, s{sR1}")
    e(f"s_mov_b32 s{sR1}, s{sTown}")
    e(f"s_cmp_eq_u32 s{sPt}, 0")
    e(f"s_cbranch_scc1 L_hnext")
    e(f"buffer_store_dwordx3 v[{vLat}:{vLat+2}], v{vZero}, s[{sWs}:{sWs+3}], s{sRefl} offen")
    e(f"ds_write_b96 v{vZero}, v[{vLat}:{vLat+2}] offset:{LDS_REF}")
    e.label("L_hnext")
    e(f"s_add_u32 s{sOff}, s{sOff}, {16*128}")
    e(f"s_add_u32 s{sPt}, s{sPt}, 1")
    if 'X' in x:
        e(f"s_add_u32 s{sTmp}, s{sPt}, s{sPub}")
        e(f"s_cmp_lt_u32 s{sTmp}, {LASTP+1}")
    else:
        e(f"s_cmp_lt_u32 s{sPt}, {LASTP}")
    e(f"s_cbranch_scc1 L_hp")
    if touch:
        e(f"global_load_dword v{vAl}, v{vZero}, s[16:17]")
    c("the team's arrival counters must be zeroed before this workgroup may arrive")
    e(f"s_lshl_b32 s{sArr}, s{sTeam}, 4")
    e(f"s_load_dword s{sLim}, s[18:19], s{sArr}")
    e.label("L_rdy")
    e(f"s_waitcnt lgkmcnt(0)")
    e(f"s_cmp_lg_u32 s{sLim}, 0")
    e(f"s_cbranch_scc1 L_rdyok")
    e(f"s_sleep 16")
    e(f"s_atomic_add s{sLim}, s[18:19], s{sArr} glc")
    e(f"s_branch L_rdy")
    e.label("L_rdyok")
    if 'S' in x:
        e.label("L_hold")
        e(f"s_memrealtime s[{sTm}:{sTm+1}]")
        e(f"s_waitcnt lgkmcnt(0)")
        e(f"s_sub_u32 s{sTmp}, s{sTm}, s{sStart}")
        e(f"s_cmp_lt_u32 s{sTmp}, 7500")
        e(f"s_cbranch_scc1 L_hold")
    e(f"s_barrier")
    e.label("L_end")
    e("s_endpgm")

    acc_off = (vEnd + 3) // 4 * 4
    assert vEnd <= 256 and sEnd <= 96
    out = HEADER
    out += f"; params: v11 v4 HW=1 RU={RU} W0={W0} I0={I0} rotm={rotm} gain={gain} PU={PU} dly={dly} wmin={wmin} wmax={wmax} nlead={nlead} {'diag' if diag else ''} off={DIAG_OFF}\n"
    if 'D' in x: out += DOC
    out += f"; @launch grid=({NWG},1,1) block=({(W+1)*64},1,1) lds={LDS_BYTES}\n"
    out += f""".amdgcn_target "amdgcn-amd-amdhsa--gfx950"
.text
.globl {NAME}_kernel
.p2align 8
.type {NAME}_kernel,@function
{NAME}_kernel:
"""
    out += "\n".join(e.lines) + "\n"
    out += f""".section .rodata,"a"
.p2align 6
.amdhsa_kernel {NAME}_kernel
  .amdhsa_next_free_vgpr {vEnd}
  .amdhsa_next_free_sgpr {102 if diag else sEnd}
  .amdhsa_accum_offset {acc_off}
  .amdhsa_group_segment_fixed_size 0
  .amdhsa_kernarg_size 72
  .amdhsa_user_sgpr_count 2
  .amdhsa_user_sgpr_kernarg_segment_ptr 1
  .amdhsa_system_sgpr_workgroup_id_x 1
.end_amdhsa_kernel
"""
    return out


if __name__ == "__main__":
    ap = argparse.ArgumentParser()
    ap.add_argument("-o", default="cdna_kernels/" + NAME + ".s")
    for k, t, d in (("ru", int, 4), ("w0", float, 2.0), ("i0", int, 2), ("rotm", int, 4), ("gain", float, 0.8), ("pu", int, 8),
                    ("dly", int, 20), ("wmin", float, 1.0), ("wmax", float, 3.0), ("tries", int, 3), ("nlead", int, 16),
                    ("touch", int, 1), ("poll", int, 6), ("vat", int, 0), ("x", str, ""), ("opol", str, "sc1"), ("nopen", int, 0), ("pk", int, 0), ("ph", int, 0), ("pm", int, 0), ("pair", int, 0), ("tm", int, 0), ("ek", int, 1)):
        ap.add_argument("--" + k, type=t, default=d)
    ap.add_argument("--diag", action="store_true")
    a = ap.parse_args()
    open(a.o, "w").write(gen(a.ru, a.w0, a.i0, "nt", a.diag, a.rotm, (" " + a.opol) if a.opol else "", a.gain, a.pu, a.dly, a.wmin, a.wmax,
                             a.tries, a.nlead, a.touch, a.poll, a.vat, a.x, a.nopen, a.pk, a.ph, a.pm, a.pair, a.tm, a.ek))
```

```python
import math, argparse
from gen import Em, f2u, NAME, HEADER, NH, C, DH, ROWB, HEADB, KVB, SCALE_LOG2E, MASKRAW

DOC = """; Design (all shapes hard-coded; 402 MB of K/V are read exactly once, the kernel is HBM bound):
;    Split softmax: wave -> workgroup (LDS) -> team (d_ws records {acc, l, max}), rescaled to the true
"""


def gen(RU=4, W0=2.0, I0=2, pol="nt", diag=False, rotm=4, opol=" sc1", gain=0.8, PU=8, dly=20, wmin=1.0, wmax=3.0,
        tries=3, nlead=16, touch=1, poll=6, vat=0, x="", nopen=0, pk=0, ph=0, pm=0, pair=0, tm=0, ek=1):
    T, W, NWG = 16, 4, 256
    NT = NWG // T
    NR = T // 4
    NWV = T * W
    SPR = 1024 // NWV
    TOT = NR * SPR
    STEP = NWV * 3072 * (2 if pair else 1)
    FRONT = STEP
    STEP *= ek
    JUMP = STEP + (NT // ek - 1) * HEADB
    SPRA = SPR // ek
    assert SPR % RU == 0 and PU % RU == 0
    pol = (" " + pol) if pol else ""
    NP = 2 * TOT // PU
    HINT_OFF = NH * T * 1024
    REFL = HINT_OFF + NP * 16 * 128
    ARR_OFF = REFL + 16 * 128
    DIAG_OFF = ARR_OFF + NT * 512
    WS_BYTES = DIAG_OFF + (NWG * 512 + NWG * W * 256 if diag else 0)
    LDS_FLAG = 0
    LDS_REF = 16
    LDS_OWN = 64
    LDS_Q = 512
    LDS_SC = 2048
    assert LDS_OWN + 4 * NP <= 256 and LDS_Q + NR * ROWB <= LDS_SC
    LDS_REC = LDS_SC + W * TOT * 256
    LDS_TREE = LDS_REC + NR * W * 1024
    LDS_BYTES = LDS_TREE + NR * 1024
    assert LDS_BYTES > 81920
    e = Em()
    c = lambda t: e.raw("    ; " + t)
    vOff, vT0, vT1, vM, vL, vSc, vAl, vLane, vStamp, vPh, vPl = 1, 2, 3, 4, 5, 6, 7, 8, 9, 10, 11
    vS = 12
    vX = 15
    vSc0, vLa16, vOutOff, vRec = 16, 17, 18, 19
    vS16, vHdr, vHm, vHl = 20, 21, 22, 23
    vO = 24
    vAcc = 28
    vLat, vZero = 52, 55
    vQ = 56
    vRing = 68
    vR = 56
    vB = vR + 64
    vEnd = max(vRing + 12 * RU, vB + 20)
    sKV = 24
    sAcc, sK, sPt, sTown = 28, 29, 30, 31
    sTm = 32
    sStart = 34
    sTeam, sMem, sWave, sOff, sIss, sCnt, sC, sTmp = 36, 37, 38, 39, 40, 41, 42, 43
    sPar = 44
    sPos, sBase = 46, 47
    sWs, sOut = 48, 52
    sT0 = 56
    sHead, sSlot, sLim, sArr, sStep, sJump, sOff0, sW = 64, 65, 66, 67, 68, 69, 70, 71
    sMx = 72
    sRem = 76
    sEnd = sRem + 20
    WFIX = int(round(W0 * 256))
    nl = [0]

    def advance(sw, odd_next=False):
        if pair and odd_next:
            e(f"s_add_u32 s{sIss}, s{sIss}, 1")
            e(f"s_add_u32 s{sOff}, s{sOff}, 3072")
            return
        e(f"s_add_u32 s{sIss}, s{sIss}, 1")
        e(f"s_and_b32 s{sTmp}, s{sIss}, {SPRA-1}")
        e(f"s_cselect_b32 s{sTmp}, s{sStep}, s{sJump}")
        e(f"s_add_u32 s{sBase}, s{sBase}, s{sTmp}")
        if sw:
            e(f"s_cmp_eq_u32 s{sIss}, {TOT}")
            e(f"s_cselect_b32 s{sKV}, s8, s{sKV}")
            e(f"s_cselect_b32 s{sKV+1}, s9, s{sKV+1}")
            e(f"s_cselect_b32 s{sBase}, s{sOff0}, s{sBase}")
        if rotm:
            assert (TOT // (2 if pair else 1) * rotm) % NWV == 0
            e(f"s_add_u32 s{sPos}, s{sPos}, {rotm}")
            e(f"s_and_b32 s{sPos}, s{sPos}, {NWV-1}")
        e(f"s_mul_i32 s{sTmp}, s{sPos}, {6144 if pair else 3072}")
        e(f"s_add_u32 s{sOff}, s{sBase}, s{sTmp}")

    def issue(ru, sw):
        for n in range(3):
            r = vRing + 12 * ru + 4 * n
            e(f"buffer_load_dwordx4 v[{r}:{r+3}], v{vOff}, s[{sKV}:{sKV+3}], s{sOff} offen offset:{n*128}{pol}")
        advance(sw, ru % 2 == 0)

    KMAX = min(RU - 1, int(math.ceil(wmax)))
    def gate():
        k = nl[0]; nl[0] += 1
        e(f"s_add_u32 s{sAcc}, s{sAcc}, s{sW}")
        e(f"s_lshr_b32 s{sK}, s{sAcc}, 8")
        e(f"s_and_b32 s{sAcc}, s{sAcc}, 255")
        for lv in range(KMAX, 0, -1):
            if lv < wmax:
                e(f"s_cmp_gt_u32 s{sK}, {lv}")
                e(f"s_cbranch_scc1 L_go{k}")
            e(f"s_waitcnt vmcnt({3*(lv-1) if lv > 1 else 2})")
        e.label(f"L_go{k}")

    def stamp(k):
        if diag:
            e(f"s_memrealtime s[{sT0+4}:{sT0+5}]")
            e(f"s_waitcnt lgkmcnt(0)")
            e(f"v_writelane_b32 v{vStamp}, s{sT0+4}, {k}")

    def mk_ws():
        e(f"s_mov_b32 s{sWs}, s20")
        e(f"s_mov_b32 s{sWs+1}, s21")
        e(f"s_mov_b32 s{sWs+2}, {WS_BYTES}")
        e(f"s_mov_b32 s{sWs+3}, 0x00020000")

    c("---- prologue: first two units go out as soon as the K pointer is there")
    FP = 'P' in x
    if '1' in x or '4' in x: e(f"s_memrealtime s[60:61]")
    if FP: e(f"s_load_dwordx2 s[{sKV}:{sKV+1}], s[0:1], 8")
    H0 = 'H' in x
    NEAR = 'N' in x or H0
    if NEAR: e(f"s_load_dwordx2 s[22:23], s[0:1], 0")
    e(f"s_cmp_ge_u32 s2, {NWG}")
    e(f"s_cbranch_scc1 L_end")
    if not FP: e(f"s_load_dwordx16 s[4:19], s[0:1], 0")
    if diag: e(f"s_memrealtime s[{sT0}:{sT0+1}]")
    e(f"v_lshrrev_b32 v{vT0}, 6, v0")
    e(f"v_and_b32 v{vLane}, 63, v0")
    e(f"v_readfirstlane_b32 s{sWave}, v{vT0}")
    def lanes():
        e(f"v_lshrrev_b32 v{vT0}, 3, v{vLane}")
        e(f"v_and_b32 v{vS16}, 7, v{vLane}")
        e(f"v_mul_u32_u24 v{vOff}, {ROWB}, v{vT0}")
        e(f"v_lshlrev_b32 v{vS16}, 4, v{vS16}")
        e(f"v_add_u32 v{vOff}, v{vOff}, v{vS16}")
    if not H0: lanes()
    if tm == 1:
        e(f"s_and_b32 s{sTeam}, s2, 7")
        e(f"s_lshr_b32 s{sTmp}, s2, 7")
        e(f"s_lshl_b32 s{sTeam}, s{sTeam}, 1")
        e(f"s_add_u32 s{sTeam}, s{sTeam}, s{sTmp}")
        e(f"s_bfe_u32 s{sMem}, s2, {(4 << 16) | 3}")
    elif tm == 2:
        e(f"s_bfe_u32 s{sTeam}, s2, {(2 << 16) | 1}")
        e(f"s_lshr_b32 s{sTmp}, s2, 6")
        e(f"s_lshl_b32 s{sTeam}, s{sTeam}, 2")
        e(f"s_add_u32 s{sTeam}, s{sTeam}, s{sTmp}")
        e(f"s_bfe_u32 s{sMem}, s2, {(3 << 16) | 3}")
        e(f"s_and_b32 s{sTmp}, s2, 1")
        e(f"s_lshl_b32 s{sTmp}, s{sTmp}, 3")
        e(f"s_add_u32 s{sMem}, s{sMem}, s{sTmp}")
    elif tm == 4:
        e(f"s_bfe_u32 s{sTeam}, s2, {(1 << 16) | 2}")
        e(f"s_lshr_b32 s{sTmp}, s2, 5")
        e(f"s_lshl_b32 s{sTeam}, s{sTeam}, 3")
        e(f"s_add_u32 s{sTeam}, s{sTeam}, s{sTmp}")
        e(f"s_bfe_u32 s{sMem}, s2, {(2 << 16) | 3}")
        e(f"s_and_b32 s{sTmp}, s2, 3")
        e(f"s_lshl_b32 s{sTmp}, s{sTmp}, 2")
        e(f"s_add_u32 s{sMem}, s{sMem}, s{sTmp}")
    else:
        e(f"s_lshr_b32 s{sTeam}, s2, 4")
        e(f"s_and_b32 s{sMem}, s2, {T-1}")
    if H0:
        e(f"s_sub_u32 s{sWave}, s{sWave}, 1")
        e(f"s_cbranch_scc0 L_stream")
        e(f"v_lshlrev_b32 v{vLa16}, 4, v{vLane}")
        e(f"s_mul_i32 s{sTmp}, s{sTeam}, {ROWB}")
        e(f"v_add_u32 v{vT1}, s{sTmp}, v{vLa16}")
        e(f"s_mov_b64 exec, 0xffffff")
        e(f"s_waitcnt lgkmcnt(0)")
        for r in range(NR):
            if r: e(f"v_add_u32 v{vT1}, {NT*ROWB}, v{vT1}")
            e(f"global_load_dwordx4 v[{vAcc+4*r}:{vAcc+4*r+3}], v{vT1}, s[22:23]")
        e(f"s_branch L_helper")
        e.label("L_stream")
        lanes()
        e(f"v_subrev_u32 v0, 64, v0")
    if ek > 1:
        e(f"s_lshr_b32 s{sTmp}, s{sTeam}, {int(math.log2(ek))}")
        e(f"s_mul_i32 s{sBase}, s{sTmp}, {HEADB}")
        e(f"s_and_b32 s{sTmp}, s{sTeam}, {ek-1}")
        e(f"s_mul_i32 s{sTmp}, s{sTmp}, {FRONT}")
        e(f"s_add_u32 s{sBase}, s{sBase}, s{sTmp}")
    else:
        e(f"s_mul_i32 s{sBase}, s{sTeam}, {HEADB}")
    if pm == 2:
        e(f"s_and_b32 s{sPos}, s{sMem}, 7")
        e(f"s_lshl_b32 s{sPos}, s{sPos}, 1")
        e(f"s_lshr_b32 s{sTmp}, s{sMem}, 3")
        e(f"s_add_u32 s{sPos}, s{sPos}, s{sTmp}")
        e(f"s_lshl_b32 s{sPos}, s{sPos}, 2")
        e(f"s_add_u32 s{sPos}, s{sPos}, s{sWave}")
    elif pm:
        e(f"s_lshl_b32 s{sPos}, s{sWave}, 4")
        e(f"s_add_u32 s{sPos}, s{sPos}, s{sMem}")
    else:
        e(f"s_lshl_b32 s{sPos}, s{sMem}, 2")
        e(f"s_add_u32 s{sPos}, s{sPos}, s{sWave}")
    e(f"s_mul_i32 s{sTmp}, s{sPos}, {6144 if pair else 3072}")
    e(f"s_add_u32 s{sOff}, s{sBase}, s{sTmp}")
    e(f"s_mov_b32 s{sOff0}, s{sBase}")
    e(f"s_mov_b32 s{sKV+2}, {KVB}")
    e(f"s_mov_b32 s{sKV+3}, 0x00020000")
    if FP:
        assert I0 == 2 and not pair
        if not H0:
            e(f"s_cmp_eq_u32 s{sWave}, {W}")
            e(f"s_cbranch_scc1 L_helper")
        e(f"s_add_u32 s{sPos}, s{sPos}, {rotm}")
        e(f"s_and_b32 s{sPos}, s{sPos}, {NWV-1}")
        e(f"s_mul_i32 s{sTmp}, s{sPos}, 3072")
        e(f"s_add_u32 s{sBase}, s{sBase}, {STEP}")
        e(f"s_add_u32 s{sK}, s{sBase}, s{sTmp}")
        e(f"s_waitcnt lgkmcnt(0)")
        if diag: e(f"s_memrealtime s[{sT0+2}:{sT0+3}]")
        for u, so in ((0, sOff), (1, sK)):
            for n in range(3):
                r = vRing + 12 * u + 4 * n
                e(f"buffer_load_dwordx4 v[{r}:{r+3}], v{vOff}, s[{sKV}:{sKV+3}], s{so} offen offset:{n*128}{pol}")
        e(f"s_load_dwordx16 s[4:19], s[0:1], 0")
        e(f"s_mov_b32 s{sStep}, {STEP}")
        e(f"s_mov_b32 s{sJump}, {JUMP}")
        e(f"s_mov_b32 s{sIss}, 1")
        e(f"v_mov_b32 v{vZero}, 0")
        advance(False)
    else:
        e(f"s_mov_b32 s{sStep}, {STEP}")
        e(f"s_mov_b32 s{sJump}, {JUMP}")
        e(f"s_mov_b32 s{sIss}, 0")
        e(f"v_lshlrev_b32 v{vLa16}, 4, v{vLane}")
        e(f"v_mov_b32 v{vZero}, 0")
        e(f"s_cmp_eq_u32 s{sWave}, {W}")
        e(f"s_waitcnt lgkmcnt(0)")
        e(f"s_cbranch_scc1 L_helper")
        if diag: e(f"s_memrealtime s[{sT0+2}:{sT0+3}]")
        e(f"s_mov_b32 s{sKV}, s6")
        e(f"s_mov_b32 s{sKV+1}, s7")
        for u in range(I0):
            issue(u, False)
    e(f"s_load_dwordx2 s[20:21], s[0:1], 64")
    e(f"s_mov_b32 s{sW}, {WFIX}")
    e(f"s_lshl_b32 s{sAcc}, s{sWave}, 6")
    e(f"s_mov_b32 s{sPt}, 0")
    e(f"s_mul_i32 s{sTmp}, s{sWave}, {TOT*256}")
    e(f"s_add_u32 s{sTmp}, s{sTmp}, {LDS_SC}")
    e(f"v_lshlrev_b32 v{vSc}, 2, v{vLane}")
    e(f"v_add_u32 v{vSc}, s{sTmp}, v{vSc}")
    e(f"v_mov_b32 v{vM}, 0x{f2u(-1e30):08x}")
    if diag:
        e(f"v_mov_b32 v{vStamp}, 0")
        e(f"s_memrealtime s[{sT0+4}:{sT0+5}]")
        e(f"s_waitcnt lgkmcnt(0)")
        e(f"v_writelane_b32 v{vStamp}, s{sT0+2}, 61")
        e(f"v_writelane_b32 v{vStamp}, s{sT0+4}, 60")

    def setup_tail():
        e(f"s_mov_b32 s{sOut}, s16")
        e(f"s_mov_b32 s{sOut+1}, s17")
        e(f"s_mov_b32 s{sOut+2}, {NH*ROWB}")
        e(f"s_mov_b32 s{sOut+3}, 0x00020000")
        mk_ws()
        e(f"s_mul_i32 s{sHead}, s{sWave}, {NT}")
        e(f"s_add_u32 s{sHead}, s{sHead}, s{sTeam}")
        e(f"s_mul_i32 s{sRem}, s{sHead}, {T*1024}")
        for k in range(1, 4):
            e(f"s_add_u32 s{sRem+k}, s{sRem}, {k*4096}")
        e(f"s_lshl_b32 s{sTmp}, s{sMem}, 10")
        e(f"s_add_u32 s{sSlot}, s{sRem}, s{sTmp}")
        e(f"v_lshlrev_b32 v{vHdr}, 10, v{vLane}")
        e(f"s_lshl_b32 s{sArr}, s{sTeam}, 9")
        e(f"s_add_u32 s{sArr}, s{sArr}, {ARR_OFF}")
        e(f"s_lshl_b32 s{sTmp}, s{sWave}, 7")
        e(f"s_add_u32 s{sArr}, s{sArr}, s{sTmp}")
        e(f"s_mul_i32 s{sLim}, s{sHead}, {ROWB}")
        e(f"v_lshlrev_b32 v{vLa16}, 4, v{vLane}")
        e(f"v_lshrrev_b32 v{vOutOff}, 3, v{vLane}")
        e(f"v_lshl_add_u32 v{vOutOff}, v{vOutOff}, 1, v{vS16}")

    for u in range(I0, RU):
        if ('E' in x and u == I0) or ('F' in x and u == I0 + 1):
            e(f"s_barrier")
            if diag and 'B' in x: stamp(62)
        e(f"s_waitcnt vmcnt(3)")
        if diag and u == I0 and 'B' not in x: stamp(62)
        issue(u, False)

    def helper1():
        e.label("L_helper")
        if FP and not H0:
            if not NEAR: e(f"s_load_dwordx16 s[4:19], s[0:1], 0")
            e(f"v_lshlrev_b32 v{vLa16}, 4, v{vLane}")
            e(f"v_mov_b32 v{vZero}, 0")
            if not NEAR: e(f"s_waitcnt lgkmcnt(0)")
        if not NEAR: e.nop(3)
        hb = vAcc
        if H0:
            e(f"s_mov_b64 exec, -1")
            e(f"v_mov_b32 v{vZero}, 0")
            lanes()
        if not H0:
            e(f"s_mul_i32 s{sTmp}, s{sTeam}, {ROWB}")
            e(f"v_add_u32 v{vT1}, s{sTmp}, v{vLa16}")
            e(f"s_mov_b64 exec, 0xffffff")
            if NEAR: e(f"s_waitcnt lgkmcnt(0)")
        for r in range(NR if not H0 else 0):
            if r: e(f"v_add_u32 v{vT1}, {NT*ROWB}, v{vT1}")
            e(f"global_load_dwordx4 v[{hb+4*r}:{hb+4*r+3}], v{vT1}, s[{'22:23' if NEAR else '4:5'}]")
        e(f"s_mov_b64 exec, -1")
        if NEAR: e(f"s_load_dwordx16 s[4:19], s[0:1], 0")
        e(f"s_load_dwordx2 s[20:21], s[0:1], 64")
        e(f"s_memrealtime s[{sStart}:{sStart+1}]")
        if '2' in x: e(f"s_memrealtime s[60:61]")
        e(f"v_lshlrev_b32 v{vT0}, 2, v{vLane}")
        e(f"ds_write_b32 v{vT0}, v{vZero}")
        e(f"s_mov_b32 s{sPar}, 0xaaaaaaaa")
        e(f"s_mov_b32 s{sPar+1}, 0xaaaaaaaa")
        e(f"s_mov_b64 exec, 0xffffff")
        e(f"s_waitcnt vmcnt(0)")
        for r in range(NR):
            e(f"ds_write_b128 v{vLa16}, v[{hb+4*r}:{hb+4*r+3}] offset:{LDS_Q + r*ROWB}")
        e(f"s_mov_b64 exec, -1")
        e(f"s_waitcnt lgkmcnt(0)")
        e(f"s_barrier")

    def qread(r):
        for n in range(3):
            e(f"ds_read_b128 v[{vQ+4*n}:{vQ+4*n+3}], v{vS16} offset:{LDS_Q + r*ROWB + n*128}")
    if 'E' not in x and 'F' not in x: e(f"s_barrier")
    qread(0)
    e(f"s_waitcnt lgkmcnt(0)")
    if diag and 'B' in x and 'E' not in x and 'F' not in x: stamp(62)
    if NEAR and not H0:
        e(f"s_branch L_kentry")
        helper1()
        e(f"s_branch L_helper2")
        e.label("L_kentry")

    def control():
        k = nl[0]; nl[0] += 1
        c("window = W0 + gain * (my lag behind the mean front)")
        e(f"s_memrealtime s[{sTm}:{sTm+1}]")
        e(f"ds_read_b96 v[{vLat}:{vLat+2}], v{vZero} offset:{LDS_REF}")
        e(f"s_add_u32 s{sPt}, s{sPt}, {RU}")
        e(f"s_and_b32 s{sTmp}, s{sCnt}, {PU-1}")
        e(f"s_xor_b32 s{sK}, s{sWave}, 1")
        e(f"s_or_b32 s{sTmp}, s{sTmp}, s{sK}")
        e(f"s_waitcnt lgkmcnt(0)")
        e(f"s_cbranch_scc1 L_nopt{k}")
        e(f"s_lshr_b32 s{sTmp}, s{sPt}, {int(math.log2(PU)) - 2}")
        e(f"s_or_b32 s{sK}, s{sTm}, 1")
        e(f"v_mov_b32 v{vT1}, s{sTmp}")
        e(f"v_mov_b32 v{vX}, s{sK}")
        e(f"ds_write_b32 v{vT1}, v{vX} offset:{LDS_OWN-4}")
        e.label(f"L_nopt{k}")
        e(f"v_readfirstlane_b32 s{sK}, v{vLat}")
        e(f"v_readfirstlane_b32 s{sTmp}, v{vLat+1}")
        e(f"v_readfirstlane_b32 s{sTown}, v{vLat+2}")
        e(f"s_cmp_eq_u32 s{sK}, 0")
        e(f"s_cbranch_scc1 L_noctl{k}")
        e(f"s_sub_i32 s{sK}, s{sPt}, s{sK}")
        e(f"s_sub_i32 s{sTmp}, s{sTm}, s{sTmp}")
        e(f"s_mul_i32 s{sTown}, s{sTown}, s{sK}")
        e(f"s_ashr_i32 s{sTown}, s{sTown}, 4")
        e(f"s_sub_i32 s{sTmp}, s{sTmp}, s{sTown}")
        e(f"s_max_i32 s{sTmp}, s{sTmp}, -1000")
        e(f"s_min_i32 s{sTmp}, s{sTmp}, 1000")
        e(f"s_mul_i32 s{sTmp}, s{sTmp}, {int(round(gain * 256 * 256 / 100))}")
        e(f"s_ashr_i32 s{sTmp}, s{sTmp}, 8")
        e(f"s_add_i32 s{sTmp}, s{sTmp}, {WFIX}")
        e(f"s_max_i32 s{sTmp}, s{sTmp}, {int(wmin*256)}")
        e(f"s_min_i32 s{sW}, s{sTmp}, {int(wmax*256)}")
        e.label(f"L_noctl{k}")

    def phase(name, total, unit, handlers, sw):
        e(f"s_mov_b32 s{sCnt}, 0")
        e.nop(3)
        e.raw(".p2align 6")
        e.label(f"L_{name}loop")
        for u in range(RU):
            e(f"s_waitcnt vmcnt({3*(RU-1)})")
            unit(u)
            gate()
            issue(u, sw)
        e(f"v_add_u32 v{vSc}, {RU*256}, v{vSc}")
        e(f"s_add_u32 s{sCnt}, s{sCnt}, {RU}")
        control()
        e(f"s_and_b32 s{sTmp}, s{sCnt}, {SPR-1}")
        e(f"s_cbranch_scc0 L_{name}round")
        if total % SPR:
            e(f"s_cmp_lg_u32 s{sCnt}, {total}")
            e(f"s_cbranch_scc1 L_{name}loop")
            e(f"s_branch L_{name}done")
        else:
            e(f"s_branch L_{name}loop")
        e.label(f"L_{name}round")
        hs = sorted(handlers)
        for bnd in hs[1:]:
            e(f"s_cmp_eq_u32 s{sCnt}, {bnd}")
            e(f"s_cbranch_scc1 L_{name}h{bnd}")
        if total % SPR == 0:
            e(f"s_cmp_eq_u32 s{sCnt}, {total}")
            e(f"s_cbranch_scc1 L_{name}done")
        for bnd in hs:
            e.label(f"L_{name}h{bnd}")
            e.nop(3)
            handlers[bnd]()
            e.nop(2)
            e(f"s_branch L_{name}loop")
        e.label(f"L_{name}done")
        e.nop(3)

    def kunit(u):
        r0 = vRing + 12 * u
        for j in range(4):
            for n in range(3):
                e(f"v_dot2_f32_bf16 v{vS+n}, v{r0+4*n+j}, v{vQ+4*n+j}, {'0' if j == 0 else 'v%d' % (vS+n)}")
        e(f"v_add_f32 v{vS}, v{vS}, v{vS+1}")
        e(f"v_add_f32 v{vS}, v{vS}, v{vS+2}")
        for dp in ("quad_perm:[1,0,3,2]", "quad_perm:[2,3,0,1]", "row_half_mirror"):
            e(f"v_add_f32_dpp v{vS}, v{vS}, v{vS} {dp} row_mask:0xf bank_mask:0xf")
        e(f"ds_write_b32 v{vSc}, v{vS} offset:{u*256}")
        e(f"v_max_f32 v{vM}, v{vM}, v{vS}")

    def kend(r):
        def f():
            stamp(r)
            if r + 1 < NR: qread(r + 1)
            e(f"v_max_f32_dpp v{vM}, v{vM}, v{vM} row_ror:8 row_mask:0xf bank_mask:0xf")
            e(f"v_mov_b32 v{vX}, v{vM}")
            e(f"v_permlane16_swap_b32 v{vM}, v{vX}")
            e(f"v_max_f32 v{vM}, v{vM}, v{vX}")
            e(f"v_mov_b32 v{vX}, v{vM}")
            e(f"v_permlane32_swap_b32 v{vM}, v{vX}")
            e(f"v_max_f32 v{vM}, v{vM}, v{vX}")
            e(f"v_readfirstlane_b32 s{sMx+r}, v{vM}")
            e(f"v_mov_b32 v{vM}, 0x{f2u(-1e30):08x}")
            e(f"s_waitcnt lgkmcnt(0)")
        return f

    c("---- K phase: wait unit, dot products, score -> LDS, gate, issue unit + 4")
    phase("k", TOT, kunit, {SPR * (r + 1): kend(r) for r in range(NR - 1)}, True)
    kend(NR - 1)()

    def vunit(u):
        r0 = vRing + 12 * (u % RU)
        e(f"v_sub_f32 v{vPh}, v{vT0}, v{vM}")
        e(f"ds_read_b32 v{vT0}, v{vSc} offset:{(u+1)*256}")
        e(f"v_mul_f32 v{vPh}, s{sC}, v{vPh}")
        e(f"v_exp_f32 v{vPh}, v{vPh}")
        e(f"v_cvt_pk_bf16_f32 v{vPh}, 0, v{vPh}")
        e(f"v_lshrrev_b32 v{vPl}, 16, v{vPh}")
        e(f"v_add_f32 v{vL}, v{vL}, v{vPh}")

    def vdots(u):
        r0 = vRing + 12 * (u % RU)
        for n in range(3):
            for j in range(4):
                e(f"v_dot2c_f32_bf16 v{vAcc+8*n+2*j}, v{r0+4*n+j}, v{vPl}")
                e(f"v_dot2c_f32_bf16 v{vAcc+8*n+2*j+1}, v{r0+4*n+j}, v{vPh}")
        e(f"s_waitcnt lgkmcnt(0)")

    def l_reduce():
        e(f"v_add_f32_dpp v{vL}, v{vL}, v{vL} row_ror:8 row_mask:0xf bank_mask:0xf")
        e(f"v_mov_b32 v{vX}, v{vL}")
        e(f"v_permlane16_swap_b32 v{vL}, v{vX}")
        e(f"v_add_f32 v{vL}, v{vL}, v{vX}")
        e(f"v_mov_b32 v{vX}, v{vL}")
        e(f"v_permlane32_swap_b32 v{vL}, v{vX}")
        e(f"v_add_f32 v{vL}, v{vL}, v{vX}")
        e(f"v_cndmask_b32 v{vO+3}, v{vL}, v{vM}, s[{sPar}:{sPar+1}]")

    def acc_reduce():
        A = lambda n, ee: vAcc + 8 * n + ee
        for n in range(3):
            for ee in range(4):
                e(f"v_permlane32_swap_b32 v{A(n,ee)}, v{A(n,ee+4)}")
        for n in range(3):
            for ee in range(4):
                e(f"v_add_f32 v{A(n,ee)}, v{A(n,ee)}, v{A(n,ee+4)}")
        for n in range(3):
            for ee in range(2):
                e(f"v_permlane16_swap_b32 v{A(n,ee)}, v{A(n,ee+2)}")
        for n in range(3):
            for ee in range(2):
                e(f"v_add_f32 v{A(n,ee)}, v{A(n,ee)}, v{A(n,ee+2)}")
        for n in range(3):
            e(f"v_add_f32_dpp v{vO+n}, v{A(n,0)}, v{A(n,0)} row_ror:8 row_mask:0xf bank_mask:0x3")
        for n in range(3):
            e(f"v_add_f32_dpp v{vO+n}, v{A(n,1)}, v{A(n,1)} row_ror:8 row_mask:0xf bank_mask:0xc")
        e(f"ds_write_b128 v{vRec}, v[{vO}:{vO+3}]")

    def vbegin(r):
        e(f"v_mov_b32 v{vL}, 0")
        for k in range(24):
            e(f"v_mov_b32 v{vAcc+k}, 0")
        e(f"v_mov_b32 v{vM}, s{sMx+r}")

    def vend(r):
        def f():
            stamp(NR + r)
            l_reduce()
            acc_reduce()
            e(f"v_add_u32 v{vRec}, {W*1024}, v{vRec}")
            vbegin(r + 1)
        return f

    c("---- V phase")
    e(f"v_subrev_u32 v{vSc}, {TOT*256}, v{vSc}")
    e(f"ds_read_b32 v{vT0}, v{vSc}")
    e(f"v_lshlrev_b32 v{vRec}, 4, v0")
    e(f"v_add_u32 v{vRec}, {LDS_REC}, v{vRec}")
    e(f"s_mov_b32 s{sPar}, 0xaaaaaaaa")
    e(f"s_mov_b32 s{sPar+1}, 0xaaaaaaaa")
    e(f"s_mov_b32 s{sC}, 0x{f2u(SCALE_LOG2E):08x}")
    vbegin(0)
    e(f"s_waitcnt lgkmcnt(0)")
    phase("v", TOT - RU - (RU if nopen else 0), lambda u: (vunit(u), vdots(u)), {SPR * (r + 1): vend(r) for r in range(NR - 1)}, False)
    if nopen:
        for u in range(RU):
            e(f"s_waitcnt vmcnt({3*(RU-1)})")
            vunit(u); vdots(u)
            if u < RU - nopen: gate()
            issue(u, False)
        e(f"v_add_u32 v{vSc}, {RU*256}, v{vSc}")
    c("---- drain the ring, then merge: wave -> workgroup -> team")
    stamp(2 * NR - 1)
    setup_tail()
    for u in range(RU):
        vunit(u)
        if u == RU - 1:
            l_reduce()
            e(f"s_lshl_b32 s{sTmp}, s{sWave}, 12")
            e(f"s_add_u32 s{sTmp}, s{sTmp}, {LDS_REC}")
            e(f"v_add_u32 v{vT1}, s{sTmp}, v{vLa16}")
            e(f"s_lshl_b32 s{sTmp}, s{sWave}, 10")
            e(f"s_add_u32 s{sTmp}, s{sTmp}, {LDS_TREE}")
            e(f"v_add_u32 v{vSc}, s{sTmp}, v{vLa16}")
        e(f"s_waitcnt vmcnt({3*(RU-1-u)})")
        vdots(u)
    if diag:
        e(f"s_memrealtime s[{sT0+2}:{sT0+3}]")
        e(f"s_waitcnt lgkmcnt(0)")
        for j in range(4):
            e(f"v_mov_b32 v{vRing+j}, s{sT0+j}")
        e(f"s_lshl_b32 s{sTmp}, s2, 9")
        e(f"s_add_u32 s{sTmp}, s{sTmp}, {DIAG_OFF}")
        e(f"s_lshl_b32 s{sCnt}, s{sWave}, 4")
        e(f"s_add_u32 s{sTmp}, s{sTmp}, s{sCnt}")
        e(f"s_mov_b64 exec, 1")
        e(f"buffer_store_dwordx4 v[{vRing}:{vRing+3}], v{vZero}, s[{sWs}:{sWs+3}], s{sTmp} offen")
        e(f"s_mov_b64 exec, -1")
        e(f"s_mul_i32 s{sTmp}, s2, {W*256}")
        e(f"s_add_u32 s{sTmp}, s{sTmp}, {DIAG_OFF+NWG*512}")
        e(f"v_lshlrev_b32 v{vT0}, 2, v0")
        e(f"buffer_store_dword v{vStamp}, v{vT0}, s[{sWs}:{sWs+3}], s{sTmp} offen")
        e.nop(4)
    acc_reduce()
    e(f"s_mov_b32 s{sStep}, 0xfffff800")
    e(f"s_waitcnt lgkmcnt(0)")
    e(f"s_barrier")
    if diag: e(f"s_memrealtime s[{sT0}:{sT0+1}]")

    vMW = vS
    def combine(recs, out):
        n = len(recs)
        F = vAcc
        e(f"v_max_f32 v{vMW}, v{recs[0]+3}, v{recs[1]+3}")
        i = 2
        while i < n:
            if i + 1 < n:
                e(f"v_max3_f32 v{vMW}, v{vMW}, v{recs[i]+3}, v{recs[i+1]+3}"); i += 2
            else:
                e(f"v_max_f32 v{vMW}, v{vMW}, v{recs[i]+3}"); i += 1
        for i in range(n):
            e(f"v_sub_f32 v{F+i}, v{recs[i]+3}, v{vMW}")
        for i in range(n):
            e(f"v_mul_f32 v{F+i}, s{sC}, v{F+i}")
        for i in range(n):
            e(f"v_exp_f32 v{F+i}, v{F+i}")
        for i in range(n):
            e(f"v_mov_b32_dpp v{F+i}, v{F+i} quad_perm:[1,1,3,3] row_mask:0xf bank_mask:0xf")
        for j in range(4):
            e(f"v_mul_f32 v{out+j}, v{F}, v{recs[0]+j}")
        for i in range(1, n):
            for j in range(4):
                e(f"v_fmac_f32 v{out+j}, v{F+i}, v{recs[i]+j}")

    for w in range(W):
        e(f"ds_read_b128 v[{vB+4*w}:{vB+4*w+3}], v{vT1} offset:{w*1024}")
    e(f"ds_read_b128 v[{vB+16}:{vB+19}], v{vSc}")
    e(f"s_waitcnt lgkmcnt(0)")
    combine([vB + 4 * w for w in range(W + 1)], vO)
    e(f"v_cndmask_b32 v{vO+3}, v{vO+3}, v{vMW}, s[{sPar}:{sPar+1}]")
    if pk == 1:
        e(f"v_mul_u32_u24 v{vLa16}, 12, v{vLane}")
        e(f"v_lshlrev_b32 v{vT0}, 2, v{vLane}")
        e(f"buffer_store_dwordx3 v[{vO}:{vO+2}], v{vLa16}, s[{sWs}:{sWs+3}], s{sSlot} offen sc1")
        e(f"s_mov_b64 exec, 3")
        e(f"buffer_store_dword v{vO+3}, v{vT0}, s[{sWs}:{sWs+3}], s{sSlot} offen offset:768 sc1")
        e(f"s_mov_b64 exec, -1")
    elif pk == 2:
        e(f"v_lshrrev_b32 v{vB}, 21, v{vO+2}")
        e(f"v_bfe_u32 v{vB+1}, v{vO+2}, 10, 11")
        e(f"v_lshlrev_b32 v{vLa16}, 3, v{vLane}")
        e(f"v_and_or_b32 v{vB}, v{vO}, s{sStep}, v{vB}")
        e(f"v_and_or_b32 v{vB+1}, v{vO+1}, s{sStep}, v{vB+1}")
        e(f"v_lshlrev_b32 v{vT0}, 2, v{vLane}")
        e(f"buffer_store_dwordx2 v[{vB}:{vB+1}], v{vLa16}, s[{sWs}:{sWs+3}], s{sSlot} offen sc1")
        e(f"s_mov_b64 exec, 3")
        e(f"buffer_store_dword v{vO+3}, v{vT0}, s[{sWs}:{sWs+3}], s{sSlot} offen offset:768 sc1")
        e(f"s_mov_b64 exec, -1")
    else:
        e(f"buffer_store_dwordx4 v[{vO}:{vO+3}], v{vLa16}, s[{sWs}:{sWs+3}], s{sSlot} offen sc1")
    e(f"v_mov_b32 v{vX}, 1")
    if ph:
        e(f"s_mov_b64 exec, 1")
        e(f"s_waitcnt vmcnt(0)")
        if diag: e(f"s_memrealtime s[{sT0+2}:{sT0+3}]")
        e(f"buffer_atomic_add v{vX}, v{vZero}, s[{sWs}:{sWs+3}], s{sArr} offen sc0")
        if 'L' in x or 'M' in x:
            e(f"s_mov_b64 exec, -1")
            e(f"buffer_load_dwordx4 v[{vB}:{vB+3}], v{vLa16}, s[{sWs}:{sWs+3}], s{sSlot} offen{' sc1' if 'L' in x else ''}")
            e(f"s_waitcnt vmcnt(1)")
        else:
            e(f"s_waitcnt vmcnt(0)")
        e(f"v_readfirstlane_b32 s{sTmp}, v{vX}")
    else:
        e(f"s_cmp_lg_u32 s{sWave}, 0")
        e(f"s_waitcnt vmcnt(0)")
        e(f"s_barrier")
        if diag: e(f"s_memrealtime s[{sT0+2}:{sT0+3}]")
        e(f"s_cbranch_scc1 L_wait")
        if vat:
            e(f"s_mov_b64 exec, 1")
            e(f"buffer_atomic_add v{vX}, v{vZero}, s[{sWs}:{sWs+3}], s{sArr} offen sc0")
            e(f"s_waitcnt vmcnt(0)")
            e(f"ds_write_b32 v{vZero}, v{vX} offset:{LDS_FLAG}")
            e(f"v_readfirstlane_b32 s{sTmp}, v{vX}")
            e(f"s_mov_b64 exec, -1")
        else:
            e(f"s_atomic_add s{sTmp}, s[20:21], s{sArr} glc")
            e(f"s_waitcnt lgkmcnt(0)")
            e(f"v_mov_b32 v{vX}, s{sTmp}")
            e(f"ds_write_b32 v{vZero}, v{vX} offset:{LDS_FLAG}")
        e(f"s_waitcnt lgkmcnt(0)")
        e(f"s_barrier")
        e(f"s_branch L_got")
        e.label("L_wait")
        e(f"s_barrier")
        e(f"ds_read_b32 v{vX}, v{vZero} offset:{LDS_FLAG}")
        e(f"s_waitcnt lgkmcnt(0)")
        e(f"v_readfirstlane_b32 s{sTmp}, v{vX}")
    e.label("L_got")
    if diag:
        e(f"s_memrealtime s[96:97]")
        e(f"s_mov_b64 s[98:99], 0")
        e(f"s_mov_b64 s[100:101], 0")
    e(f"s_cmp_lg_u32 s{sTmp}, {T-1}")
    e(f"s_cbranch_scc1 L_fin")
    sF = sRem + 4
    e(f"s_mov_b64 exec, 0xffff")
    e(f"buffer_load_dword v{vHm}, v{vHdr}, s[{sWs}:{sWs+3}], s{sRem} offen offset:28 sc1")
    e(f"buffer_load_dword v{vHl}, v{vHdr}, s[{sWs}:{sWs+3}], s{sRem} offen offset:12 sc1")
    e(f"s_mov_b64 exec, -1")
    for m in range(T):
        e(f"buffer_load_dwordx3 v[{vR+4*m}:{vR+4*m+2}], v{vLa16}, s[{sWs}:{sWs+3}], s{sRem+m//4} offen offset:{(m%4)*1024} sc1")
    e(f"s_waitcnt vmcnt({T+1})")
    e(f"v_max_f32_dpp v{vMW}, v{vHm}, v{vHm} row_ror:8 row_mask:0xf bank_mask:0xf")
    for rr in (4, 2, 1):
        e(f"v_max_f32_dpp v{vMW}, v{vMW}, v{vMW} row_ror:{rr} row_mask:0xf bank_mask:0xf")
    e(f"v_sub_f32 v{vHm}, v{vHm}, v{vMW}")
    e(f"v_mul_f32 v{vHm}, s{sC}, v{vHm}")
    e(f"v_exp_f32 v{vHm}, v{vHm}")
    e(f"s_waitcnt vmcnt({T})")
    e(f"v_mul_f32 v{vHl}, v{vHl}, v{vHm}")
    rs = [8, 4, 2, 1]
    for m in range(T):
        e(f"v_readlane_b32 s{sF+m}, v{vHm}, {m}")
        if m % 3 == 1 and rs:
            e(f"v_add_f32_dpp v{vHl}, v{vHl}, v{vHl} row_ror:{rs.pop(0)} row_mask:0xf bank_mask:0xf")
    e(f"v_rcp_f32 v{vHl}, v{vHl}")
    for m in range(T):
        if m % 4 == 0:
            e(f"s_waitcnt vmcnt({T - (m + 4)})")
            if diag and m == 12: e(f"s_memrealtime s[98:99]")
        for j in range(3):
            e(f"v_{'mul' if m == 0 else 'fmac'}_f32 v{vO+j}, s{sF+m}, v{vR+4*m+j}")
        if m == 0: e(f"v_readfirstlane_b32 s{sTmp}, v{vHl}")
    for j in range(3):
        e(f"v_mul_f32 v{vO+j}, s{sTmp}, v{vO+j}")
    for j in range(3):
        e(f"v_cvt_pk_bf16_f32 v{vO+j}, v{vO+j}, v{vO+j}")
    for j in range(3):
        e(f"buffer_store_short v{vO+j}, v{vOutOff}, s[{sOut}:{sOut+3}], s{sLim} offen offset:{j*128}{opol}")
    if diag: e(f"s_memrealtime s[100:101]")
    e.label("L_fin")
    if diag:
        e(f"s_cmp_lg_u32 s{sWave}, 1")
        e(f"s_cbranch_scc1 L_end")
        e(f"s_waitcnt vmcnt(0)")
        e(f"s_memrealtime s[{sT0+4}:{sT0+5}]")
        e(f"s_getreg_b32 s{sT0+6}, hwreg(HW_REG_XCC_ID)")
        e(f"s_getreg_b32 s{sT0+7}, hwreg(HW_REG_HW_ID)")
        e(f"s_waitcnt lgkmcnt(0)")
        for j in range(8):
            e(f"v_mov_b32 v{vR+j}, s{sT0+j}")
        e(f"s_lshl_b32 s{sTmp}, s2, 9")
        e(f"s_add_u32 s{sTmp}, s{sTmp}, {DIAG_OFF+256}")
        e(f"s_mov_b64 exec, 1")
        e(f"buffer_store_dwordx4 v[{vR}:{vR+3}], v{vZero}, s[{sWs}:{sWs+3}], s{sTmp} offen")
        e(f"buffer_store_dwordx4 v[{vR+4}:{vR+7}], v{vZero}, s[{sWs}:{sWs+3}], s{sTmp} offen offset:16")
        for j in range(3):
            e(f"v_mov_b32 v{vR+8+j}, s{96+2*j}")
        e(f"buffer_store_dwordx4 v[{vR+8}:{vR+11}], v{vZero}, s[{sWs}:{sWs+3}], s{sTmp} offen offset:32")
    e("s_endpgm")

    c("---- helper wave: q -> LDS, tree-token records, arrival counters, progress hints")
    if NEAR and not H0:
        e.label("L_helper2")
    else:
        helper1()
    if '3' in x:
        e(f"s_memrealtime s[60:61]")
        e(f"s_waitcnt lgkmcnt(0)")
    mk_ws()
    e(f"v_mov_b32 v{vO}, 0")
    e(f"v_mov_b32 v{vO+1}, 0")
    e(f"v_mov_b32 v{vO+2}, 0")
    e(f"v_mov_b32 v{vM}, 0x{f2u(-1e30):08x}")
    e(f"v_cndmask_b32 v{vO+3}, v{vO}, v{vM}, s[{sPar}:{sPar+1}]")
    e(f"v_add_u32 v{vRec}, {LDS_TREE}, v{vLa16}")
    e(f"s_cmp_eq_u32 s{sMem}, 0")
    e(f"s_cbranch_scc1 L_tree")
    for r in range(NR):
        e(f"ds_write_b128 v{vRec}, v[{vO}:{vO+3}] offset:{r*1024}")
    e(f"s_branch L_treedone")
    e.label("L_tree")
    e(f"v_lshrrev_b32 v{vOutOff}, 3, v{vLane}")
    e(f"v_lshl_add_u32 v{vOutOff}, v{vOutOff}, 1, v{vS16}")
    e(f"s_lshl_b32 s{sArr}, s{sTeam}, 9")
    e(f"s_add_u32 s{sArr}, s{sArr}, {ARR_OFF}")
    e(f"v_lshlrev_b32 v{vT0}, 7, v{vLane}")
    e(f"v_mov_b32 v{vPh}, 0")
    e(f"s_mov_b64 exec, 15")
    e(f"buffer_atomic_swap v{vPh}, v{vT0}, s[{sWs}:{sWs+3}], s{sArr} offen sc0")
    e(f"s_mov_b64 exec, -1")
    e(f"s_mul_i32 s{sTmp}, s{sTeam}, {ROWB}")
    e(f"v_add_u32 v{vT1}, s{sTmp}, v{vOutOff}")
    e(f"v_add_u32 v{vAl}, s{sTmp}, v{vS16}")
    hb = 56
    vEnd = max(vEnd, hb + 16 * NR + 12)
    hq = hb + 16 * NR
    for r in range(NR):
        b = hb + 16 * r
        e(f"v_add_u32 v{vT0}, {r*NT*ROWB}, v{vAl}")
        for n in range(3):
            e(f"global_load_dwordx4 v[{b+4*n}:{b+4*n+3}], v{vT0}, s[10:11] offset:{n*128}")
        e(f"v_add_u32 v{vT0}, {r*NT*ROWB}, v{vT1}")
        for n in range(3):
            e(f"global_load_ushort v{b+12+n}, v{vT0}, s[12:13] offset:{n*128}")
        e(f"s_add_u32 s{sTmp}, s{sTeam}, {r*NT}")
        e(f"s_lshr_b32 s{sTmp}, s{sTmp}, 5")
        e(f"s_lshl_b32 s{sTmp}, s{sTmp}, 1")
        e(f"v_mov_b32 v{vT0}, s{sTmp}")
        e(f"global_load_ushort v{b+15}, v{vT0}, s[14:15]")
    e(f"v_mov_b32 v{vX}, 0x{f2u(MASKRAW):08x}")
    e(f"s_lshl_b32 s{sArr}, s{sTeam}, 4")
    e(f"v_mov_b32 v{vT0}, s{sArr}")
    e(f"v_mov_b32 v{vPl}, 1")
    e(f"s_waitcnt vmcnt(0)")
    e(f"s_mov_b64 exec, 1")
    e(f"global_atomic_add v{vT0}, v{vPl}, s[18:19]")
    e(f"s_mov_b64 exec, -1")
    for r in range(NR):
        b = hb + 16 * r
        for n in range(3):
            e(f"ds_read_b128 v[{hq+4*n}:{hq+4*n+3}], v{vS16} offset:{LDS_Q + r*ROWB + n*128}")
        e(f"s_waitcnt lgkmcnt(0)")
        for j in range(4):
            for n in range(3):
                e(f"v_dot2_f32_bf16 v{vS+n}, v{b+4*n+j}, v{hq+4*n+j}, {'0' if j == 0 else 'v%d' % (vS+n)}")
        for n in range(4):
            e(f"v_lshlrev_b32 v{b+12+n}, 16, v{b+12+n}")
        e(f"v_add_f32 v{vS}, v{vS}, v{vS+1}")
        e(f"v_add_f32 v{vS}, v{vS}, v{vS+2}")
        for dp in ("quad_perm:[1,0,3,2]", "quad_perm:[2,3,0,1]", "row_half_mirror"):
            e(f"v_add_f32_dpp v{vS}, v{vS}, v{vS} {dp} row_mask:0xf bank_mask:0xf")
        e(f"v_sub_f32 v{b+15}, 1.0, v{b+15}")
        e(f"v_fma_f32 v{vS}, v{b+15}, v{vX}, v{vS}")
        e(f"v_cndmask_b32 v{b+15}, 1.0, v{vS}, s[{sPar}:{sPar+1}]")
        e(f"ds_write_b128 v{vRec}, v[{b+12}:{b+15}] offset:{r*1024}")
    e.label("L_treedone")
    c("progress hints: publishers store the time wave 1 passed each 8-unit mark; they gather all 16 stamps and leave (units, mean time, slope) in their XCD's line")
    LASTP = (2 * TOT - RU) // PU - 1
    sPub, sLead, sRefl, sTry, sR1, sR2 = sCnt, sIss, sStep, sJump, sBase, sPos
    e(f"s_mov_b32 s{sPt}, 0")
    e(f"s_getreg_b32 s{sRefl}, hwreg(HW_REG_XCC_ID)")
    e(f"s_and_b32 s{sRefl}, s{sRefl}, 15")
    e(f"s_lshl_b32 s{sRefl}, s{sRefl}, 7")
    e(f"s_add_u32 s{sRefl}, s{sRefl}, {REFL}")
    e(f"v_lshlrev_b32 v{vHdr}, 7, v{vLane}")
    e(f"s_lshr_b32 s{sK}, s2, 4")
    e(f"s_and_b32 s{sTmp}, s2, 15")
    e(f"s_cmp_eq_u32 s{sK}, s{sTmp}")
    e(f"s_cselect_b32 s{sPub}, 1, 0")
    e(f"s_cmp_lt_u32 s{sK}, {nlead}")
    e(f"s_cselect_b32 s{sLead}, s{sPub}, 0")
    e(f"s_lshl_b32 s{sTmp}, s{sK}, 7")
    e(f"v_mov_b32 v{vHl}, s{sTmp}")
    e(f"s_mov_b32 s{sOff}, {HINT_OFF}")
    e(f"s_movk_i32 s{sSlot}, 16384")
    e(f"s_mov_b64 exec, 1")
    e(f"s_waitcnt lgkmcnt(0)")
    e.label("L_hp")
    e(f"s_lshl_b32 s{sTmp}, s{sPt}, 2")
    e(f"v_mov_b32 v{vT1}, s{sTmp}")
    e.label("L_hwait")
    e(f"s_sleep {poll}")
    e(f"s_cmp_lg_u32 s{sLead}, 0")
    e(f"s_cbranch_scc1 L_hnoref")
    e(f"s_cmp_lt_u32 s{sPt}, 2")
    e(f"s_cbranch_scc1 L_hnoref")
    e(f"buffer_load_dwordx3 v[{vLat}:{vLat+2}], v{vZero}, s[{sWs}:{sWs+3}], s{sRefl} offen sc1")
    e(f"s_waitcnt vmcnt(0)")
    e(f"v_readfirstlane_b32 s{sTmp}, v{vLat+1}")
    e(f"v_readfirstlane_b32 s{sK}, v{vLat}")
    e(f"s_sub_u32 s{sTmp}, s{sTmp}, s{sStart}")
    e(f"s_cmp_lt_u32 s{sTmp}, s{sSlot}")
    e(f"s_cbranch_scc0 L_hnoref")
    e(f"s_cmp_le_u32 s{sK}, {2*TOT}")
    e(f"s_cbranch_scc0 L_hnoref")
    e(f"ds_write_b96 v{vZero}, v[{vLat}:{vLat+2}] offset:{LDS_REF}")
    e.label("L_hnoref")
    e(f"ds_read_b32 v{vX}, v{vT1} offset:{LDS_OWN}")
    e(f"s_waitcnt lgkmcnt(0)")
    e(f"v_readfirstlane_b32 s{sTown}, v{vX}")
    e(f"s_cmp_eq_u32 s{sTown}, 0")
    e(f"s_cbranch_scc1 L_hwait")
    e(f"s_cmp_eq_u32 s{sPub}, 0")
    e(f"s_cbranch_scc1 L_hnext")
    e(f"buffer_store_dword v{vX}, v{vHl}, s[{sWs}:{sWs+3}], s{sOff} offen sc1")
    if 'C' in x:
        e(f"s_and_b32 s{sTmp}, s{sPt}, 7")
        e(f"s_cmp_lg_u32 s{sTmp}, 5")
        e(f"s_cbranch_scc1 L_nocode")
        e(f"s_getpc_b64 s[{sMx}:{sMx+1}]")
        e.label("L_pc")
        e(f"s_sub_u32 s{sMx}, s{sMx}, L_pc-L_kdone")
        e(f"s_subb_u32 s{sMx+1}, s{sMx+1}, 0")
        e(f"s_mov_b64 exec, 0x3ffffffffff") if False else None
        e(f"s_mov_b32 exec_lo, -1")
        e(f"s_mov_b32 exec_hi, 0x7ff")
        e(f"global_load_dword v{vAl}, v{vHdr}, s[{sMx}:{sMx+1}]")
        e(f"s_mov_b64 exec, 1")
        e.label("L_nocode")
    e(f"s_cmp_eq_u32 s{sLead}, 0")
    e(f"s_cbranch_scc1 L_hnext")
    e(f"s_mov_b64 exec, 0xffff")
    e(f"s_mov_b32 s{sTry}, {tries}")
    e.label("L_hgather")
    e(f"s_sleep {dly}")
    e(f"buffer_load_dword v{vHm}, v{vHdr}, s[{sWs}:{sWs+3}], s{sOff} offen sc1")
    e(f"s_sub_u32 s{sTry}, s{sTry}, 1")
    e(f"s_waitcnt vmcnt(0)")
    e(f"v_subrev_u32 v{vHm}, s{sStart}, v{vHm}")
    e(f"v_cmp_le_u32 vcc, s{sSlot}, v{vHm}")
    e(f"s_cbranch_vccz L_hall")
    e(f"s_cmp_lg_u32 s{sTry}, 0")
    e(f"s_cbranch_scc1 L_hgather")
    e(f"s_sub_u32 s{sK}, s{sTown}, s{sStart}")
    e(f"s_add_u32 s{sK}, s{sK}, 250")
    e(f"v_mov_b32 v{vT0}, s{sK}")
    e(f"v_cndmask_b32 v{vHm}, v{vHm}, v{vT0}, vcc")
    e.label("L_hall")
    e.nop(2)
    for dp in ("quad_perm:[1,0,3,2]", "quad_perm:[2,3,0,1]", "row_half_mirror", "row_mirror"):
        e(f"v_add_u32_dpp v{vHm}, v{vHm}, v{vHm} {dp} row_mask:0xf bank_mask:0xf")
    e(f"v_lshrrev_b32 v{vHm}, 4, v{vHm}")
    e(f"v_add_u32 v{vLat+1}, s{sStart}, v{vHm}")
    e(f"s_mov_b64 exec, 1")
    e(f"v_readfirstlane_b32 s{sTown}, v{vLat+1}")
    e(f"s_add_u32 s{sTmp}, s{sPt}, 1")
    e(f"s_mul_i32 s{sTmp}, s{sTmp}, {PU}")
    e(f"v_mov_b32 v{vLat}, s{sTmp}")
    e(f"s_sub_u32 s{sK}, s{sTown}, s{sR1}")
    e(f"s_lshl_b32 s{sK}, s{sK}, 1")
    e(f"s_sub_u32 s{sTmp}, s{sTown}, s{sR2}")
    e(f"s_cmp_eq_u32 s{sPt}, 1")
    e(f"s_cselect_b32 s{sTmp}, s{sK}, s{sTmp}")
    if 'Y' in x:
        e(f"s_cselect_b32 s{sHead}, s{sTmp}, s{sHead}")
        e(f"s_lshr_b32 s{sK}, s{sHead}, 4")
        e(f"s_add_u32 s{sK}, s{sK}, s{sHead}")
        e(f"s_min_u32 s{sTmp}, s{sTmp}, s{sK}")
        e(f"s_mov_b32 s{sHead}, s{sTmp}")
    if 2 * PU > 16: e(f"s_lshr_b32 s{sTmp}, s{sTmp}, {int(math.log2(2 * PU)) - 4}")
    if 2 * PU < 16: e(f"s_lshl_b32 s{sTmp}, s{sTmp}, {4 - int(math.log2(2 * PU))}")
    e(f"v_mov_b32 v{vLat+2}, s{sTmp}")
    e(f"s_mov_b32 s{sR2}, s{sR1}")
    e(f"s_mov_b32 s{sR1}, s{sTown}")
    e(f"s_cmp_eq_u32 s{sPt}, 0")
    e(f"s_cbranch_scc1 L_hnext")
    e(f"buffer_store_dwordx3 v[{vLat}:{vLat+2}], v{vZero}, s[{sWs}:{sWs+3}], s{sRefl} offen")
    e(f"ds_write_b96 v{vZero}, v[{vLat}:{vLat+2}] offset:{LDS_REF}")
    e.label("L_hnext")
    e(f"s_add_u32 s{sOff}, s{sOff}, {16*128}")
    e(f"s_add_u32 s{sPt}, s{sPt}, 1")
    if 'X' in x:
        e(f"s_add_u32 s{sTmp}, s{sPt}, s{sPub}")
        e(f"s_cmp_lt_u32 s{sTmp}, {LASTP+1}")
    else:
        e(f"s_cmp_lt_u32 s{sPt}, {LASTP}")
    e(f"s_cbranch_scc1 L_hp")
    if touch:
        e(f"global_load_dword v{vAl}, v{vZero}, s[16:17]")
    c("the team's arrival counters must be zeroed before this workgroup may arrive")
    e(f"s_lshl_b32 s{sArr}, s{sTeam}, 4")
    e(f"s_load_dword s{sLim}, s[18:19], s{sArr}")
    e.label("L_rdy")
    e(f"s_waitcnt lgkmcnt(0)")
    e(f"s_cmp_lg_u32 s{sLim}, 0")
    e(f"s_cbranch_scc1 L_rdyok")
    e(f"s_sleep 16")
    e(f"s_atomic_add s{sLim}, s[18:19], s{sArr} glc")
    e(f"s_branch L_rdy")
    e.label("L_rdyok")
    if 'S' in x:
        e.label("L_hold")
        e(f"s_memrealtime s[{sTm}:{sTm+1}]")
        e(f"s_waitcnt lgkmcnt(0)")
        e(f"s_sub_u32 s{sTmp}, s{sTm}, s60")
        e(f"s_cmp_lt_u32 s{sTmp}, 7500")
        e(f"s_cbranch_scc1 L_hold")
    e(f"s_barrier")
    if '4' in x:
        e.label("L_hold4")
        e(f"s_memrealtime s[{sTm}:{sTm+1}]")
        e(f"s_waitcnt lgkmcnt(0)")
        e(f"s_sub_u32 s{sTmp}, s{sTm}, s60")
        e(f"s_cmp_lt_u32 s{sTmp}, 7500")
        e(f"s_cbranch_scc1 L_hold4")
    e.label("L_end")
    e("s_endpgm")

    acc_off = (vEnd + 3) // 4 * 4
    assert vEnd <= 256 and sEnd <= 96
    out = HEADER
    out += f"; params: v11 v4 HW=1 RU={RU} W0={W0} I0={I0} rotm={rotm} gain={gain} PU={PU} dly={dly} wmin={wmin} wmax={wmax} nlead={nlead} {'diag' if diag else ''} off={DIAG_OFF}\n"
    if 'D' in x: out += DOC
    out += f"; @launch grid=({NWG},1,1) block=({(W+1)*64},1,1) lds={LDS_BYTES}\n"
    out += f""".amdgcn_target "amdgcn-amd-amdhsa--gfx950"
.text
.globl {NAME}_kernel
.p2align 8
.type {NAME}_kernel,@function
{NAME}_kernel:
"""
    out += "\n".join(e.lines) + "\n"
    out += f""".section .rodata,"a"
.p2align 6
.amdhsa_kernel {NAME}_kernel
  .amdhsa_next_free_vgpr {vEnd}
  .amdhsa_next_free_sgpr {102 if diag else sEnd}
  .amdhsa_accum_offset {acc_off}
  .amdhsa_group_segment_fixed_size 0
  .amdhsa_kernarg_size 72
  .amdhsa_user_sgpr_count 2
  .amdhsa_user_sgpr_kernarg_segment_ptr 1
  .amdhsa_system_sgpr_workgroup_id_x 1
.end_amdhsa_kernel
"""
    return out


if __name__ == "__main__":
    ap = argparse.ArgumentParser()
    ap.add_argument("-o", default="cdna_kernels/" + NAME + ".s")
    for k, t, d in (("ru", int, 4), ("w0", float, 2.0), ("i0", int, 2), ("rotm", int, 4), ("gain", float, 0.8), ("pu", int, 8),
                    ("dly", int, 20), ("wmin", float, 1.0), ("wmax", float, 3.0), ("tries", int, 3), ("nlead", int, 16),
                    ("touch", int, 1), ("poll", int, 6), ("vat", int, 0), ("x", str, ""), ("opol", str, "sc1"), ("nopen", int, 0), ("pk", int, 0), ("ph", int, 0), ("pm", int, 0), ("pair", int, 0), ("tm", int, 0), ("ek", int, 1)):
        ap.add_argument("--" + k, type=t, default=d)
    ap.add_argument("--diag", action="store_true")
    a = ap.parse_args()
    open(a.o, "w").write(gen(a.ru, a.w0, a.i0, "nt", a.diag, a.rotm, (" " + a.opol) if a.opol else "", a.gain, a.pu, a.dly, a.wmin, a.wmax,
                             a.tries, a.nlead, a.touch, a.poll, a.vat, a.x, a.nopen, a.pk, a.ph, a.pm, a.pair, a.tm, a.ek))
```
